```python
import torch

def _softmax(x, axis=-1):
    return torch.softmax(x, dim=axis)
def _gelu(x):
    return torch.nn.functional.gelu(x, approximate="tanh")
def _silu(x):
    return torch.nn.functional.silu(x)
def _sigmoid(x):
    return torch.sigmoid(x)
def _layernorm(x, axis=-1, eps=1e-5):
    m = x.mean(dim=axis, keepdim=True)
    v = x.var(dim=axis, keepdim=True, unbiased=False)
    return (x - m) / torch.sqrt(v + eps)
def _scatter_add(tgt, idx, src, axis=0):
    return tgt.clone().index_add_(axis, idx, src)
def _segment_sum(src, seg, n):
    out = torch.zeros((n,) + src.shape[1:], dtype=src.dtype)
    return out.index_add_(0, seg, src)
def _pad(x, pw):
    flat = tuple(v for pair in reversed(pw) for v in pair)
    return torch.nn.functional.pad(x, flat)

kernel_name = 'gated_mix__linear_attn_block__mixer_s_mlp__prompt'

def setup_inputs():

    _w = (lambda a: (lambda t: t.to(torch.bfloat16) if t.is_floating_point() else t)(torch.as_tensor(a)))
    def _A_setup():
        B, S, D = 1, 2048, 1024
        return {
            "x": _w((lambda *s: torch.randn(*s, dtype=torch.bfloat16) * 0.05)(B, S, D)),
            "wqkv": _w((lambda *s: torch.randn(*s, dtype=torch.bfloat16) * 3.2)(D, 3 * D)),
            "wo": _w((lambda *s: torch.randn(*s, dtype=torch.bfloat16) * 1.6)(D, D)),
        }
    _A_in = _A_setup()

    def _B_setup():
        B, S, D, F = 1, 2048, 1024, 3584
        return {
            "x":  _w((lambda *s: torch.randn(*s, dtype=torch.bfloat16) * 0.05)(B, S, D)),
            "w1": _w((lambda *s: torch.randn(*s, dtype=torch.bfloat16) * 3.2)(D, D) * (D ** -0.5)),
            "w2": _w((lambda *s: torch.randn(*s, dtype=torch.bfloat16) * 3.2)(D, D) * (D ** -0.5)),
            "w3": _w((lambda *s: torch.randn(*s, dtype=torch.bfloat16) * 3.2)(D, F) * (D ** -0.5)),
            "w4": _w((lambda *s: torch.randn(*s, dtype=torch.bfloat16) * 1.6)(F, D) * (F ** -0.5)),
        }
    _B_in = _B_setup()

    return {
        "A_x": _A_in["x"],
        "A_wqkv": _A_in["wqkv"],
        "A_wo": _A_in["wo"],
        "B_x": _B_in["x"],
        "B_w1": _B_in["w1"],
        "B_w2": _B_in["w2"],
        "B_w3": _B_in["w3"],
        "B_w4": _B_in["w4"],
        "gate_w": _w((lambda *s: torch.randn(*s, dtype=torch.bfloat16) * 0.05)(1024) * 16.0),
    }

def reference(A_x, A_wqkv, A_wo, B_x, B_w1, B_w2, B_w3, B_w4, gate_w):
    def _A_ref(x, wqkv, wo):
        B, S, D = x.shape
        H = 32; Dh = D // H
        qkv = (lambda x, *d: x.permute(*d))((x @ wqkv).reshape(B, S, 3, H, Dh), 2, 0, 3, 1, 4)
        q, k, v = qkv[0], qkv[1], qkv[2]
        phi = lambda t: torch.where(t > 0, t + 1, torch.exp(t)) + 1e-6
        pq, pk = phi(q), phi(k)
        kv = torch.einsum("bhsd,bhse->bhde", pk, v)
        z = torch.einsum("bhsd->bhd", pk)
        num = torch.einsum("bhqd,bhde->bhqe", pq, kv)
        den = torch.einsum("bhqd,bhd->bhq", pq, z)[..., None] + 1e-6
        o = num / den
        return (lambda x, *d: x.permute(*d))(o, 0, 2, 1, 3).reshape(B, S, D) @ wo

    def _B_ref(x, w1, w2, w3, w4):
        B, S, D = x.shape
        h = _gelu(_layernorm(x, axis=-1) @ w1)
        c = D // 4
        g0 = _pad(h[:, :, 0*c:1*c], ((0, 0), (1, 0), (0, 0)))[:, :S, :]
        g1 = _pad(h[:, :, 1*c:2*c], ((0, 0), (0, 1), (0, 0)))[:, 1:, :]
        g2 = _pad(h[:, :, 2*c:3*c], ((0, 0), (2, 0), (0, 0)))[:, :S, :]
        g3 = _pad(h[:, :, 3*c:   ], ((0, 0), (0, 2), (0, 0)))[:, 2:, :]
        hs = torch.concatenate([g0, g1, g2, g3], axis=-1) @ w2
        x1 = x + hs
        h2 = _gelu(_layernorm(x1, axis=-1) @ w3) @ w4
        return x1 + h2

    x = A_x
    g = _sigmoid((x * gate_w).sum(-1, keepdims=True))
    a = _A_ref(x, A_wqkv, A_wo)
    b = _B_ref(x, B_w1, B_w2, B_w3, B_w4)
    return g * a + (1 - g) * b
```

```python
import struct, sys

MB = 1 << 20
WS_PQ = 0 * MB
WS_HS = 4 * MB
WS_X1 = 8 * MB
WS_O = 12 * MB
WS_ACT = 16 * MB
WS_KVP = 32 * MB
WS_ZP = 34 * MB
WS_G = 35 * MB

S, D, F = 2048, 1024, 3584


def f32(x):
    return "0x%08x" % struct.unpack("<I", struct.pack("<f", x))[0]


LOG2E = 1.4426950408889634
GC0 = -2.0 * 0.7978845608028654 * LOG2E
GC1 = GC0 * 0.044715


class Asm:
    def __init__(self):
        self.lines = []
        self.uid = 0

    def __call__(self, s):
        for ln in s.strip("\n").split("\n"):
            self.lines.append("    " + ln.strip())

    def label(self, l):
        self.lines.append(l + ":")

    def newlabel(self, base):
        self.uid += 1
        return "L_%s_%d" % (base, self.uid)

    def raw(self, s):
        self.lines.append(s)


def vr(a, n=1):
    return "v%d" % a if n == 1 else "v[%d:%d]" % (a, a + n - 1)


def sr(a, n=1):
    return "s%d" % a if n == 1 else "s[%d:%d]" % (a, a + n - 1)


P_X, P_WQKV, P_WO, P_W1, P_W2, P_W3, P_W4, P_GATE, P_OUT, P_DBG, P_WS = 4, 6, 8, 12, 14, 16, 18, 20, 22, 24, 26
SRD_A, SRD_B, SRD_C, SRD_D, SRD_A2, SRD_B2, SRD_E, SRD_F = 28, 32, 36, 40, 44, 48, 52, 56
S_WAVE, S_ROW0, S_COL0, S_TYPE, S_LDB, S_SA, S_SB, S_CNT = 60, 61, 62, 63, 64, 65, 66, 67
S_KA, S_KB, S_BUF, S_T0, S_T1, S_T2, S_T3, S_LW = 68, 69, 70, 71, 72, 73, 74, 75
S_SHIFT, S_RB, S_CT, S_XCD, S_J, S_KBSTEP = 76, 77, 78, 79, 80, 81
S_EXEC = 82
S_C0 = 84


def make_srd(a, srd, ptr, off, nbytes):
    if off:
        a("s_add_u32 s%d, s%d, 0x%x" % (srd, ptr, off))
        a("s_addc_u32 s%d, s%d, 0" % (srd + 1, ptr + 1))
    else:
        a("s_mov_b32 s%d, s%d" % (srd, ptr))
        a("s_mov_b32 s%d, s%d" % (srd + 1, ptr + 1))
    a("s_mov_b32 s%d, 0x%x" % (srd + 2, nbytes))
    a("s_mov_b32 s%d, 0x20000" % (srd + 3))


def kernel_header(a, name, nwg):
    a.raw(".globl %s" % name)
    a.raw(".p2align 8")
    a.raw(".type %s,@function" % name)
    a.label(name)
    a("s_cmp_ge_u32 s2, %d" % nwg)
    a("s_cbranch_scc1 L_%s_end" % name)
    a("s_load_dwordx16 s[4:19], s[0:1], 0")
    a("s_load_dwordx8 s[20:27], s[0:1], 64")
    a("v_lshrrev_b32 v2, 6, v0")
    a("v_and_b32 v1, 63, v0")
    a("s_and_b32 s%d, s2, 7" % S_XCD)
    a("v_readfirstlane_b32 s%d, v2" % S_WAVE)
    a("s_lshr_b32 s%d, s2, 3" % S_J)


def kernel_footer(a, name):
    a.label("L_%s_end" % name)
    a("s_endpgm")


def descriptor(a, name, vgprs=256):
    a.raw(".section .rodata,\"a\"")
    a.raw(".p2align 6")
    a.raw(".amdhsa_kernel %s" % name)
    a.raw("  .amdhsa_next_free_vgpr %d" % vgprs)
    a.raw("  .amdhsa_next_free_sgpr 102")
    a.raw("  .amdhsa_accum_offset %d" % vgprs)
    a.raw("  .amdhsa_group_segment_fixed_size 0")
    a.raw("  .amdhsa_kernarg_size 96")
    a.raw("  .amdhsa_user_sgpr_count 2")
    a.raw("  .amdhsa_user_sgpr_kernarg_segment_ptr 1")
    a.raw("  .amdhsa_system_sgpr_workgroup_id_x 1")
    a.raw(".end_amdhsa_kernel")
    a.raw(".text")


class Cfg:
    def __init__(self, BN, NBUF):
        self.BN = BN
        self.NBUF = NBUF
        self.STAGE = 16384 + BN * 128
        self.big = BN == 256
        self.MI = 4 if self.big else 2
        self.NI = 2 if self.big else 1
        self.LA = 4
        self.LB = BN // 32
        self.LPS = self.LA + self.LB
        self.NSUB = 4 if self.big else 1
        self.KPS = 4 // self.NSUB
        self.LDS_STATS = self.NBUF * self.STAGE
        self.LDS_CS = self.LDS_STATS + 1024
        self.LDS_TOTAL = self.LDS_CS + 1024


V_LA = 16
V_LB = 20
V_LA2 = 28
V_LB2 = 32
V_SA = 40
V_SAB = 44
V_SB = 48
V_SBB = 49
V_SUM, V_SQ, V_CS0, V_CS1, V_ONES = 50, 51, 52, 53, 54
V_SUM2, V_SQ2 = 55, 56
V_SD = 64


def loader_a_offsets(a, vdst, lda):
    a("v_lshrrev_b32 v3, 3, v1")
    a("v_and_b32 v4, 7, v1")
    a("v_lshrrev_b32 v5, 4, v1")
    a("v_xor_b32 v4, v4, v5")
    a("s_lshl_b32 s%d, s%d, 5" % (S_T0, S_LW))
    a("s_add_u32 s%d, s%d, s%d" % (S_T0, S_T0, S_ROW0))
    a("v_add_u32 v3, s%d, v3" % S_T0)
    a("s_mov_b32 s%d, %d" % (S_T1, lda))
    a("v_mul_lo_u32 v3, v3, s%d" % S_T1)
    for j in range(4):
        if j & 1:
            a("v_xor_b32 v5, 4, v4")
        else:
            a("v_mov_b32 v5, v4")
        a("v_lshl_add_u32 v5, v5, 4, v3")
        a("v_add_u32 v%d, 0x%x, v5" % (vdst + j, 8 * j * lda - 1024 * j))


def loader_b_offsets_big(a, vdst):
    a("v_lshrrev_b32 v3, 5, v1")
    a("v_and_b32 v4, 31, v1")
    a("s_lshl_b32 s%d, s%d, 4" % (S_T0, S_LW))
    a("v_add_u32 v6, s%d, v3" % S_T0)
    a("v_mul_lo_u32 v6, v6, s%d" % S_LDB)
    for par in range(2):
        a("v_or_b32 v5, %d, v3" % (par << 1))
        a("v_lshlrev_b32 v5, 2, v5")
        a("v_xor_b32 v5, v5, v4")
        a("v_bfe_u32 v7, v5, 2, 1")
        a("v_mul_lo_u32 v7, v7, s%d" % S_SA)
        a("v_lshrrev_b32 v8, 3, v5")
        a("v_mul_lo_u32 v8, v8, s%d" % S_SB)
        a("v_and_b32 v9, 3, v5")
        a("v_lshlrev_b32 v9, 3, v9")
        a("v_add3_u32 v7, v7, v8, v9")
        a("v_add_u32 v7, s%d, v7" % S_COL0)
        a("v_lshl_add_u32 v%d, v7, 1, v6" % (10 + par))
    for j in range(8):
        a("s_mul_i32 s%d, s%d, %d" % (S_T0, S_LDB, 2 * j))
        a("s_sub_u32 s%d, s%d, %d" % (S_T0, S_T0, 1024 * (j & 3)))
        a("v_add_u32 v%d, s%d, v%d" % (vdst + j, S_T0, 10 + (j & 1)))


def loader_b_offsets_small(a, vdst, ldb):
    a("v_lshrrev_b32 v3, 3, v1")
    a("s_lshl_b32 s%d, s%d, 4" % (S_T0, S_LW))
    a("v_add_u32 v3, s%d, v3" % S_T0)
    a("s_mov_b32 s%d, %d" % (S_T1, ldb))
    a("v_mul_lo_u32 v3, v3, s%d" % S_T1)
    a("v_and_b32 v4, 7, v1")
    a("v_bfe_u32 v5, v1, 4, 1")
    a("v_lshlrev_b32 v5, 2, v5")
    a("v_xor_b32 v4, v4, v5")
    a("v_lshl_add_u32 v3, v4, 4, v3")
    a("s_lshl_b32 s%d, s%d, 1" % (S_T0, S_COL0))
    a("v_add_u32 v3, s%d, v3" % S_T0)
    for j in range(2):
        a("v_add_u32 v%d, 0x%x, v3" % (vdst + j, 8 * j * ldb - 1024 * j))


def loader_issue(a, c, srda, srdb, vla, vlb):
    a("s_lshl_b32 s%d, s%d, 12" % (S_T0, S_LW))
    a("s_add_u32 m0, s%d, s%d" % (S_BUF, S_T0))
    a("s_nop 0")
    for j in range(4):
        a("buffer_load_dwordx4 v%d, s[%d:%d], s%d offen offset:%d lds" % (vla + j, srda, srda + 3, S_KA, 1024 * j))
    if c.big:
        a("s_lshl_b32 s%d, s%d, 13" % (S_T0, S_LW))
        a("s_add_u32 s%d, s%d, s%d" % (S_T0, S_T0, S_BUF))
        a("s_add_u32 m0, s%d, 16384" % S_T0)
        a("s_nop 0")
        for j in range(4):
            a("buffer_load_dwordx4 v%d, s[%d:%d], s%d offen offset:%d lds" % (vlb + j, srdb, srdb + 3, S_KB, 1024 * j))
        a("s_add_u32 m0, s%d, %d" % (S_T0, 16384 + 4096))
        a("s_nop 0")
        for j in range(4, 8):
            a("buffer_load_dwordx4 v%d, s[%d:%d], s%d offen offset:%d lds" % (vlb + j, srdb, srdb + 3, S_KB, 1024 * (j & 3)))
    else:
        a("s_lshl_b32 s%d, s%d, 11" % (S_T0, S_LW))
        a("s_add_u32 s%d, s%d, s%d" % (S_T0, S_T0, S_BUF))
        a("s_add_u32 m0, s%d, 16384" % S_T0)
        a("s_nop 0")
        for j in range(2):
            a("buffer_load_dwordx4 v%d, s[%d:%d], s%d offen offset:%d lds" % (vlb + j, srdb, srdb + 3, S_KB, 1024 * j))
    a("s_add_u32 s%d, s%d, 128" % (S_KA, S_KA))
    a("s_add_u32 s%d, s%d, s%d" % (S_KB, S_KB, S_KBSTEP))
    a("s_add_u32 s%d, s%d, %d" % (S_BUF, S_BUF, c.STAGE))
    a("s_cmp_eq_u32 s%d, %d" % (S_BUF, c.STAGE * c.NBUF))
    a("s_cselect_b32 s%d, 0, s%d" % (S_BUF, S_BUF))


def stats_setup(a, c):
    a("v_and_b32 v3, 31, v1")
    a("s_lshl_b32 s%d, s%d, 5" % (S_T0, S_LW))
    a("v_add_u32 v3, s%d, v3" % S_T0)
    a("v_lshlrev_b32 v3, 7, v3")
    a("v_bfe_u32 v4, v1, 1, 3")
    a("v_lshrrev_b32 v5, 5, v1")
    a("v_lshlrev_b32 v5, 2, v5")
    a("v_xor_b32 v4, v4, v5")
    for t in range(4):
        a("v_xor_b32 v5, %d, v4" % t)
        a("v_lshl_add_u32 v%d, v5, 4, v3" % (V_SAB + t))
        a("v_mov_b32 v%d, v%d" % (V_SA + t, V_SAB + t))
    a("v_bfe_u32 v3, v1, 2, 2")
    a("v_and_b32 v4, 3, v1")
    a("v_lshrrev_b32 v5, 4, v1")
    a("v_lshlrev_b32 v5, 1, v5")
    a("v_lshrrev_b32 v6, 1, v4")
    a("v_add_u32 v5, v5, v6")
    a("s_lshl_b32 s%d, s%d, 3" % (S_T0, S_LW))
    a("v_add_u32 v5, s%d, v5" % S_T0)
    a("v_lshlrev_b32 v6, 2, v3")
    a("v_xor_b32 v5, v5, v6")
    a("v_lshlrev_b32 v5, 4, v5")
    a("v_lshl_add_u32 v5, v3, 9, v5")
    a("v_and_b32 v4, 1, v4")
    a("v_lshl_add_u32 v5, v4, 3, v5")
    a("v_add_u32 v%d, 16384, v5" % V_SBB)
    a("v_mov_b32 v%d, v%d" % (V_SB, V_SBB))
    for r in (V_SUM, V_SQ, V_CS0, V_CS1, V_SUM2, V_SQ2):
        a("v_mov_b32 v%d, 0" % r)
    a("v_mov_b32 v%d, 0x3f803f80" % V_ONES)
    a("s_mov_b32 s%d, 0" % S_T3)


def stats_step(a, c):
    for t in range(4):
        a("ds_read_b128 v[%d:%d], v%d" % (V_SD + 4 * t, V_SD + 4 * t + 3, V_SA + t))
    for m in range(16):
        a("ds_read_b64_tr_b16 v[%d:%d], v%d offset:%d" % (V_SD + 16 + 2 * m, V_SD + 17 + 2 * m, V_SB, 2048 * m))
    a("s_add_u32 s%d, s%d, %d" % (S_T3, S_T3, c.STAGE))
    a("s_cmp_eq_u32 s%d, %d" % (S_T3, c.STAGE * c.NBUF))
    a("s_cselect_b32 s%d, 0, s%d" % (S_T3, S_T3))
    a("s_waitcnt lgkmcnt(15)")
    for t in range(16):
        s, q = (V_SUM, V_SQ) if t & 1 else (V_SUM2, V_SQ2)
        a("v_dot2_f32_bf16 v%d, v%d, v%d, v%d" % (s, V_SD + t, V_ONES, s))
        a("v_dot2_f32_bf16 v%d, v%d, v%d, v%d" % (q, V_SD + t, V_SD + t, q))
    a("s_waitcnt lgkmcnt(0)")
    for t in range(4):
        a("v_add_u32 v%d, s%d, v%d" % (V_SA + t, S_T3, V_SAB + t))
    a("v_add_u32 v%d, s%d, v%d" % (V_SB, S_T3, V_SBB))
    for m in range(32):
        cs = V_CS0 if m & 1 else V_CS1
        a("v_dot2_f32_bf16 v%d, v%d, v%d, v%d" % (cs, V_SD + 16 + m, V_ONES, cs))


def bf16_round(a, dst, src):
    a("v_cvt_pk_bf16_f32 v%d, v%d, v%d" % (dst, src, src))
    a("v_lshlrev_b32 v%d, 16, v%d" % (dst, dst))


def stats_finish(a, c):
    a("s_nop 3")
    a("v_add_f32 v%d, v%d, v%d" % (V_SUM, V_SUM, V_SUM2))
    a("v_add_f32 v%d, v%d, v%d" % (V_SQ, V_SQ, V_SQ2))
    a("v_add_f32 v%d, v%d, v%d" % (V_CS0, V_CS0, V_CS1))
    a("v_mov_b32 v3, v%d" % V_SUM)
    a("v_mov_b32 v4, v%d" % V_SUM)
    a("v_mov_b32 v5, v%d" % V_SQ)
    a("v_mov_b32 v6, v%d" % V_SQ)
    a("s_nop 1")
    a("v_permlane32_swap_b32 v3, v4")
    a("v_permlane32_swap_b32 v5, v6")
    a("s_nop 1")
    a("v_add_f32 v3, v3, v4")
    a("v_add_f32 v5, v5, v6")
    a("v_mul_f32 v3, %s, v3" % f32(1.0 / 1024))
    a("v_mul_f32 v5, %s, v5" % f32(1.0 / 1024))
    a("v_fma_f32 v5, -v3, v3, v5")
    a("v_max_f32 v5, 0, v5")
    bf16_round(a, 3, 3)
    bf16_round(a, 5, 5)
    a("v_add_f32 v5, %s, v5" % f32(1e-5))
    bf16_round(a, 5, 5)
    a("v_sqrt_f32 v5, v5")
    a("s_nop 0")
    bf16_round(a, 5, 5)
    a("v_rcp_f32 v6, v5")
    a("s_nop 0")
    a("v_mul_f32 v7, v3, v6")
    a("v_sub_f32 v7, 0, v7")
    a("v_and_b32 v3, 31, v1")
    a("s_lshl_b32 s%d, s%d, 5" % (S_T0, S_LW))
    a("v_add_u32 v3, s%d, v3" % S_T0)
    a("v_lshlrev_b32 v3, 3, v3")
    a("v_add_u32 v3, %d, v3" % c.LDS_STATS)
    a("ds_write_b64 v3, v[6:7]")
    a("s_lshl_b32 s%d, s%d, 6" % (S_T0, S_LW))
    a("v_add_u32 v3, s%d, v1" % S_T0)
    a("v_lshlrev_b32 v3, 2, v3")
    a("v_add_u32 v3, %d, v3" % c.LDS_CS)
    a("ds_write_b32 v3, v%d" % V_CS0)
    a("s_waitcnt lgkmcnt(0)")


def loader_loop(a, c, phases, stats):
    NIT = sum(p[0] for p in phases)
    NBUF, LPS = c.NBUF, c.LPS
    starts = []
    t = 0
    for p in phases:
        starts.append(t)
        t += p[0]

    def phase_of(s):
        k = 0
        for i, st in enumerate(starts):
            if s >= st:
                k = i
        return k

    def set_phase(k):
        a("s_mov_b32 s%d, 0" % S_KA)
        a("s_mov_b32 s%d, 0" % S_KB)
        kb = phases[k][5]
        if isinstance(kb, int):
            a("s_mov_b32 s%d, %d" % (S_KBSTEP, kb))
        else:
            a(kb)

    def issue(s):
        k = phase_of(s)
        if s == starts[k]:
            set_phase(k)
        p = phases[k]
        loader_issue(a, c, p[1], p[2], p[3], p[4])

    def do_stats():
        if stats is None:
            return
        if stats == 'always':
            stats_step(a, c)
        else:
            l = a.newlabel("nostat")
            a("s_cmp_eq_u32 s%d, 0" % stats)
            a("s_cbranch_scc1 %s" % l)
            stats_step(a, c)
            a.label(l)

    a("s_mov_b32 s%d, 0" % S_BUF)
    for s in range(NBUF):
        issue(s)
    if stats is not None:
        stats_setup(a, c)
    a("s_waitcnt vmcnt(%d)" % ((NBUF - 1) * LPS))
    a("s_barrier")
    it = 0
    while it < NIT:
        s = it + NBUF
        if s < NIT:
            k = phase_of(s)
            end_s = starts[k] + phases[k][0]
            n = end_s - s
            if s == starts[k]:
                set_phase(k)
            p = phases[k]
            lbl = a.newlabel("ld")
            if n > 1:
                a("s_mov_b32 s%d, %d" % (S_CNT, n))
                a.label(lbl)
            do_stats()
            a("s_waitcnt vmcnt(%d)" % ((NBUF - 2) * LPS))
            a("s_barrier")
            loader_issue(a, c, p[1], p[2], p[3], p[4])
            if n > 1:
                a("s_sub_u32 s%d, s%d, 1" % (S_CNT, S_CNT))
                a("s_cmp_lg_u32 s%d, 0" % S_CNT)
                a("s_cbranch_scc1 %s" % lbl)
            it += n
        else:
            do_stats()
            rem = max(0, min(NBUF - 2, NIT - 2 - it))
            a("s_waitcnt vmcnt(%d)" % (rem * LPS))
            a("s_barrier")
            it += 1


V_AA = 4
V_AB = 8
V_BA = 12
V_BB = 14
V_F = 16
V_ACC = 128


def compute_addr_setup(a, c):
    a("v_and_b32 v2, 31, v1")
    if not c.big:
        a("s_lshr_b32 s%d, s%d, 1" % (S_T0, S_WAVE))
        a("s_lshl_b32 s%d, s%d, 6" % (S_T0, S_T0))
        a("v_add_u32 v2, s%d, v2" % S_T0)
    a("v_lshlrev_b32 v2, 7, v2")
    a("v_bfe_u32 v3, v1, 1, 3")
    a("v_lshrrev_b32 v16, 5, v1")
    a("v_xor_b32 v3, v3, v16")
    for kk in range(4):
        a("v_xor_b32 v17, %d, v3" % (2 * kk))
        a("v_lshl_add_u32 v%d, v17, 4, v2" % (V_AB + kk))
        a("v_mov_b32 v%d, v%d" % (V_AA + kk, V_AB + kk))
    a("v_bfe_u32 v2, v1, 2, 2")
    a("v_and_b32 v3, 3, v1")
    a("v_bfe_u32 v17, v1, 4, 1")
    a("v_lshlrev_b32 v17, 1, v17")
    a("v_lshrrev_b32 v18, 1, v3")
    a("v_add_u32 v17, v17, v18")
    a("v_lshl_add_u32 v18, v16, 3, v2")
    a("v_and_b32 v3, 1, v3")
    a("v_lshlrev_b32 v3, 3, v3")
    if c.big:
        a("s_lshl_b32 s%d, s%d, 3" % (S_T0, S_WAVE))
        a("v_add_u32 v17, s%d, v17" % S_T0)
        a("v_lshl_add_u32 v3, v18, 9, v3")
        a("v_lshlrev_b32 v2, 2, v2")
        for j in range(2):
            a("v_add_u32 v19, %d, v17" % (4 * j))
            a("v_xor_b32 v19, v19, v2")
            a("v_lshl_add_u32 v19, v19, 4, v3")
            a("v_add_u32 v%d, 16384, v19" % (V_BB + j))
            a("v_mov_b32 v%d, v%d" % (V_BA + j, V_BB + j))
    else:
        a("s_and_b32 s%d, s%d, 1" % (S_T0, S_WAVE))
        a("s_lshl_b32 s%d, s%d, 2" % (S_T0, S_T0))
        a("v_add_u32 v17, s%d, v17" % S_T0)
        a("v_lshl_add_u32 v3, v18, 7, v3")
        a("v_lshrrev_b32 v2, 1, v2")
        a("v_lshlrev_b32 v2, 2, v2")
        a("v_xor_b32 v19, v17, v2")
        a("v_lshl_add_u32 v19, v19, 4, v3")
        a("v_add_u32 v%d, 16384, v19" % V_BB)
        a("v_mov_b32 v%d, v%d" % (V_BA, V_BB))
    a("s_mov_b32 s%d, 0" % S_BUF)


def frag_regs(c, fset, kq):
    per_kk = (c.MI + c.NI) * 4
    base = V_F + fset * per_kk * c.KPS + kq * per_kk
    A = [base + 4 * i for i in range(c.MI)]
    B = [base + 4 * c.MI + 4 * j for j in range(c.NI)]
    return A, B


def frag_reads(c, fset, sub):
    out = []
    for kq in range(c.KPS):
        kk = sub * c.KPS + kq
        A, B = frag_regs(c, fset, kq)
        for j in range(c.NI):
            for q in range(2):
                off = kk * 8192 + q * 2048 if c.big else kk * 2048 + q * 512
                out.append("ds_read_b64_tr_b16 v[%d:%d], v%d offset:%d" % (B[j] + 2 * q, B[j] + 2 * q + 1, V_BA + j, off))
        for i in range(c.MI):
            out.append("ds_read_b128 v[%d:%d], v%d offset:%d" % (A[i], A[i] + 3, V_AA + kk, 4096 * i))
    return out


def mfma_list(c, fset, acc, swapped):
    out = []
    for kq in range(c.KPS):
        A, B = frag_regs(c, fset, kq)
        for i in range(c.MI):
            for j in range(c.NI):
                d = acc + 16 * (i * c.NI + j)
                x, w = "v[%d:%d]" % (A[i], A[i] + 3), "v[%d:%d]" % (B[j], B[j] + 3)
                if swapped:
                    x, w = w, x
                out.append("v_mfma_f32_32x32x16_bf16 v[%d:%d], %s, %s, v[%d:%d]" % (d, d + 15, x, w, d, d + 15))
    return out


def addr_update(c):
    out = []
    out.append("s_add_u32 s%d, s%d, %d" % (S_BUF, S_BUF, c.STAGE))
    out.append("s_cmp_eq_u32 s%d, %d" % (S_BUF, c.STAGE * c.NBUF))
    out.append("s_cselect_b32 s%d, 0, s%d" % (S_BUF, S_BUF))
    for kk in range(4):
        out.append("v_add_u32 v%d, s%d, v%d" % (V_AA + kk, S_BUF, V_AB + kk))
    for j in range(c.NI):
        out.append("v_add_u32 v%d, s%d, v%d" % (V_BA + j, S_BUF, V_BB + j))
    return out


def emit_interleaved(a, mfmas, others, per_gap, lead=0):
    oi = 0
    for n, m in enumerate(mfmas):
        a(m)
        if n >= lead:
            for _ in range(per_gap):
                if oi < len(others):
                    a(others[oi])
                    oi += 1
    while oi < len(others):
        a(others[oi])
        oi += 1


def compute_iter(a, c, acc, swapped, fs0):
    fs = fs0
    for sub in range(c.NSUB):
        last = sub == c.NSUB - 1
        m = mfma_list(c, fs, acc, swapped)
        a("s_waitcnt lgkmcnt(0)")
        if last:
            if c.NSUB == 1:
                upd = addr_update(c)
                for u in upd:
                    a(u)
                a("s_barrier")
                emit_interleaved(a, m, frag_reads(c, fs ^ 1, 0), 3)
            else:
                a(m[0])
                a("s_barrier")
                emit_interleaved(a, m[1:], frag_reads(c, fs ^ 1, 0), 3)
        else:
            others = frag_reads(c, fs ^ 1, sub + 1)
            if sub == c.NSUB - 2:
                others = others + addr_update(c)
            emit_interleaved(a, m, others, 2)
        fs ^= 1
    return fs


def compute_loop(a, c, nit, acc, swapped):
    unroll = 1 if c.NSUB % 2 == 0 else 2
    assert nit % unroll == 0
    lbl = a.newlabel("cl")
    a("s_mov_b32 s%d, %d" % (S_CNT, nit // unroll))
    a.label(lbl)
    fs = 0
    for u in range(unroll):
        fs = compute_iter(a, c, acc, swapped, fs)
    assert fs == 0
    a("s_sub_u32 s%d, s%d, 1" % (S_CNT, S_CNT))
    a("s_cmp_lg_u32 s%d, 0" % S_CNT)
    a("s_cbranch_scc1 %s" % lbl)


def zero_acc(a, acc, n):
    for r in range(acc, acc + n):
        a("v_mov_b32 v%d, 0" % r)


def compute_start(a, c):
    a("s_barrier")
    for r in frag_reads(c, 0, 0):
        a(r)


def pack_swap_store(a, src, tmp, vaddr, srd, imm, flags=""):
    for p in range(8):
        a("v_cvt_pk_bf16_f32 v%d, v%d, v%d" % (tmp + p, src + 2 * p, src + 2 * p + 1))
    a("s_nop 1")
    for gp in range(2):
        b = tmp + 4 * gp
        a("v_permlane32_swap_b32 v%d, v%d" % (b, b + 2))
        a("v_permlane32_swap_b32 v%d, v%d" % (b + 1, b + 3))
    for gp in range(2):
        b = tmp + 4 * gp
        a("buffer_store_dwordx4 v[%d:%d], v%d, s[%d:%d], 0 offen offset:%d%s" % (b, b + 3, vaddr, srd, srd + 3, imm + 32 * gp, flags))


def phi_inplace(a, regs, tmp, vconst):
    n = len(regs)
    for p in range(n):
        a("v_pk_mul_f32 v[%d:%d], v[%d:%d], v[%d:%d] op_sel:[0,0] op_sel_hi:[1,0]" % (tmp + 2 * p, tmp + 2 * p + 1, regs[p], regs[p] + 1, vconst, vconst + 1))
    for p in range(n):
        a("v_exp_f32 v%d, v%d clamp" % (tmp + 2 * p, tmp + 2 * p))
        a("v_exp_f32 v%d, v%d clamp" % (tmp + 2 * p + 1, tmp + 2 * p + 1))
    for p in range(n):
        a("v_max_f32 v%d, 0, v%d" % (regs[p], regs[p]))
        a("v_max_f32 v%d, 0, v%d" % (regs[p] + 1, regs[p] + 1))
    for p in range(n):
        a("v_pk_add_f32 v[%d:%d], v[%d:%d], v[%d:%d] op_sel:[0,1] op_sel_hi:[1,1]" % (tmp + 2 * p, tmp + 2 * p + 1, tmp + 2 * p, tmp + 2 * p + 1, vconst, vconst + 1))
    for p in range(n):
        a("v_pk_add_f32 v[%d:%d], v[%d:%d], v[%d:%d]" % (regs[p], regs[p] + 1, regs[p], regs[p] + 1, tmp + 2 * p, tmp + 2 * p + 1))


def ln_gelu_inplace(a, regs, tmp, vstat, vcs, vconst):
    n = len(regs)
    P = lambda r: "v[%d:%d]" % (r, r + 1)
    for p in range(n):
        a("v_pk_mul_f32 %s, %s, %s op_sel:[0,0] op_sel_hi:[1,0]" % (P(regs[p]), P(regs[p]), P(vstat)))
    for p in range(n):
        a("v_pk_fma_f32 %s, %s, %s, %s op_sel:[0,1,0] op_sel_hi:[1,1,1]" % (P(regs[p]), P(vcs + 2 * p), P(vstat), P(regs[p])))
    for p in range(n):
        a("v_pk_mul_f32 %s, %s, %s" % (P(tmp + 2 * p), P(regs[p]), P(regs[p])))
    for p in range(n):
        a("v_pk_fma_f32 %s, %s, %s, %s op_sel:[0,0,1] op_sel_hi:[1,0,1]" % (P(tmp + 2 * p), P(tmp + 2 * p), P(vconst), P(vconst)))
    for p in range(n):
        a("v_pk_mul_f32 %s, %s, %s" % (P(tmp + 2 * p), P(tmp + 2 * p), P(regs[p])))
    for p in range(n):
        a("v_exp_f32 v%d, v%d" % (tmp + 2 * p, tmp + 2 * p))
        a("v_exp_f32 v%d, v%d" % (tmp + 2 * p + 1, tmp + 2 * p + 1))
    for p in range(n):
        a("v_pk_add_f32 %s, %s, 1.0 op_sel_hi:[1,0]" % (P(tmp + 2 * p), P(tmp + 2 * p)))
    for p in range(n):
        a("v_rcp_f32 v%d, v%d" % (tmp + 2 * p, tmp + 2 * p))
        a("v_rcp_f32 v%d, v%d" % (tmp + 2 * p + 1, tmp + 2 * p + 1))
    for p in range(n):
        a("v_pk_mul_f32 %s, %s, %s" % (P(regs[p]), P(regs[p]), P(tmp + 2 * p)))


def epi_store_addr(a, c, ld, vdst, n_i, shift_sgpr=None):
    a("v_and_b32 v2, 31, v1")
    a("v_add_u32 v2, s%d, v2" % S_ROW0)
    if shift_sgpr is not None:
        a("v_add_u32 v2, s%d, v2" % shift_sgpr)
    if c.big:
        a("s_lshl_b32 s%d, s%d, 6" % (S_T0, S_WAVE))
    else:
        a("s_lshr_b32 s%d, s%d, 1" % (S_T1, S_WAVE))
        a("s_lshl_b32 s%d, s%d, 6" % (S_T1, S_T1))
        a("v_add_u32 v2, s%d, v2" % S_T1)
        a("s_and_b32 s%d, s%d, 1" % (S_T0, S_WAVE))
        a("s_lshl_b32 s%d, s%d, 5" % (S_T0, S_T0))
    a("s_add_u32 s%d, s%d, s%d" % (S_T0, S_T0, S_COL0))
    a("s_lshl_b32 s%d, s%d, 1" % (S_T0, S_T0))
    a("s_mov_b32 s%d, %d" % (S_T1, ld))
    a("v_mul_lo_u32 v2, v2, s%d" % S_T1)
    a("v_lshrrev_b32 v3, 5, v1")
    a("v_lshl_add_u32 v2, v3, 4, v2")
    a("v_add_u32 v%d, s%d, v2" % (vdst, S_T0))
    for i in range(1, n_i):
        a("v_add_u32 v%d, 0x%x, v%d" % (vdst + i, 32 * ld * i, vdst))


def epi_ln_gelu(a, c, srd, ld, shift_sgpr):
    VST, VSTAT, VCS, VC, VT, VP = 4, 8, 16, 48, 64, 96
    epi_store_addr(a, c, ld, VST, 4, shift_sgpr)
    a("v_and_b32 v2, 31, v1")
    a("v_lshlrev_b32 v2, 3, v2")
    a("v_add_u32 v2, %d, v2" % c.LDS_STATS)
    for i in range(4):
        a("ds_read_b64 v[%d:%d], v2 offset:%d" % (VSTAT + 2 * i, VSTAT + 2 * i + 1, 256 * i))
    a("v_lshrrev_b32 v3, 5, v1")
    a("v_lshlrev_b32 v3, 4, v3")
    a("s_lshl_b32 s%d, s%d, 8" % (S_T0, S_WAVE))
    a("v_add_u32 v3, s%d, v3" % S_T0)
    a("v_add_u32 v3, %d, v3" % c.LDS_CS)
    for j in range(2):
        for g in range(4):
            a("ds_read_b128 v[%d:%d], v3 offset:%d" % (VCS + 16 * j + 4 * g, VCS + 16 * j + 4 * g + 3, 128 * j + 32 * g))
    a("v_mov_b32 v%d, %s" % (VC, f32(GC1)))
    a("v_mov_b32 v%d, %s" % (VC + 1, f32(GC0)))
    a("s_waitcnt lgkmcnt(0)")
    n = 0
    for i in range(4):
        for j in range(2):
            acc = V_ACC + 16 * (i * 2 + j)
            ln_gelu_inplace(a, [acc + 2 * p for p in range(8)], VT, VSTAT + 2 * i, VCS + 16 * j, VC)
            pack_swap_store(a, acc, VP + 8 * (n & 1), VST + i, srd, 64 * j)
            n += 1


def epi_phi_q(a, c, srd, ld):
    VST, VC, VT, VP = 4, 48, 64, 96
    epi_store_addr(a, c, ld, VST, 4)
    a("v_mov_b32 v%d, %s" % (VC, f32(LOG2E)))
    a("v_mov_b32 v%d, %s" % (VC + 1, f32(1e-6)))
    n = 0
    for i in range(4):
        for j in range(2):
            acc = V_ACC + 16 * (i * 2 + j)
            phi_inplace(a, [acc + 2 * p for p in range(8)], VT, VC)
            pack_swap_store(a, acc, VP + 8 * (n & 1), VST + i, srd, 64 * j)
            n += 1


def epi_kv(a, c):
    VC, VT, VPK, VV, VONE, VKV, VZ = 48, 64, 16, 24, 32, 80, 96
    a("v_mov_b32 v%d, %s" % (VC, f32(LOG2E)))
    a("v_mov_b32 v%d, %s" % (VC + 1, f32(1e-6)))
    for r in range(4):
        a("v_mov_b32 v%d, 0x3f803f80" % (VONE + r))
    zero_acc(a, VKV, 32)
    for i in range(4):
        kacc = V_ACC + 32 * i
        vacc = kacc + 16
        phi_inplace(a, [kacc + 2 * p for p in range(8)], VT, VC)
        for p in range(8):
            a("v_cvt_pk_bf16_f32 v%d, v%d, v%d" % (VPK + p, kacc + 2 * p, kacc + 2 * p + 1))
        for p in range(8):
            a("v_cvt_pk_bf16_f32 v%d, v%d, v%d" % (VV + p, vacc + 2 * p, vacc + 2 * p + 1))
        a("s_nop 1")
        for m in range(2):
            a("v_mfma_f32_32x32x16_bf16 v[%d:%d], v[%d:%d], v[%d:%d], v[%d:%d]" % (VKV, VKV + 15, VPK + 4 * m, VPK + 4 * m + 3, VV + 4 * m, VV + 4 * m + 3, VKV, VKV + 15))
            a("v_mfma_f32_32x32x16_bf16 v[%d:%d], v[%d:%d], v[%d:%d], v[%d:%d]" % (VZ, VZ + 15, VPK + 4 * m, VPK + 4 * m + 3, VONE, VONE + 3, VZ, VZ + 15))
    a("s_sub_u32 s%d, s%d, 4" % (S_T0, S_CT))
    a("s_lshl_b32 s%d, s%d, 2" % (S_T0, S_T0))
    a("s_add_u32 s%d, s%d, s%d" % (S_T0, S_T0, S_WAVE))
    a("s_lshl_b32 s%d, s%d, 5" % (S_T1, S_RB))
    a("s_add_u32 s%d, s%d, s%d" % (S_T0, S_T0, S_T1))
    a("s_lshl_b32 s%d, s%d, 12" % (S_T1, S_T0))
    a("s_lshl_b32 s%d, s%d, 7" % (S_T2, S_T0))
    a("v_and_b32 v2, 31, v1")
    a("v_lshrrev_b32 v3, 5, v1")
    a("v_lshlrev_b32 v3, 4, v3")
    a("v_lshl_add_u32 v4, v2, 7, v3")
    a("v_add_u32 v4, s%d, v4" % S_T1)
    a("v_add_u32 v5, s%d, v3" % S_T2)
    a("v_cmp_eq_u32 vcc, 0, v2")
    a("s_nop 15")
    for g in range(4):
        a("buffer_store_dwordx4 v[%d:%d], v4, s[%d:%d], 0 offen offset:%d" % (VKV + 4 * g, VKV + 4 * g + 3, SRD_D, SRD_D + 3, 32 * g))
    a("s_and_saveexec_b64 s[%d:%d], vcc" % (S_EXEC, S_EXEC + 1))
    for g in range(4):
        a("buffer_store_dwordx4 v[%d:%d], v5, s[%d:%d], 0 offen offset:%d" % (VZ + 4 * g, VZ + 4 * g + 3, SRD_E, SRD_E + 3, 32 * g))
    a("s_mov_b64 exec, s[%d:%d]" % (S_EXEC, S_EXEC + 1))


def gen_k1(a):
    name = "k1_kernel"
    c = Cfg(256, 3)
    kernel_header(a, name, 256)
    a("s_and_b32 s%d, s%d, 1" % (S_T0, S_XCD))
    a("s_lshl_b32 s%d, s%d, 3" % (S_T0, S_T0))
    a("s_and_b32 s%d, s%d, 7" % (S_T1, S_J))
    a("s_add_u32 s%d, s%d, s%d" % (S_RB, S_T0, S_T1))
    a("s_lshr_b32 s%d, s%d, 1" % (S_T0, S_XCD))
    a("s_lshl_b32 s%d, s%d, 2" % (S_T0, S_T0))
    a("s_lshr_b32 s%d, s%d, 3" % (S_T1, S_J))
    a("s_add_u32 s%d, s%d, s%d" % (S_CT, S_T0, S_T1))
    a("s_lshl_b32 s%d, s%d, 7" % (S_ROW0, S_RB))
    a("s_waitcnt lgkmcnt(0)")
    make_srd(a, SRD_A, P_X, 0, S * D * 2)
    make_srd(a, SRD_D, P_WS, WS_KVP, 2 * MB)
    make_srd(a, SRD_E, P_WS, WS_ZP, 65536)
    lq, lkv, lw1, ldone = "L_k1_tq", "L_k1_tkv", "L_k1_tw1", "L_k1_tdone"
    a("s_cmp_lt_u32 s%d, 4" % S_CT)
    a("s_cbranch_scc1 %s" % lq)
    a("s_cmp_lt_u32 s%d, 12" % S_CT)
    a("s_cbranch_scc1 %s" % lkv)
    a.label(lw1)
    a("s_mov_b32 s%d, 2" % S_TYPE)
    make_srd(a, SRD_B, P_W1, 0, D * D * 2)
    make_srd(a, SRD_C, P_WS, WS_HS, S * D * 2)
    a("s_mov_b32 s%d, 2048" % S_LDB)
    a("s_sub_u32 s%d, s%d, 12" % (S_T0, S_CT))
    a("s_lshl_b32 s%d, s%d, 8" % (S_COL0, S_T0))
    a("s_mov_b32 s%d, 32" % S_SA)
    a("s_mov_b32 s%d, 64" % S_SB)
    a("s_lshr_b32 s%d, s%d, 1" % (S_T1, S_T0))
    a("s_add_u32 s%d, s%d, 1" % (S_T1, S_T1))
    a("s_sub_u32 s%d, 0, s%d" % (S_T2, S_T1))
    a("s_and_b32 s%d, s%d, 1" % (S_T0, S_T0))
    a("s_cmp_eq_u32 s%d, 0" % S_T0)
    a("s_cselect_b32 s%d, s%d, s%d" % (S_SHIFT, S_T1, S_T2))
    a("s_branch %s" % ldone)
    a.label(lq)
    a("s_mov_b32 s%d, 0" % S_TYPE)
    make_srd(a, SRD_B, P_WQKV, 0, D * 3 * D * 2)
    make_srd(a, SRD_C, P_WS, WS_PQ, S * D * 2)
    a("s_mov_b32 s%d, 6144" % S_LDB)
    a("s_lshl_b32 s%d, s%d, 8" % (S_COL0, S_CT))
    a("s_mov_b32 s%d, 32" % S_SA)
    a("s_mov_b32 s%d, 64" % S_SB)
    a("s_mov_b32 s%d, 0" % S_SHIFT)
    a("s_branch %s" % ldone)
    a.label(lkv)
    a("s_mov_b32 s%d, 1" % S_TYPE)
    make_srd(a, SRD_B, P_WQKV, 0, D * 3 * D * 2)
    make_srd(a, SRD_C, P_WS, WS_PQ, S * D * 2)
    a("s_mov_b32 s%d, 6144" % S_LDB)
    a("s_sub_u32 s%d, s%d, 4" % (S_T0, S_CT))
    a("s_lshl_b32 s%d, s%d, 7" % (S_T0, S_T0))
    a("s_add_u32 s%d, s%d, 1024" % (S_COL0, S_T0))
    a("s_mov_b32 s%d, 1024" % S_SA)
    a("s_mov_b32 s%d, 32" % S_SB)
    a("s_mov_b32 s%d, 0" % S_SHIFT)
    a.label(ldone)
    a("s_cmp_ge_u32 s%d, 4" % S_WAVE)
    a("s_cbranch_scc1 L_k1_loader")
    compute_addr_setup(a, c)
    zero_acc(a, V_ACC, 128)
    compute_start(a, c)
    a("s_cmp_eq_u32 s%d, 1" % S_TYPE)
    a("s_cbranch_scc1 L_k1_kvloop")
    compute_loop(a, c, 16, V_ACC, True)
    a("s_waitcnt lgkmcnt(0)")
    a("s_barrier")
    a("s_nop 15")
    a("s_cmp_eq_u32 s%d, 0" % S_TYPE)
    a("s_cbranch_scc1 L_k1_epq")
    epi_ln_gelu(a, c, SRD_C, 2048, S_SHIFT)
    a("s_branch L_%s_end" % name)
    a.label("L_k1_epq")
    epi_phi_q(a, c, SRD_C, 2048)
    a("s_branch L_%s_end" % name)
    a.label("L_k1_kvloop")
    compute_loop(a, c, 16, V_ACC, False)
    a("s_waitcnt lgkmcnt(0)")
    a("s_barrier")
    a("s_nop 15")
    epi_kv(a, c)
    a("s_branch L_%s_end" % name)
    a.label("L_k1_loader")
    a("s_sub_u32 s%d, s%d, 4" % (S_LW, S_WAVE))
    loader_a_offsets(a, V_LA, 2048)
    loader_b_offsets_big(a, V_LB)
    a("s_cmp_eq_u32 s%d, 2" % S_TYPE)
    a("s_cselect_b32 s%d, 1, 0" % S_C0)
    loader_loop(a, c, [(16, SRD_A, SRD_B, V_LA, V_LB, "s_lshl_b32 s%d, s%d, 6" % (S_KBSTEP, S_LDB))], S_C0)
    a("s_cmp_eq_u32 s%d, 0" % S_C0)
    a("s_cbranch_scc1 L_k1_nofin")
    stats_finish(a, c)
    a("s_cmp_lg_u32 s%d, 0" % S_LW)
    a("s_cbranch_scc1 L_k1_nofin")
    a("s_cmp_gt_i32 s%d, 0" % S_SHIFT)
    a("s_cselect_b32 s%d, 0, 15" % S_T0)
    a("s_cmp_lg_u32 s%d, s%d" % (S_T0, S_RB))
    a("s_cbranch_scc1 L_k1_nofin")
    a("s_cmp_gt_i32 s%d, 0" % S_SHIFT)
    a("s_cselect_b32 s%d, 0, 2046" % S_T0)
    a("s_cselect_b32 s%d, s%d, 0" % (S_T1, S_SHIFT))
    a("v_lshrrev_b32 v3, 5, v1")
    a("v_add_u32 v3, s%d, v3" % S_T0)
    a("v_and_b32 v4, 31, v1")
    a("v_lshlrev_b32 v4, 4, v4")
    a("v_lshl_add_u32 v4, v3, 11, v4")
    a("s_lshl_b32 s%d, s%d, 1" % (S_T2, S_COL0))
    a("v_add_u32 v4, s%d, v4" % S_T2)
    a("s_add_u32 s%d, s%d, 2048" % (S_T2, S_SHIFT))
    a("s_cmp_gt_i32 s%d, 0" % S_SHIFT)
    a("s_cselect_b32 s%d, 0, s%d" % (S_T2, S_T2))
    a("s_cselect_b32 s%d, s%d, 2048" % (S_T1, S_SHIFT))
    a("v_cmp_le_u32 vcc, s%d, v3" % S_T2)
    a("v_cmp_gt_u32 s[%d:%d], s%d, v3" % (S_C0 + 2, S_C0 + 3, S_T1))
    a("v_mov_b32 v8, 0")
    a("v_mov_b32 v9, 0")
    a("v_mov_b32 v10, 0")
    a("v_mov_b32 v11, 0")
    a("s_and_b64 vcc, vcc, s[%d:%d]" % (S_C0 + 2, S_C0 + 3))
    a("s_and_saveexec_b64 s[%d:%d], vcc" % (S_EXEC, S_EXEC + 1))
    a("buffer_store_dwordx4 v[8:11], v4, s[%d:%d], 0 offen" % (SRD_C, SRD_C + 3))
    a("s_mov_b64 exec, s[%d:%d]" % (S_EXEC, S_EXEC + 1))
    a.label("L_k1_nofin")
    a("s_barrier")
    kernel_footer(a, name)
    descriptor(a, name)
    return name, 256, c.LDS_TOTAL


def small_tile_decode(a):
    a("s_and_b32 s%d, s%d, 3" % (S_T0, S_XCD))
    a("s_lshl_b32 s%d, s%d, 2" % (S_T0, S_T0))
    a("s_and_b32 s%d, s%d, 3" % (S_T1, S_J))
    a("s_add_u32 s%d, s%d, s%d" % (S_RB, S_T0, S_T1))
    a("s_lshr_b32 s%d, s%d, 2" % (S_T0, S_XCD))
    a("s_lshl_b32 s%d, s%d, 3" % (S_T0, S_T0))
    a("s_lshr_b32 s%d, s%d, 2" % (S_T1, S_J))
    a("s_add_u32 s%d, s%d, s%d" % (S_CT, S_T0, S_T1))
    a("s_lshl_b32 s%d, s%d, 7" % (S_ROW0, S_RB))
    a("s_lshl_b32 s%d, s%d, 6" % (S_COL0, S_CT))


def load_resid(a, c, dst, vaddr, srd):
    for g in range(4):
        a("buffer_load_dwordx2 v[%d:%d], v%d, s[%d:%d], 0 offen offset:%d" % (dst + 2 * g, dst + 2 * g + 1, vaddr, srd, srd + 3, 16 * g))


def unpack_bf16(a, dst, src, n):
    for p in range(n):
        a("v_lshlrev_b32 v%d, 16, v%d" % (dst + 2 * p, src + p))
        a("v_and_b32 v%d, 0xffff0000, v%d" % (dst + 2 * p + 1, src + p))


def round_regs_bf16(a, regs, n, tmp):
    for p in range(n // 2):
        a("v_cvt_pk_bf16_f32 v%d, v%d, v%d" % (tmp + p, regs + 2 * p, regs + 2 * p + 1))
    unpack_bf16(a, regs, tmp, n // 2)


def gen_k2(a):
    name = "k2_kernel"
    c = Cfg(64, 6)
    kernel_header(a, name, 256)
    small_tile_decode(a)
    a("s_waitcnt lgkmcnt(0)")
    make_srd(a, SRD_A, P_WS, WS_HS, S * D * 2)
    make_srd(a, SRD_B, P_W2, 0, D * D * 2)
    make_srd(a, SRD_C, P_WS, WS_X1, S * D * 2)
    make_srd(a, SRD_D, P_X, 0, S * D * 2)
    a("s_cmp_ge_u32 s%d, 4" % S_WAVE)
    a("s_cbranch_scc1 L_k2_loader")
    VST, VLD, VX = 200, 204, 208
    epi_store_addr(a, c, 2048, VST, 2)
    a("v_lshrrev_b32 v3, 5, v1")
    a("v_lshlrev_b32 v3, 3, v3")
    for i in range(2):
        a("v_sub_u32 v%d, v%d, v3" % (VLD + i, VST + i))
    for i in range(2):
        load_resid(a, c, VX + 8 * i, VLD + i, SRD_D)
    compute_addr_setup(a, c)
    zero_acc(a, V_ACC, 32)
    compute_start(a, c)
    compute_loop(a, c, 16, V_ACC, True)
    a("s_waitcnt vmcnt(0) lgkmcnt(0)")
    a("s_nop 15")
    for i in range(2):
        acc = V_ACC + 16 * i
        round_regs_bf16(a, acc, 16, 16)
        unpack_bf16(a, 32, VX + 8 * i, 8)
        for p in range(8):
            a("v_pk_add_f32 v[%d:%d], v[%d:%d], v[%d:%d]" % (acc + 2 * p, acc + 2 * p + 1, acc + 2 * p, acc + 2 * p + 1, 32 + 2 * p, 33 + 2 * p))
        pack_swap_store(a, acc, 48 + 8 * i, VST + i, SRD_C, 0)
    a("s_branch L_%s_end" % name)
    a.label("L_k2_loader")
    a("s_sub_u32 s%d, s%d, 4" % (S_LW, S_WAVE))
    loader_a_offsets(a, V_LA, 2048)
    loader_b_offsets_small(a, V_LB, 2048)
    loader_loop(a, c, [(16, SRD_A, SRD_B, V_LA, V_LB, 64 * 2048)], None)
    kernel_footer(a, name)
    descriptor(a, name)
    return name, 256, c.LDS_TOTAL


def gen_k3(a):
    name = "k3_kernel"
    c = Cfg(256, 3)
    kernel_header(a, name, 256)
    a("s_cmp_ge_u32 s%d, 28" % S_J)
    a("s_cbranch_scc1 L_k3_owg")
    a("s_and_b32 s%d, s%d, 3" % (S_T0, S_XCD))
    a("s_lshl_b32 s%d, s%d, 2" % (S_T0, S_T0))
    a("s_and_b32 s%d, s%d, 3" % (S_T1, S_J))
    a("s_add_u32 s%d, s%d, s%d" % (S_RB, S_T0, S_T1))
    a("s_lshr_b32 s%d, s%d, 2" % (S_T0, S_XCD))
    a("s_mul_i32 s%d, s%d, 7" % (S_T0, S_T0))
    a("s_lshr_b32 s%d, s%d, 2" % (S_T1, S_J))
    a("s_add_u32 s%d, s%d, s%d" % (S_CT, S_T0, S_T1))
    a("s_lshl_b32 s%d, s%d, 7" % (S_ROW0, S_RB))
    a("s_lshl_b32 s%d, s%d, 8" % (S_COL0, S_CT))
    a("s_waitcnt lgkmcnt(0)")
    make_srd(a, SRD_A, P_WS, WS_X1, S * D * 2)
    make_srd(a, SRD_B, P_W3, 0, D * F * 2)
    make_srd(a, SRD_C, P_WS, WS_ACT, S * F * 2)
    a("s_mov_b32 s%d, %d" % (S_LDB, F * 2))
    a("s_mov_b32 s%d, 32" % S_SA)
    a("s_mov_b32 s%d, 64" % S_SB)
    a("s_cmp_ge_u32 s%d, 4" % S_WAVE)
    a("s_cbranch_scc1 L_k3_loader")
    compute_addr_setup(a, c)
    zero_acc(a, V_ACC, 128)
    compute_start(a, c)
    compute_loop(a, c, 16, V_ACC, True)
    a("s_waitcnt lgkmcnt(0)")
    a("s_barrier")
    a("s_nop 15")
    epi_ln_gelu(a, c, SRD_C, F * 2, None)
    a("s_branch L_%s_end" % name)
    a.label("L_k3_loader")
    a("s_sub_u32 s%d, s%d, 4" % (S_LW, S_WAVE))
    loader_a_offsets(a, V_LA, 2048)
    loader_b_offsets_big(a, V_LB)
    loader_loop(a, c, [(16, SRD_A, SRD_B, V_LA, V_LB, 64 * F * 2)], 'always')
    stats_finish(a, c)
    a("s_barrier")
    a("s_branch L_%s_end" % name)
    a.label("L_k3_owg")
    gen_owg(a)
    kernel_footer(a, name)
    descriptor(a, name)
    return name, 256, c.LDS_TOTAL


def gen_owg(a):
    S_HEAD = S_CT
    a("s_sub_u32 s%d, s%d, 28" % (S_T0, S_J))
    a("s_lshl_b32 s%d, s%d, 2" % (S_T1, S_XCD))
    a("s_add_u32 s%d, s%d, s%d" % (S_HEAD, S_T0, S_T1))
    a("s_waitcnt lgkmcnt(0)")
    make_srd(a, SRD_A, P_WS, WS_KVP, 2 * MB)
    make_srd(a, SRD_B, P_WS, WS_ZP, 65536)
    make_srd(a, SRD_C, P_WS, WS_PQ, S * D * 2)
    make_srd(a, SRD_D, P_WS, WS_O, S * D * 2)
    make_srd(a, SRD_E, P_X, 0, S * D * 2)
    make_srd(a, SRD_F, P_GATE, 0, 2048)
    make_srd(a, SRD_A2, P_WS, WS_G, 8192)
    a("v_and_b32 v2, 31, v1")
    a("v_lshrrev_b32 v3, 5, v1")
    a("v_lshlrev_b32 v3, 5, v3")
    a("v_lshl_add_u32 v4, v2, 7, v3")
    a("s_lshl_b32 s%d, s%d, 12" % (S_T0, S_HEAD))
    a("v_add_u32 v4, s%d, v4" % S_T0)
    a("s_lshl_b32 s%d, s%d, 7" % (S_T0, S_HEAD))
    a("v_add_u32 v5, s%d, v3" % S_T0)
    KV, Z, T = 16, 32, 64
    zero_acc(a, KV, 32)
    for half in range(2):
        for rr in range(8):
            rb = half * 8 + rr
            a("s_mov_b32 s%d, 0x%x" % (S_T0, rb * 32 * 4096))
            a("s_mov_b32 s%d, 0x%x" % (S_T1, rb * 32 * 128))
            b = T + 16 * rr
            for m in range(2):
                for q in range(2):
                    a("buffer_load_dwordx4 v[%d:%d], v4, s[%d:%d], s%d offen offset:%d" % (b + 8 * m + 4 * q, b + 8 * m + 4 * q + 3, SRD_A, SRD_A + 3, S_T0, 64 * m + 16 * q))
        a("s_waitcnt vmcnt(0)")
        for rr in range(8):
            b = T + 16 * rr
            for p in range(8):
                a("v_pk_add_f32 v[%d:%d], v[%d:%d], v[%d:%d]" % (KV + 2 * p, KV + 2 * p + 1, KV + 2 * p, KV + 2 * p + 1, b + 2 * p, b + 2 * p + 1))
    for half in range(2):
        for rr in range(8):
            rb = half * 8 + rr
            a("s_mov_b32 s%d, 0x%x" % (S_T1, rb * 32 * 128))
            b = T + 16 * rr
            for m in range(2):
                for q in range(2):
                    a("buffer_load_dwordx4 v[%d:%d], v5, s[%d:%d], s%d offen offset:%d" % (b + 8 * m + 4 * q, b + 8 * m + 4 * q + 3, SRD_B, SRD_B + 3, S_T1, 64 * m + 16 * q))
        a("s_waitcnt vmcnt(0)")
        for rr in range(8):
            b = T + 16 * rr
            for p in range(8):
                a("v_pk_add_f32 v[%d:%d], v[%d:%d], v[%d:%d]" % (Z + 2 * p, Z + 2 * p + 1, Z + 2 * p, Z + 2 * p + 1, b + 2 * p, b + 2 * p + 1))
    KVB, ZB = 48, 56
    for p in range(8):
        a("v_cvt_pk_bf16_f32 v%d, v%d, v%d" % (KVB + p, KV + 2 * p, KV + 2 * p + 1))
    for p in range(8):
        a("v_cvt_pk_bf16_f32 v%d, v%d, v%d" % (ZB + p, Z + 2 * p, Z + 2 * p + 1))
    a("s_lshl_b32 s%d, s%d, 8" % (S_T0, S_WAVE))
    a("v_add_u32 v6, s%d, v2" % S_T0)
    a("v_lshlrev_b32 v6, 11, v6")
    a("v_lshrrev_b32 v3, 5, v1")
    a("v_lshl_add_u32 v6, v3, 4, v6")
    a("s_lshl_b32 s%d, s%d, 6" % (S_T0, S_HEAD))
    a("v_add_u32 v6, s%d, v6" % S_T0)
    PQ = 64
    for t in range(8):
        a("s_mov_b32 s%d, 0x%x" % (S_T0, t * 32 * 2048))
        for m in range(2):
            a("buffer_load_dwordx4 v[%d:%d], v6, s[%d:%d], s%d offen offset:%d" % (PQ + 8 * t + 4 * m, PQ + 8 * t + 4 * m + 3, SRD_C, SRD_C + 3, S_T0, 32 * m))
    a("s_waitcnt vmcnt(0)")
    NUM, DEN, TP = 128, 144, 160
    for t in range(8):
        nb = NUM + 64 * (t & 1)
        db = nb + 16
        tp = nb + 32
        for m in range(2):
            cin_n = "0" if m == 0 else "v[%d:%d]" % (nb, nb + 15)
            cin_d = "0" if m == 0 else "v[%d:%d]" % (db, db + 15)
            a("v_mfma_f32_32x32x16_bf16 v[%d:%d], v[%d:%d], v[%d:%d], %s" % (nb, nb + 15, KVB + 4 * m, KVB + 4 * m + 3, PQ + 8 * t + 4 * m, PQ + 8 * t + 4 * m + 3, cin_n))
            a("v_mfma_f32_32x32x16_bf16 v[%d:%d], v[%d:%d], v[%d:%d], %s" % (db, db + 15, ZB + 4 * m, ZB + 4 * m + 3, PQ + 8 * t + 4 * m, PQ + 8 * t + 4 * m + 3, cin_d))
        a("s_nop 15")
        a("s_nop 3")
        bf16_round(a, db, db)
        a("v_add_f32 v%d, %s, v%d" % (db, f32(1e-6), db))
        bf16_round(a, db, db)
        a("v_rcp_f32 v%d, v%d" % (db, db))
        round_regs_bf16(a, nb, 16, tp)
        for p in range(8):
            a("v_pk_mul_f32 v[%d:%d], v[%d:%d], v[%d:%d] op_sel:[0,0] op_sel_hi:[1,0]" % (nb + 2 * p, nb + 2 * p + 1, nb + 2 * p, nb + 2 * p + 1, db, db + 1))
        a("v_add_u32 v7, 0x%x, v6" % (t * 32 * 2048))
        pack_swap_store(a, nb, tp + 8, 7, SRD_D, 0)
    a("v_lshlrev_b32 v8, 4, v1")
    a("buffer_load_dwordx4 v[16:19], v8, s[%d:%d], 0 offen" % (SRD_F, SRD_F + 3))
    a("buffer_load_dwordx4 v[20:23], v8, s[%d:%d], 0 offen offset:1024" % (SRD_F, SRD_F + 3))
    a("s_lshl_b32 s%d, s%d, 6" % (S_T0, S_HEAD))
    a("s_lshl_b32 s%d, s%d, 3" % (S_T1, S_WAVE))
    a("s_add_u32 s%d, s%d, s%d" % (S_T2, S_T0, S_T1))
    a("s_lshl_b32 s%d, s%d, 11" % (S_T0, S_T2))
    for t in range(8):
        a("buffer_load_dwordx4 v[%d:%d], v8, s[%d:%d], s%d offen" % (64 + 8 * t, 67 + 8 * t, SRD_E, SRD_E + 3, S_T0))
        a("buffer_load_dwordx4 v[%d:%d], v8, s[%d:%d], s%d offen offset:1024" % (68 + 8 * t, 71 + 8 * t, SRD_E, SRD_E + 3, S_T0))
        a("s_add_u32 s%d, s%d, 2048" % (S_T0, S_T0))
    for t in range(8):
        a("v_mov_b32 v%d, 0" % (32 + t))
    a("s_waitcnt vmcnt(0)")
    for r in range(8):
        for t in range(8):
            a("v_dot2_f32_bf16 v%d, v%d, v%d, v%d" % (32 + t, 64 + 8 * t + r, 16 + r, 32 + t))
    a("s_nop 3")
    for pat in (0x041F, 0x081F, 0x101F, 0x201F, 0x401F):
        for t in range(8):
            a("ds_swizzle_b32 v%d, v%d offset:0x%x" % (40 + t, 32 + t, pat))
        a("s_waitcnt lgkmcnt(0)")
        for t in range(8):
            a("v_add_f32 v%d, v%d, v%d" % (32 + t, 32 + t, 40 + t))
    for t in range(8):
        a("v_mov_b32 v%d, v%d" % (40 + t, 32 + t))
    a("s_nop 1")
    for t in range(8):
        a("v_permlane32_swap_b32 v%d, v%d" % (32 + t, 40 + t))
    a("s_nop 1")
    for t in range(8):
        a("v_add_f32 v%d, v%d, v%d" % (32 + t, 32 + t, 40 + t))
    a("v_mov_b32 v48, v32")
    for t in range(1, 8):
        a("v_cmp_eq_u32 vcc, %d, v1" % t)
        a("s_nop 1")
        a("v_cndmask_b32 v48, v48, v%d, vcc" % (32 + t))
    bf16_round(a, 48, 48)
    a("v_mul_f32 v48, %s, v48" % f32(-LOG2E))
    a("v_exp_f32 v48, v48")
    a("s_nop 0")
    a("v_add_f32 v48, 1.0, v48")
    a("v_rcp_f32 v48, v48")
    a("s_nop 0")
    bf16_round(a, 48, 48)
    a("v_add_u32 v9, s%d, v1" % S_T2)
    a("v_lshlrev_b32 v9, 2, v9")
    a("v_cmp_gt_u32 vcc, 8, v1")
    a("s_and_saveexec_b64 s[%d:%d], vcc" % (S_EXEC, S_EXEC + 1))
    a("buffer_store_dword v48, v9, s[%d:%d], 0 offen" % (SRD_A2, SRD_A2 + 3))
    a("s_mov_b64 exec, s[%d:%d]" % (S_EXEC, S_EXEC + 1))


def gen_k4(a):
    name = "k4_kernel"
    c = Cfg(64, 6)
    kernel_header(a, name, 256)
    small_tile_decode(a)
    a("s_waitcnt lgkmcnt(0)")
    make_srd(a, SRD_A, P_WS, WS_O, S * D * 2)
    make_srd(a, SRD_B, P_WO, 0, D * D * 2)
    make_srd(a, SRD_A2, P_WS, WS_ACT, S * F * 2)
    make_srd(a, SRD_B2, P_W4, 0, F * D * 2)
    make_srd(a, SRD_C, P_OUT, 0, S * D * 2)
    make_srd(a, SRD_D, P_WS, WS_X1, S * D * 2)
    make_srd(a, SRD_E, P_WS, WS_G, 8192)
    a("s_cmp_ge_u32 s%d, 4" % S_WAVE)
    a("s_cbranch_scc1 L_k4_loader")
    VST, VLD, VX, VG = 200, 204, 208, 224
    epi_store_addr(a, c, 2048, VST, 2)
    a("v_lshrrev_b32 v3, 5, v1")
    a("v_lshlrev_b32 v3, 3, v3")
    for i in range(2):
        a("v_sub_u32 v%d, v%d, v3" % (VLD + i, VST + i))
    for i in range(2):
        load_resid(a, c, VX + 8 * i, VLD + i, SRD_D)
    for i in range(2):
        a("v_lshrrev_b32 v3, 11, v%d" % (VST + i))
        a("v_lshlrev_b32 v3, 2, v3")
        a("buffer_load_dword v%d, v3, s[%d:%d], 0 offen" % (VG + 2 * i, SRD_E, SRD_E + 3))
    compute_addr_setup(a, c)
    zero_acc(a, V_ACC, 64)
    compute_start(a, c)
    compute_loop(a, c, 16, V_ACC, True)
    compute_loop(a, c, 56, V_ACC + 32, True)
    a("s_waitcnt vmcnt(0) lgkmcnt(0)")
    a("s_nop 15")
    for i in range(2):
        aa = V_ACC + 16 * i
        bb = V_ACC + 32 + 16 * i
        g = VG + 2 * i
        a("v_sub_f32 v%d, 1.0, v%d" % (g + 1, g))
        bf16_round(a, g + 1, g + 1)
        round_regs_bf16(a, aa, 16, 16)
        round_regs_bf16(a, bb, 16, 24)
        unpack_bf16(a, 32, VX + 8 * i, 8)
        for p in range(8):
            a("v_pk_add_f32 v[%d:%d], v[%d:%d], v[%d:%d]" % (bb + 2 * p, bb + 2 * p + 1, bb + 2 * p, bb + 2 * p + 1, 32 + 2 * p, 33 + 2 * p))
        round_regs_bf16(a, bb, 16, 24)
        for p in range(8):
            a("v_pk_mul_f32 v[%d:%d], v[%d:%d], v[%d:%d] op_sel:[0,0] op_sel_hi:[1,0]" % (aa + 2 * p, aa + 2 * p + 1, aa + 2 * p, aa + 2 * p + 1, g, g + 1))
        for p in range(8):
            a("v_pk_mul_f32 v[%d:%d], v[%d:%d], v[%d:%d] op_sel:[0,1] op_sel_hi:[1,1]" % (bb + 2 * p, bb + 2 * p + 1, bb + 2 * p, bb + 2 * p + 1, g, g + 1))
        round_regs_bf16(a, aa, 16, 16)
        round_regs_bf16(a, bb, 16, 24)
        for p in range(8):
            a("v_pk_add_f32 v[%d:%d], v[%d:%d], v[%d:%d]" % (aa + 2 * p, aa + 2 * p + 1, aa + 2 * p, aa + 2 * p + 1, bb + 2 * p, bb + 2 * p + 1))
        pack_swap_store(a, aa, 48 + 8 * i, VST + i, SRD_C, 0)
    a("s_branch L_%s_end" % name)
    a.label("L_k4_loader")
    a("s_sub_u32 s%d, s%d, 4" % (S_LW, S_WAVE))
    loader_a_offsets(a, V_LA, 2048)
    loader_b_offsets_small(a, V_LB, 2048)
    loader_a_offsets(a, V_LA2, F * 2)
    loader_loop(a, c, [(16, SRD_A, SRD_B, V_LA, V_LB, 64 * 2048), (56, SRD_A2, SRD_B2, V_LA2, V_LB, 64 * 2048)], None)
    kernel_footer(a, name)
    descriptor(a, name)
    return name, 256, c.LDS_TOTAL


def main():
    body = Asm()
    launches = []
    for g in (gen_k1, gen_k2, gen_k3, gen_k4):
        launches.append(g(body))
    hdr = []
    for name, nwg, lds in launches:
        hdr.append("; @launch kernel=%s grid=(%d,1,1) block=(512,1,1) lds=%d" % (name, nwg, lds))
    hdr.append('.amdgcn_target "amdgcn-amd-amdhsa--gfx950"')
    hdr.append(".text")
    out = "\n".join(hdr + body.lines) + "\n"
    path = sys.argv[1] if len(sys.argv) > 1 else "gated_mix__linear_attn_block__mixer_s_mlp__prompt.s"
    open(path, "w").write(out)
    print("wrote", path, len(out), "bytes")


if __name__ == "__main__":
    main()
```

```python
import struct, sys

MB = 1 << 20
WS_PQ = 0 * MB
WS_HS = 4 * MB
WS_X1 = 8 * MB
WS_O = 12 * MB
WS_ACT = 16 * MB
WS_KVP = 32 * MB
WS_ZP = 34 * MB
WS_G = 35 * MB
WS_XS = 37 * MB
WS_FLAG = 39 * MB
FL_X1, FL_ACT, FL_O, FL_RED, FL_X1S = 0, 2048, 4096, 6144, 64
MERGED = True
HO = " sc1"
WS_CSP = 38 * MB
WS_KVB = 36 * MB
WS_ZB = 36 * MB + 65536

S, D, F = 2048, 1024, 3584


def f32(x):
    return "0x%08x" % struct.unpack("<I", struct.pack("<f", x))[0]


LOG2E = 1.4426950408889634
GC0 = -2.0 * 0.7978845608028654 * LOG2E
GC1 = GC0 * 0.044715


class Asm:
    def __init__(self):
        self.lines = []
        self.uid = 0

    def __call__(self, s):
        for ln in s.strip("\n").split("\n"):
            self.lines.append("    " + ln.strip())

    def label(self, l):
        self.lines.append(l + ":")

    def newlabel(self, base):
        self.uid += 1
        return "L_%s_%d" % (base, self.uid)

    def raw(self, s):
        self.lines.append(s)


def vr(a, n=1):
    return "v%d" % a if n == 1 else "v[%d:%d]" % (a, a + n - 1)


def sr(a, n=1):
    return "s%d" % a if n == 1 else "s[%d:%d]" % (a, a + n - 1)


P_X, P_WQKV, P_WO, P_W1, P_W2, P_W3, P_W4, P_GATE, P_OUT, P_DBG, P_WS = 4, 6, 8, 12, 14, 16, 18, 20, 22, 24, 26
SRD_A, SRD_B, SRD_C, SRD_D, SRD_A2, SRD_B2, SRD_E, SRD_F = 28, 32, 36, 40, 44, 48, 52, 56
S_WAVE, S_ROW0, S_COL0, S_TYPE, S_LDB, S_SA, S_SB, S_CNT = 60, 61, 62, 63, 64, 65, 66, 67
S_KA, S_KB, S_BUF, S_T0, S_T1, S_T2, S_T3, S_LW = 68, 69, 70, 71, 72, 73, 74, 75
S_SHIFT, S_RB, S_CT, S_XCD, S_J, S_KBSTEP = 76, 77, 78, 79, 80, 81
S_EXEC = 82
S_C0 = 84


def make_srd(a, srd, ptr, off, nbytes):
    if off:
        a("s_add_u32 s%d, s%d, 0x%x" % (srd, ptr, off))
        a("s_addc_u32 s%d, s%d, 0" % (srd + 1, ptr + 1))
    else:
        a("s_mov_b32 s%d, s%d" % (srd, ptr))
        a("s_mov_b32 s%d, s%d" % (srd + 1, ptr + 1))
    a("s_mov_b32 s%d, 0x%x" % (srd + 2, nbytes))
    a("s_mov_b32 s%d, 0x20000" % (srd + 3))


def kernel_header(a, name, nwg):
    a.raw(".globl %s" % name)
    a.raw(".p2align 8")
    a.raw(".type %s,@function" % name)
    a.label(name)
    a("s_cmp_ge_u32 s2, %d" % nwg)
    a("s_cbranch_scc1 L_%s_end" % name)
    if INSTR:
        a("s_memrealtime s[%d:%d]" % (S_TS + 12, S_TS + 13))
    stamp(a, 0)
    a("s_load_dwordx16 s[4:19], s[0:1], 0")
    a("s_load_dwordx8 s[20:27], s[0:1], 64")
    a("v_lshrrev_b32 v2, 6, v0")
    a("v_and_b32 v1, 63, v0")
    a("s_and_b32 s%d, s2, 7" % S_XCD)
    a("v_readfirstlane_b32 s%d, v2" % S_WAVE)
    a("s_lshr_b32 s%d, s2, 3" % S_J)
    if INSTR:
        a("s_nop 3")
        a("s_mov_b32 s3, s%d" % S_WAVE)


def kernel_footer(a, name, kidx=0):
    a.label("L_%s_ldone" % name)
    if INSTR:
        stamp(a, 4)
        stamp_flush(a, kidx, 5)
    a("s_branch L_%s_end" % name)
    a.label("L_%s_cdone" % name)
    stamp(a, 3)
    if INSTR:
        a("s_waitcnt vmcnt(0)")
    stamp(a, 4)
    stamp_flush(a, kidx, 5)
    a.label("L_%s_end" % name)
    a("s_endpgm")


def descriptor(a, name, vgprs=256):
    a.raw(".section .rodata,\"a\"")
    a.raw(".p2align 6")
    a.raw(".amdhsa_kernel %s" % name)
    a.raw("  .amdhsa_next_free_vgpr %d" % vgprs)
    a.raw("  .amdhsa_next_free_sgpr 102")
    a.raw("  .amdhsa_accum_offset %d" % vgprs)
    a.raw("  .amdhsa_group_segment_fixed_size 0")
    a.raw("  .amdhsa_kernarg_size 96")
    a.raw("  .amdhsa_user_sgpr_count 2")
    a.raw("  .amdhsa_user_sgpr_kernarg_segment_ptr 1")
    a.raw("  .amdhsa_system_sgpr_workgroup_id_x 1")
    a.raw(".end_amdhsa_kernel")
    a.raw(".text")


INSTR = False
EXP = set()
WS_DBGT = 40 * MB
S_TS = 88


def stamp(a, n):
    if not INSTR:
        return
    a("s_memtime s[%d:%d]" % (S_TS + 2 * n, S_TS + 2 * n + 1))
    a("s_waitcnt lgkmcnt(0)")


def stamp_flush(a, kidx, nst):
    if not INSTR:
        return
    a("s_memrealtime s[%d:%d]" % (S_TS + 2 * nst, S_TS + 2 * nst + 1))
    a("s_waitcnt lgkmcnt(0)")
    make_srd(a, SRD_F, P_WS, WS_DBGT + kidx * 65536, 65536)
    a("s_lshl_b32 s%d, s2, 8" % S_T0)
    a("s_lshl_b32 s%d, s3, 5" % (S_T1,))
    a("s_add_u32 s%d, s%d, s%d" % (S_T0, S_T0, S_T1))
    a("v_mov_b32 v2, s%d" % S_T0)
    for n in range(nst + 2):
        a("v_mov_b32 v3, s%d" % (S_TS + 2 * n))
        a("buffer_store_dword v3, v2, s[%d:%d], 0 offen offset:%d" % (SRD_F, SRD_F + 3, 4 * n))
        a("s_nop 1")


class Cfg:
    def __init__(self, BN, NBUF):
        self.BN = BN
        self.NBUF = NBUF
        self.STAGE = 16384 + BN * 128
        self.big = BN == 256
        self.MI = 4 if self.big else 1
        self.NI = 2
        self.LA = 4
        self.LB = BN // 32
        self.LPS = self.LA + self.LB
        self.NSUB = 4 if self.big else 1
        self.KPS = 4 // self.NSUB
        self.INIT = 2
        self.aflag = ""
        self.RAMP = 1 if self.big else 2
        for e in EXP:
            if e.startswith("initb") and self.big: self.INIT = int(e[5:])
            if e.startswith("inits") and not self.big: self.INIT = int(e[5:])
            if e.startswith("rampb") and self.big: self.RAMP = int(e[5:])
            if e.startswith("ramps") and not self.big: self.RAMP = int(e[5:])
        self.LDS_STATS = self.NBUF * self.STAGE
        self.LDS_CS = self.LDS_STATS + 1024
        self.LDS_TOTAL = self.LDS_CS + 1024


V_LA = 16
V_LB = 20
V_LA2 = 28
V_LB2 = 32
V_SA = 40
V_SAB = 44
V_SB = 48
V_SBB = 49
V_SUM, V_SQ, V_CS0, V_CS1, V_ONES = 50, 51, 52, 53, 54
V_SUM2, V_SQ2 = 55, 56
V_SD = 64


def loader_a_offsets(a, vdst, lda):
    a("v_lshrrev_b32 v3, 3, v1")
    a("v_and_b32 v4, 7, v1")
    a("v_lshrrev_b32 v5, 4, v1")
    a("v_xor_b32 v4, v4, v5")
    a("s_lshl_b32 s%d, s%d, 5" % (S_T0, S_LW))
    a("s_add_u32 s%d, s%d, s%d" % (S_T0, S_T0, S_ROW0))
    a("v_add_u32 v3, s%d, v3" % S_T0)
    a("s_mov_b32 s%d, %d" % (S_T1, lda))
    a("v_mul_lo_u32 v3, v3, s%d" % S_T1)
    for j in range(4):
        if j & 1:
            a("v_xor_b32 v5, 4, v4")
        else:
            a("v_mov_b32 v5, v4")
        a("v_lshl_add_u32 v5, v5, 4, v3")
        a("v_add_u32 v%d, 0x%x, v5" % (vdst + j, 8 * j * lda - 1024 * j))


def loader_b_offsets_big(a, vdst):
    a("v_lshrrev_b32 v3, 5, v1")
    a("v_and_b32 v4, 31, v1")
    a("s_lshl_b32 s%d, s%d, 4" % (S_T0, S_LW))
    a("v_add_u32 v6, s%d, v3" % S_T0)
    a("v_mul_lo_u32 v6, v6, s%d" % S_LDB)
    for par in range(2):
        a("v_or_b32 v5, %d, v3" % (par << 1))
        a("v_lshlrev_b32 v5, 2, v5")
        a("v_xor_b32 v5, v5, v4")
        a("v_bfe_u32 v7, v5, 2, 1")
        a("v_mul_lo_u32 v7, v7, s%d" % S_SA)
        a("v_lshrrev_b32 v8, 3, v5")
        a("v_mul_lo_u32 v8, v8, s%d" % S_SB)
        a("v_and_b32 v9, 3, v5")
        a("v_lshlrev_b32 v9, 3, v9")
        a("v_add3_u32 v7, v7, v8, v9")
        a("v_add_u32 v7, s%d, v7" % S_COL0)
        a("v_lshl_add_u32 v%d, v7, 1, v6" % (10 + par))
    for j in range(8):
        a("s_mul_i32 s%d, s%d, %d" % (S_T0, S_LDB, 2 * j))
        a("s_sub_u32 s%d, s%d, %d" % (S_T0, S_T0, 1024 * (j & 3)))
        a("v_add_u32 v%d, s%d, v%d" % (vdst + j, S_T0, 10 + (j & 1)))


def loader_b_offsets_small(a, vdst, ldb):
    a("v_lshrrev_b32 v3, 3, v1")
    a("s_lshl_b32 s%d, s%d, 4" % (S_T0, S_LW))
    a("v_add_u32 v3, s%d, v3" % S_T0)
    a("s_mov_b32 s%d, %d" % (S_T1, ldb))
    a("v_mul_lo_u32 v3, v3, s%d" % S_T1)
    a("v_and_b32 v4, 7, v1")
    a("v_bfe_u32 v5, v1, 4, 1")
    a("v_lshlrev_b32 v5, 2, v5")
    a("v_xor_b32 v4, v4, v5")
    a("v_lshl_add_u32 v3, v4, 4, v3")
    a("s_lshl_b32 s%d, s%d, 1" % (S_T0, S_COL0))
    a("v_add_u32 v3, s%d, v3" % S_T0)
    for j in range(2):
        a("v_add_u32 v%d, 0x%x, v3" % (vdst + j, 8 * j * ldb - 1024 * j))


def loader_issue(a, c, srda, srdb, vla, vlb, part="AB"):
    if "nodma" in EXP:
        return
    if "A" in part:
        a("s_lshl_b32 s%d, s%d, 12" % (S_T0, S_LW))
        a("s_add_u32 m0, s%d, s%d" % (S_BUF, S_T0))
        a("s_nop 0")
        for j in range(4):
            a("buffer_load_dwordx4 v%d, s[%d:%d], s%d offen offset:%d%s lds" % (vla + j, srda, srda + 3, S_KA, 1024 * j, c.aflag))
    if "B" not in part:
        pass
    elif c.big:
        a("s_lshl_b32 s%d, s%d, 13" % (S_T0, S_LW))
        a("s_add_u32 s%d, s%d, s%d" % (S_T0, S_T0, S_BUF))
        a("s_add_u32 m0, s%d, 16384" % S_T0)
        a("s_nop 0")
        for j in range(4):
            a("buffer_load_dwordx4 v%d, s[%d:%d], s%d offen offset:%d lds" % (vlb + j, srdb, srdb + 3, S_KB, 1024 * j))
        a("s_add_u32 m0, s%d, %d" % (S_T0, 16384 + 4096))
        a("s_nop 0")
        for j in range(4, 8):
            a("buffer_load_dwordx4 v%d, s[%d:%d], s%d offen offset:%d lds" % (vlb + j, srdb, srdb + 3, S_KB, 1024 * (j & 3)))
    else:
        a("s_lshl_b32 s%d, s%d, 11" % (S_T0, S_LW))
        a("s_add_u32 s%d, s%d, s%d" % (S_T0, S_T0, S_BUF))
        a("s_add_u32 m0, s%d, 16384" % S_T0)
        a("s_nop 0")
        for j in range(2):
            a("buffer_load_dwordx4 v%d, s[%d:%d], s%d offen offset:%d lds" % (vlb + j, srdb, srdb + 3, S_KB, 1024 * j))
    if "A" in part:
        a("s_add_u32 s%d, s%d, 128" % (S_KA, S_KA))
    if "B" in part:
        a("s_add_u32 s%d, s%d, s%d" % (S_KB, S_KB, S_KBSTEP))
    a("s_add_u32 s%d, s%d, %d" % (S_BUF, S_BUF, c.STAGE))
    a("s_cmp_eq_u32 s%d, %d" % (S_BUF, c.STAGE * c.NBUF))
    a("s_cselect_b32 s%d, 0, s%d" % (S_BUF, S_BUF))


def stats_setup(a, c):
    a("v_and_b32 v3, 31, v1")
    a("s_lshl_b32 s%d, s%d, 5" % (S_T0, S_LW))
    a("v_add_u32 v3, s%d, v3" % S_T0)
    a("v_lshlrev_b32 v3, 7, v3")
    a("v_bfe_u32 v4, v1, 1, 3")
    a("v_lshrrev_b32 v5, 5, v1")
    a("v_lshlrev_b32 v5, 2, v5")
    a("v_xor_b32 v4, v4, v5")
    for t in range(4):
        a("v_xor_b32 v5, %d, v4" % t)
        a("v_lshl_add_u32 v%d, v5, 4, v3" % (V_SAB + t))
        a("v_mov_b32 v%d, v%d" % (V_SA + t, V_SAB + t))
    a("v_bfe_u32 v3, v1, 2, 2")
    a("v_and_b32 v4, 3, v1")
    a("v_lshrrev_b32 v5, 4, v1")
    a("v_lshlrev_b32 v5, 1, v5")
    a("v_lshrrev_b32 v6, 1, v4")
    a("v_add_u32 v5, v5, v6")
    a("s_lshl_b32 s%d, s%d, 3" % (S_T0, S_LW))
    a("v_add_u32 v5, s%d, v5" % S_T0)
    a("v_lshlrev_b32 v6, 2, v3")
    a("v_xor_b32 v5, v5, v6")
    a("v_lshlrev_b32 v5, 4, v5")
    a("v_lshl_add_u32 v5, v3, 9, v5")
    a("v_and_b32 v4, 1, v4")
    a("v_lshl_add_u32 v5, v4, 3, v5")
    a("v_add_u32 v%d, 16384, v5" % V_SBB)
    a("v_mov_b32 v%d, v%d" % (V_SB, V_SBB))
    for r in (V_SUM, V_SQ, V_CS0, V_CS1, V_SUM2, V_SQ2):
        a("v_mov_b32 v%d, 0" % r)
    a("v_mov_b32 v%d, 0x3f803f80" % V_ONES)
    a("s_mov_b32 s%d, 0" % S_T3)


def stats_step(a, c):
    for t in range(4):
        a("ds_read_b128 v[%d:%d], v%d" % (V_SD + 4 * t, V_SD + 4 * t + 3, V_SA + t))
    for m in range(16):
        a("ds_read_b64_tr_b16 v[%d:%d], v%d offset:%d" % (V_SD + 16 + 2 * m, V_SD + 17 + 2 * m, V_SB, 2048 * m))
    a("s_add_u32 s%d, s%d, %d" % (S_T3, S_T3, c.STAGE))
    a("s_cmp_eq_u32 s%d, %d" % (S_T3, c.STAGE * c.NBUF))
    a("s_cselect_b32 s%d, 0, s%d" % (S_T3, S_T3))
    a("s_waitcnt lgkmcnt(15)")
    for t in range(16):
        s, q = (V_SUM, V_SQ) if t & 1 else (V_SUM2, V_SQ2)
        a("v_dot2_f32_bf16 v%d, v%d, v%d, v%d" % (s, V_SD + t, V_ONES, s))
        a("v_dot2_f32_bf16 v%d, v%d, v%d, v%d" % (q, V_SD + t, V_SD + t, q))
    a("s_waitcnt lgkmcnt(0)")
    for t in range(4):
        a("v_add_u32 v%d, s%d, v%d" % (V_SA + t, S_T3, V_SAB + t))
    a("v_add_u32 v%d, s%d, v%d" % (V_SB, S_T3, V_SBB))
    for m in range(32):
        cs = V_CS0 if m & 1 else V_CS1
        a("v_dot2_f32_bf16 v%d, v%d, v%d, v%d" % (cs, V_SD + 16 + m, V_ONES, cs))


def bf16_round(a, dst, src):
    a("v_cvt_pk_bf16_f32 v%d, v%d, v%d" % (dst, src, src))
    a("v_lshlrev_b32 v%d, 16, v%d" % (dst, dst))


def stats_finish(a, c, S_LW=S_LW):
    a("s_nop 3")
    a("v_add_f32 v%d, v%d, v%d" % (V_SUM, V_SUM, V_SUM2))
    a("v_add_f32 v%d, v%d, v%d" % (V_SQ, V_SQ, V_SQ2))
    a("v_add_f32 v%d, v%d, v%d" % (V_CS0, V_CS0, V_CS1))
    a("v_mov_b32 v3, v%d" % V_SUM)
    a("v_mov_b32 v4, v%d" % V_SUM)
    a("v_mov_b32 v5, v%d" % V_SQ)
    a("v_mov_b32 v6, v%d" % V_SQ)
    a("s_nop 1")
    a("v_permlane32_swap_b32 v3, v4")
    a("v_permlane32_swap_b32 v5, v6")
    a("s_nop 1")
    a("v_add_f32 v3, v3, v4")
    a("v_add_f32 v5, v5, v6")
    a("v_mul_f32 v3, %s, v3" % f32(1.0 / 1024))
    a("v_mul_f32 v5, %s, v5" % f32(1.0 / 1024))
    a("v_fma_f32 v5, -v3, v3, v5")
    a("v_max_f32 v5, 0, v5")
    bf16_round(a, 3, 3)
    bf16_round(a, 5, 5)
    a("v_add_f32 v5, %s, v5" % f32(1e-5))
    bf16_round(a, 5, 5)
    a("v_sqrt_f32 v5, v5")
    a("s_nop 0")
    bf16_round(a, 5, 5)
    a("v_rcp_f32 v6, v5")
    a("s_nop 0")
    a("v_mul_f32 v7, v3, v6")
    a("v_sub_f32 v7, 0, v7")
    a("v_and_b32 v3, 31, v1")
    a("s_lshl_b32 s%d, s%d, 5" % (S_T0, S_LW))
    a("v_add_u32 v3, s%d, v3" % S_T0)
    a("v_lshlrev_b32 v3, 3, v3")
    a("v_add_u32 v3, %d, v3" % c.LDS_STATS)
    a("ds_write_b64 v3, v[6:7]")
    a("s_lshl_b32 s%d, s%d, 6" % (S_T0, S_LW))
    a("v_add_u32 v3, s%d, v1" % S_T0)
    a("v_lshlrev_b32 v3, 2, v3")
    a("v_add_u32 v3, %d, v3" % c.LDS_CS)
    a("ds_write_b32 v3, v%d" % V_CS0)
    a("s_waitcnt lgkmcnt(0)")


def loader_loop(a, c, phases, stats, gate=None, tail=None):
    NIT = sum(p[0] for p in phases)
    NBUF, LPS = c.NBUF, c.LPS
    starts = []
    t = 0
    for p in phases:
        starts.append(t)
        t += p[0]

    def phase_of(s):
        k = 0
        for i, st in enumerate(starts):
            if s >= st:
                k = i
        return k

    def set_phase(k):
        c0 = phases[k][6] if len(phases[k]) > 6 else 0
        a("s_mov_b32 s%d, %d" % (S_KA, c0 * 128))
        a("s_mov_b32 s%d, %d" % (S_KB, c0 * phases[k][5] if c0 else 0))
        kb = phases[k][5]
        if isinstance(kb, int):
            a("s_mov_b32 s%d, %d" % (S_KBSTEP, kb))
        else:
            a(kb)

    def issue(s):
        k = phase_of(s)
        if s == starts[k]:
            set_phase(k)
        p = phases[k]
        loader_issue(a, c, p[1], p[2], p[3], p[4])

    def do_stats():
        if stats is None:
            return
        if stats == 'always':
            stats_step(a, c)
        else:
            l = a.newlabel("nostat")
            a("s_cmp_eq_u32 s%d, 0" % stats)
            a("s_cbranch_scc1 %s" % l)
            stats_step(a, c)
            a.label(l)

    a("s_mov_b32 s%d, 0" % S_BUF)
    stamp(a, 1)
    init = c.INIT
    issued = 0
    if gate is None:
        for s in range(init):
            issue(s)
            issued += 1
    else:
        set_phase(0)
        p = phases[0]
        for s in range(init):
            loader_issue(a, c, p[1], p[2], p[3], p[4], "B")
        gate()
        a("s_mov_b32 s%d, 0" % S_BUF)
        for s in range(init):
            loader_issue(a, c, p[1], p[2], p[3], p[4], "A")
            issued += 1
    stamp(a, 2)
    if stats is not None:
        stats_setup(a, c)
    a("s_waitcnt vmcnt(%d)" % ((issued - 1) * (LPS if gate is None else c.LA)))
    stamp(a, 3)
    a("s_barrier")
    it = 0
    b = -1
    while True:
        n = 0
        while issued <= b + NBUF and issued < NIT and n < c.RAMP:
            issue(issued)
            issued += 1
            n += 1
        if issued == b + NBUF + 1 or issued == NIT:
            break
        do_stats()
        a("s_waitcnt vmcnt(%d)" % ((issued - (it + 2)) * LPS))
        a("s_barrier")
        b = it
        it += 1
    while it < NIT:
        s = it + NBUF
        if s < NIT:
            k = phase_of(s)
            end_s = starts[k] + phases[k][0]
            n = end_s - s
            if s == starts[k]:
                set_phase(k)
            p = phases[k]
            lbl = a.newlabel("ld")
            if n > 1:
                a("s_mov_b32 s%d, %d" % (S_CNT, n))
                a.label(lbl)
            do_stats()
            a("s_waitcnt vmcnt(%d)" % ((NBUF - 2) * LPS))
            a("s_barrier")
            loader_issue(a, c, p[1], p[2], p[3], p[4])
            if n > 1:
                a("s_sub_u32 s%d, s%d, 1" % (S_CNT, S_CNT))
                a("s_cmp_lg_u32 s%d, 0" % S_CNT)
                a("s_cbranch_scc1 %s" % lbl)
            it += n
        else:
            do_stats()
            if tail is not None and s == NIT:
                tail[0]()
            rem = max(0, min(NBUF - 2, NIT - 2 - it))
            if tail is not None and it == NIT - 1:
                tail[2]()
            else:
                a("s_waitcnt vmcnt(%d)" % (rem * LPS + (tail[1] if tail is not None else 0)))
            a("s_barrier")
            it += 1


V_AA = 4
V_AB = 8
V_BA = 12
V_BB = 14
V_F = 16
V_ACC = 128


def compute_addr_setup(a, c):
    a("v_and_b32 v2, 31, v1")
    if not c.big:
        a("s_lshl_b32 s%d, s%d, 5" % (S_T0, S_WAVE))
        a("v_add_u32 v2, s%d, v2" % S_T0)
    a("v_lshlrev_b32 v2, 7, v2")
    a("v_bfe_u32 v3, v1, 1, 3")
    a("v_lshrrev_b32 v16, 5, v1")
    a("v_xor_b32 v3, v3, v16")
    for kk in range(4):
        a("v_xor_b32 v17, %d, v3" % (2 * kk))
        a("v_lshl_add_u32 v%d, v17, 4, v2" % (V_AB + kk))
        a("v_mov_b32 v%d, v%d" % (V_AA + kk, V_AB + kk))
    a("v_bfe_u32 v2, v1, 2, 2")
    a("v_and_b32 v3, 3, v1")
    a("v_bfe_u32 v17, v1, 4, 1")
    a("v_lshlrev_b32 v17, 1, v17")
    a("v_lshrrev_b32 v18, 1, v3")
    a("v_add_u32 v17, v17, v18")
    a("v_lshl_add_u32 v18, v16, 3, v2")
    a("v_and_b32 v3, 1, v3")
    a("v_lshlrev_b32 v3, 3, v3")
    if c.big:
        a("s_lshl_b32 s%d, s%d, 3" % (S_T0, S_WAVE))
        a("v_add_u32 v17, s%d, v17" % S_T0)
        a("v_lshl_add_u32 v3, v18, 9, v3")
        a("v_lshlrev_b32 v2, 2, v2")
        for j in range(2):
            a("v_add_u32 v19, %d, v17" % (4 * j))
            a("v_xor_b32 v19, v19, v2")
            a("v_lshl_add_u32 v19, v19, 4, v3")
            a("v_add_u32 v%d, 16384, v19" % (V_BB + j))
            a("v_mov_b32 v%d, v%d" % (V_BA + j, V_BB + j))
    else:
        a("v_lshl_add_u32 v3, v18, 7, v3")
        a("v_lshrrev_b32 v2, 1, v2")
        a("v_lshlrev_b32 v2, 2, v2")
        for j in range(2):
            a("v_add_u32 v19, %d, v17" % (4 * j))
            a("v_xor_b32 v19, v19, v2")
            a("v_lshl_add_u32 v19, v19, 4, v3")
            a("v_add_u32 v%d, 16384, v19" % (V_BB + j))
            a("v_mov_b32 v%d, v%d" % (V_BA + j, V_BB + j))
    a("s_mov_b32 s%d, 0" % S_BUF)


def frag_regs(c, fset, kq):
    per_kk = (c.MI + c.NI) * 4
    base = V_F + fset * per_kk * c.KPS + kq * per_kk
    A = [base + 4 * i for i in range(c.MI)]
    B = [base + 4 * c.MI + 4 * j for j in range(c.NI)]
    return A, B


def frag_reads(c, fset, sub):
    out = []
    if "noread" in EXP:
        return out
    for kq in range(c.KPS):
        kk = sub * c.KPS + kq
        A, B = frag_regs(c, fset, kq)
        for j in range(c.NI):
            for q in range(2):
                off = kk * 8192 + q * 2048 if c.big else kk * 2048 + q * 512
                out.append("ds_read_b64_tr_b16 v[%d:%d], v%d offset:%d" % (B[j] + 2 * q, B[j] + 2 * q + 1, V_BA + j, off))
        for i in range(c.MI):
            out.append("ds_read_b128 v[%d:%d], v%d offset:%d" % (A[i], A[i] + 3, V_AA + kk, 4096 * i))
    return out


def mfma_list(c, fset, acc, swapped):
    out = []
    if "nomfma" in EXP:
        return ["s_nop 0"]
    for kq in range(c.KPS):
        A, B = frag_regs(c, fset, kq)
        for i in range(c.MI):
            for j in range(c.NI):
                d = acc + 16 * (i * c.NI + j)
                x, w = "v[%d:%d]" % (A[i], A[i] + 3), "v[%d:%d]" % (B[j], B[j] + 3)
                if swapped:
                    x, w = w, x
                if "mfma16" in EXP:
                    out.append("v_mfma_f32_16x16x32_bf16 v[%d:%d], %s, %s, v[%d:%d]" % (d, d + 3, x, w, d, d + 3))
                    out.append("v_mfma_f32_16x16x32_bf16 v[%d:%d], %s, %s, v[%d:%d]" % (d + 4, d + 7, w, x, d + 4, d + 7))
                else:
                    out.append("v_mfma_f32_32x32x16_bf16 v[%d:%d], %s, %s, v[%d:%d]" % (d, d + 15, x, w, d, d + 15))
    return out


def addr_update(c):
    out = []
    out.append("s_add_u32 s%d, s%d, %d" % (S_BUF, S_BUF, c.STAGE))
    out.append("s_cmp_eq_u32 s%d, %d" % (S_BUF, c.STAGE * c.NBUF))
    out.append("s_cselect_b32 s%d, 0, s%d" % (S_BUF, S_BUF))
    for kk in range(4):
        out.append("v_add_u32 v%d, s%d, v%d" % (V_AA + kk, S_BUF, V_AB + kk))
    for j in range(c.NI):
        out.append("v_add_u32 v%d, s%d, v%d" % (V_BA + j, S_BUF, V_BB + j))
    return out


def emit_interleaved(a, mfmas, others, per_gap, lead=0):
    oi = 0
    if "mfma16" in EXP:
        per_gap = 1
    for n, m in enumerate(mfmas):
        a(m)
        if n >= lead:
            for _ in range(per_gap):
                if oi < len(others):
                    a(others[oi])
                    oi += 1
    while oi < len(others):
        a(others[oi])
        oi += 1


def compute_iter(a, c, acc, swapped, fs0, pf=None):
    fs = fs0
    for sub in range(c.NSUB):
        last = sub == c.NSUB - 1
        m = mfma_list(c, fs, acc, swapped)
        a("s_waitcnt lgkmcnt(0)")
        if last:
            if c.NSUB == 1:
                upd = addr_update(c)
                for u in upd:
                    a(u)
                a("s_barrier")
                emit_interleaved(a, m, frag_reads(c, fs ^ 1, 0) + (pf_step(pf) if pf else []), 3)
            else:
                a(m[0])
                a("s_barrier")
                emit_interleaved(a, m[1:], frag_reads(c, fs ^ 1, 0), 3)
        else:
            others = frag_reads(c, fs ^ 1, sub + 1)
            if sub == c.NSUB - 2:
                others = others + addr_update(c)
            if sub == 0 and pf:
                others = others + pf_step(pf)
            emit_interleaved(a, m, others, 2)
        fs ^= 1
    return fs


def compute_loop(a, c, nit, acc, swapped, pf=None):
    unroll = 1 if c.NSUB % 2 == 0 else 2
    assert nit % unroll == 0
    lbl = a.newlabel("cl")
    a("s_mov_b32 s%d, %d" % (S_CNT, nit // unroll))
    a.label(lbl)
    fs = 0
    for u in range(unroll):
        fs = compute_iter(a, c, acc, swapped, fs, pf)
    assert fs == 0
    a("s_sub_u32 s%d, s%d, 1" % (S_CNT, S_CNT))
    a("s_cmp_lg_u32 s%d, 0" % S_CNT)
    a("s_cbranch_scc1 %s" % lbl)


V_PF, V_PFD = 126, 127


def prefetch_jobs(a, jobs, vpf=V_PF, vpfd=V_PFD):
    n = 0
    per_wave = [[] for _ in range(4)]
    for ptr, total in jobs:
        share = total // 256
        for off in range(0, share, 8192):
            per_wave[n % 4].append((ptr, total, share, off))
            n += 1
    done = a.newlabel("pfdone")
    for w in range(4):
        nxt = a.newlabel("pfw")
        a("s_cmp_lg_u32 s%d, %d" % (S_WAVE, w))
        a("s_cbranch_scc1 %s" % nxt)
        for ptr, total, share, off in per_wave[w]:
            make_srd(a, SRD_F, ptr, 0, total)
            a("s_mul_i32 s%d, s2, %d" % (S_T0, share))
            a("s_add_u32 s%d, s%d, %d" % (S_T0, S_T0, off))
            if share - off < 8192:
                a("s_add_u32 s%d, s%d, %d" % (SRD_F + 2, S_T0, share - off))
            a("buffer_load_dword v%d, v%d, s[%d:%d], s%d offen" % (vpfd, vpf, SRD_F, SRD_F + 3, S_T0))
        a("s_branch %s" % done)
        a.label(nxt)
    a.label(done)


S_PFO = 85


def pf_stream_setup(a, assign, nit):
    steps = []
    for ptr, total, part, nparts in assign:
        lines = total // 256 // 128
        per = -(-lines // nparts)
        steps.append(-(-per // nit))
    L = max(steps)
    done = a.newlabel("pfs")
    for w, (ptr, total, part, nparts) in enumerate(assign):
        nxt = a.newlabel("pfsw")
        a("s_cmp_lg_u32 s%d, %d" % (S_WAVE, w))
        a("s_cbranch_scc1 %s" % nxt)
        share = total // 256
        lines = share // 128
        per = -(-lines // nparts)
        beg = part * per * 128
        end = min(share, (part + 1) * per * 128)
        make_srd(a, SRD_F, ptr, 0, total)
        a("s_mul_i32 s%d, s2, %d" % (S_PFO, share))
        a("s_add_u32 s%d, s%d, %d" % (SRD_F + 2, S_PFO, end))
        a("s_add_u32 s%d, s%d, %d" % (S_PFO, S_PFO, beg))
        a("s_branch %s" % done)
        a.label(nxt)
    a.label(done)
    a("v_lshlrev_b32 v%d, 7, v1" % V_PF)
    a("v_mov_b32 v2, 0x40000000")
    a("v_cmp_gt_u32 vcc, %d, v1" % L)
    a("s_nop 1")
    a("v_cndmask_b32 v%d, v2, v%d, vcc" % (V_PF, V_PF))
    return L * 128


def pf_step(step):
    return ["buffer_load_dword v%d, v%d, s[%d:%d], s%d offen" % (V_PFD, V_PF, SRD_F, SRD_F + 3, S_PFO),
            "s_add_u32 s%d, s%d, %d" % (S_PFO, S_PFO, step)]


def zero_acc(a, acc, n):
    for r in range(acc, acc + n):
        a("v_mov_b32 v%d, 0" % r)


def compute_start(a, c):
    a("s_barrier")
    stamp(a, 1)
    for r in frag_reads(c, 0, 0):
        a(r)


def pack_swap_store(a, src, tmp, vaddr, srd, imm, flags=""):
    if "st_sc1" in EXP: flags = " sc1"
    if "st_sc01" in EXP: flags = " sc0 sc1"
    if "st_nt" in EXP: flags = " nt"
    if "st_ntsc1" in EXP: flags = " sc1 nt"
    for p in range(8):
        a("v_cvt_pk_bf16_f32 v%d, v%d, v%d" % (tmp + p, src + 2 * p, src + 2 * p + 1))
    a("s_nop 1")
    for gp in range(2):
        b = tmp + 4 * gp
        a("v_permlane32_swap_b32 v%d, v%d" % (b, b + 2))
        a("v_permlane32_swap_b32 v%d, v%d" % (b + 1, b + 3))
    for gp in range(2):
        b = tmp + 4 * gp
        a("buffer_store_dwordx4 v[%d:%d], v%d, s[%d:%d], 0 offen offset:%d%s" % (b, b + 3, vaddr, srd, srd + 3, imm + 32 * gp, flags))


def line_store_setup(a, ld, vst, VW, VR, s_row, s_colb, ldsbase=65536):
    a("s_lshl_b32 s%d, s%d, 13" % (S_T0, S_WAVE))
    a("s_add_u32 s%d, s%d, %d" % (S_T0, S_T0, ldsbase))
    a("v_and_b32 v2, 31, v1")
    a("v_lshrrev_b32 v3, 5, v1")
    a("v_and_b32 v%d, 7, v2" % VR)
    a("v_xor_b32 v3, v3, v%d" % VR)
    a("v_lshlrev_b32 v2, 7, v2")
    a("v_add_u32 v2, s%d, v2" % S_T0)
    for q in range(4):
        a("v_xor_b32 v%d, %d, v3" % (VW + q, 2 * q))
        a("v_lshl_add_u32 v%d, v%d, 4, v2" % (VW + q, VW + q))
    a("v_lshrrev_b32 v2, 3, v1")
    a("v_and_b32 v3, 7, v1")
    a("v_xor_b32 v%d, v3, v2" % VR)
    a("v_lshlrev_b32 v%d, 4, v%d" % (VR, VR))
    a("v_lshl_add_u32 v%d, v2, 7, v%d" % (VR, VR))
    a("v_add_u32 v%d, s%d, v%d" % (VR, S_T0, VR))
    a("v_add_u32 v2, s%d, v2" % s_row)
    a("s_mov_b32 s%d, %d" % (S_T1, ld))
    a("v_mul_lo_u32 v2, v2, s%d" % S_T1)
    a("v_lshl_add_u32 v2, v3, 4, v2")
    a("v_add_u32 v%d, s%d, v2" % (vst, s_colb))


def line_pack_write(a, src, tmp, VW, j, ldsoff):
    for p in range(8):
        a("v_cvt_pk_bf16_f32 v%d, v%d, v%d" % (tmp + p, src + 2 * p, src + 2 * p + 1))
    a("s_nop 1")
    for gp in range(2):
        b = tmp + 4 * gp
        a("v_permlane32_swap_b32 v%d, v%d" % (b, b + 2))
        a("v_permlane32_swap_b32 v%d, v%d" % (b + 1, b + 3))
    for gp in range(2):
        b = tmp + 4 * gp
        a("ds_write_b128 v%d, v[%d:%d] offset:%d" % (VW + 2 * j + gp, b, b + 3, ldsoff))


def line_read(a, dst, VR, ldsoff):
    for t in range(4):
        a("ds_read_b128 v[%d:%d], v%d offset:%d" % (dst + 4 * t, dst + 4 * t + 3, VR, ldsoff + 1024 * t))


def line_store(a, src, vst, vtmp, srd, ld, i, flags=" sc1", extra=0):
    for t in range(4):
        a("v_add_u32 v%d, 0x%x, v%d" % (vtmp + t, (32 * i + 8 * t) * ld + extra, vst))
    for t in range(4):
        a("buffer_store_dwordx4 v[%d:%d], v%d, s[%d:%d], 0 offen%s" % (src + 4 * t, src + 4 * t + 3, vtmp + t, srd, srd + 3, flags))


def epi_lines(a, c, srd, ld, shift_sgpr, mathfn, VP, VD, VW, VR, VST, VAT):
    if shift_sgpr is not None:
        a("s_add_u32 s%d, s%d, s%d" % (S_T2, S_ROW0, shift_sgpr))
    else:
        a("s_mov_b32 s%d, s%d" % (S_T2, S_ROW0))
    a("s_lshl_b32 s%d, s%d, 6" % (S_T3, S_WAVE))
    a("s_add_u32 s%d, s%d, s%d" % (S_T3, S_T3, S_COL0))
    a("s_lshl_b32 s%d, s%d, 1" % (S_T3, S_T3))
    line_store_setup(a, ld, VST, VW, VR, S_T2, S_T3)
    for i in range(4):
        off = 4096 * (i & 1)
        for j in range(2):
            acc = V_ACC + 16 * (i * 2 + j)
            mathfn(i, j, acc)
            if j == 0 and i > 0:
                a("s_waitcnt lgkmcnt(0)")
                line_store(a, VD, VST, VAT, srd, ld, i - 1)
            line_pack_write(a, acc, VP + 8 * j, VW, j, off)
        line_read(a, VD, VR, off)
    a("s_waitcnt lgkmcnt(0)")
    line_store(a, VD, VST, VAT, srd, ld, 3)


def phi_inplace(a, regs, tmp, vconst):
    n = len(regs)
    for p in range(n):
        a("v_pk_mul_f32 v[%d:%d], v[%d:%d], v[%d:%d] op_sel:[0,0] op_sel_hi:[1,0]" % (tmp + 2 * p, tmp + 2 * p + 1, regs[p], regs[p] + 1, vconst, vconst + 1))
    for p in range(n):
        a("v_exp_f32 v%d, v%d clamp" % (tmp + 2 * p, tmp + 2 * p))
        a("v_exp_f32 v%d, v%d clamp" % (tmp + 2 * p + 1, tmp + 2 * p + 1))
    for p in range(n):
        a("v_max_f32 v%d, 0, v%d" % (regs[p], regs[p]))
        a("v_max_f32 v%d, 0, v%d" % (regs[p] + 1, regs[p] + 1))
    for p in range(n):
        a("v_pk_add_f32 v[%d:%d], v[%d:%d], v[%d:%d] op_sel:[0,1] op_sel_hi:[1,1]" % (tmp + 2 * p, tmp + 2 * p + 1, tmp + 2 * p, tmp + 2 * p + 1, vconst, vconst + 1))
    for p in range(n):
        a("v_pk_add_f32 v[%d:%d], v[%d:%d], v[%d:%d]" % (regs[p], regs[p] + 1, regs[p], regs[p] + 1, tmp + 2 * p, tmp + 2 * p + 1))


def ln_gelu_inplace(a, regs, tmp, vstat, vcs, vconst):
    n = len(regs)
    P = lambda r: "v[%d:%d]" % (r, r + 1)
    for p in range(n):
        a("v_pk_mul_f32 %s, %s, %s op_sel:[0,0] op_sel_hi:[1,0]" % (P(regs[p]), P(regs[p]), P(vstat)))
    for p in range(n):
        a("v_pk_fma_f32 %s, %s, %s, %s op_sel:[0,1,0] op_sel_hi:[1,1,1]" % (P(regs[p]), P(vcs + 2 * p), P(vstat), P(regs[p])))
    for p in range(n):
        a("v_pk_mul_f32 %s, %s, %s" % (P(tmp + 2 * p), P(regs[p]), P(regs[p])))
    for p in range(n):
        a("v_pk_fma_f32 %s, %s, %s, %s op_sel:[0,0,1] op_sel_hi:[1,0,1]" % (P(tmp + 2 * p), P(tmp + 2 * p), P(vconst), P(vconst)))
    for p in range(n):
        a("v_pk_mul_f32 %s, %s, %s" % (P(tmp + 2 * p), P(tmp + 2 * p), P(regs[p])))
    for p in range(n):
        a("v_exp_f32 v%d, v%d" % (tmp + 2 * p, tmp + 2 * p))
        a("v_exp_f32 v%d, v%d" % (tmp + 2 * p + 1, tmp + 2 * p + 1))
    for p in range(n):
        a("v_pk_add_f32 %s, %s, 1.0 op_sel_hi:[1,0]" % (P(tmp + 2 * p), P(tmp + 2 * p)))
    for p in range(n):
        a("v_rcp_f32 v%d, v%d" % (tmp + 2 * p, tmp + 2 * p))
        a("v_rcp_f32 v%d, v%d" % (tmp + 2 * p + 1, tmp + 2 * p + 1))
    for p in range(n):
        a("v_pk_mul_f32 %s, %s, %s" % (P(regs[p]), P(regs[p]), P(tmp + 2 * p)))


def epi_store_addr(a, c, ld, vdst, n_i, shift_sgpr=None):
    a("v_and_b32 v2, 31, v1")
    a("v_add_u32 v2, s%d, v2" % S_ROW0)
    if shift_sgpr is not None:
        a("v_add_u32 v2, s%d, v2" % shift_sgpr)
    if c.big:
        a("s_lshl_b32 s%d, s%d, 6" % (S_T0, S_WAVE))
    else:
        a("s_lshr_b32 s%d, s%d, 1" % (S_T1, S_WAVE))
        a("s_lshl_b32 s%d, s%d, 6" % (S_T1, S_T1))
        a("v_add_u32 v2, s%d, v2" % S_T1)
        a("s_and_b32 s%d, s%d, 1" % (S_T0, S_WAVE))
        a("s_lshl_b32 s%d, s%d, 5" % (S_T0, S_T0))
    a("s_add_u32 s%d, s%d, s%d" % (S_T0, S_T0, S_COL0))
    a("s_lshl_b32 s%d, s%d, 1" % (S_T0, S_T0))
    a("s_mov_b32 s%d, %d" % (S_T1, ld))
    a("v_mul_lo_u32 v2, v2, s%d" % S_T1)
    a("v_lshrrev_b32 v3, 5, v1")
    a("v_lshl_add_u32 v2, v3, 4, v2")
    a("v_add_u32 v%d, s%d, v2" % (vdst, S_T0))
    for i in range(1, n_i):
        a("v_add_u32 v%d, 0x%x, v%d" % (vdst + i, 32 * ld * i, vdst))


S_STOFF = 86
NI_EPI = 4


def xfer_send(a):
    if NI_EPI == 4:
        a("s_mov_b32 s%d, 0" % S_STOFF)
        a("s_nop 15")
        return
    a("s_lshl_b32 s%d, s%d, 14" % (S_T0, S_WAVE))
    a("v_lshlrev_b32 v2, 4, v1")
    a("v_add_u32 v2, s%d, v2" % S_T0)
    a("s_mov_b32 s%d, 0" % S_STOFF)
    a("s_nop 15")
    for q in range(16):
        a("ds_write_b128 v2, v[%d:%d] offset:%d" % (V_ACC + 64 + 4 * q, V_ACC + 67 + 4 * q, 1024 * q))


def xfer_recv(a):
    a("s_lshl_b32 s%d, s%d, 14" % (S_T0, S_LW))
    a("v_lshlrev_b32 v2, 4, v1")
    a("v_add_u32 v2, s%d, v2" % S_T0)
    for q in range(16):
        a("ds_read_b128 v[%d:%d], v2 offset:%d" % (V_ACC + 4 * q, V_ACC + 3 + 4 * q, 1024 * q))
    a("s_mov_b32 s%d, s%d" % (S_WAVE, S_LW))
    a("s_add_u32 s%d, s%d, 64" % (S_ROW0, S_ROW0))
    a("s_mov_b32 s%d, 512" % S_STOFF)
    a("s_waitcnt lgkmcnt(0)")


def epi_ln_gelu(a, c, srd, ld, shift_sgpr):
    VST, VSTAT, VCS, VC, VT, VP = 4, 8, 16, 48, 64, 96
    epi_store_addr(a, c, ld, VST, NI_EPI, shift_sgpr)
    a("v_and_b32 v2, 31, v1")
    a("v_lshlrev_b32 v2, 3, v2")
    a("v_add_u32 v2, %d, v2" % c.LDS_STATS)
    a("v_add_u32 v2, s%d, v2" % S_STOFF)
    for i in range(NI_EPI):
        a("ds_read_b64 v[%d:%d], v2 offset:%d" % (VSTAT + 2 * i, VSTAT + 2 * i + 1, 256 * i))
    a("v_lshrrev_b32 v3, 5, v1")
    a("v_lshlrev_b32 v3, 4, v3")
    a("s_lshl_b32 s%d, s%d, 8" % (S_T0, S_WAVE))
    a("v_add_u32 v3, s%d, v3" % S_T0)
    a("v_add_u32 v3, %d, v3" % c.LDS_CS)
    for j in range(2):
        for g in range(4):
            a("ds_read_b128 v[%d:%d], v3 offset:%d" % (VCS + 16 * j + 4 * g, VCS + 16 * j + 4 * g + 3, 128 * j + 32 * g))
    a("v_mov_b32 v%d, %s" % (VC, f32(GC1)))
    a("v_mov_b32 v%d, %s" % (VC + 1, f32(GC0)))
    a("s_waitcnt lgkmcnt(0)")
    if "nolines" not in EXP:
        epi_lines(a, c, srd, ld, shift_sgpr,
                  lambda i, j, acc: ln_gelu_inplace(a, [acc + 2 * p for p in range(8)], VT, VSTAT + 2 * i, VCS + 16 * j, VC),
                  96, 80, 52, 56, 57, 58)
        return
    n = 0
    for i in range(NI_EPI):
        for j in range(2):
            acc = V_ACC + 16 * (i * 2 + j)
            ln_gelu_inplace(a, [acc + 2 * p for p in range(8)], VT, VSTAT + 2 * i, VCS + 16 * j, VC)
            pack_swap_store(a, acc, VP + 8 * (n & 1), VST + i, srd, 64 * j)
            n += 1


def epi_phi_q(a, c, srd, ld):
    VST, VC, VT, VP = 4, 48, 64, 96
    epi_store_addr(a, c, ld, VST, NI_EPI)
    a("v_mov_b32 v%d, %s" % (VC, f32(LOG2E)))
    a("v_mov_b32 v%d, %s" % (VC + 1, f32(1e-6)))
    if "nolines" not in EXP:
        epi_lines(a, c, srd, ld, None,
                  lambda i, j, acc: phi_inplace(a, [acc + 2 * p for p in range(8)], VT, VC),
                  96, 80, 52, 56, 57, 58)
        return
    n = 0
    for i in range(NI_EPI):
        for j in range(2):
            acc = V_ACC + 16 * (i * 2 + j)
            phi_inplace(a, [acc + 2 * p for p in range(8)], VT, VC)
            pack_swap_store(a, acc, VP + 8 * (n & 1), VST + i, srd, 64 * j)
            n += 1


def epi_kv(a, c):
    VC, VT, VPK, VV, VONE, VKV, VZ = 48, 64, 16, 24, 32, 80, 96
    a("v_mov_b32 v%d, %s" % (VC, f32(LOG2E)))
    a("v_mov_b32 v%d, %s" % (VC + 1, f32(1e-6)))
    for r in range(4):
        a("v_mov_b32 v%d, 0x3f803f80" % (VONE + r))
    zero_acc(a, VKV, 32)
    for i in range(4):
        kacc = V_ACC + 32 * i
        vacc = kacc + 16
        phi_inplace(a, [kacc + 2 * p for p in range(8)], VT, VC)
        for p in range(8):
            a("v_cvt_pk_bf16_f32 v%d, v%d, v%d" % (VPK + p, kacc + 2 * p, kacc + 2 * p + 1))
        for p in range(8):
            a("v_cvt_pk_bf16_f32 v%d, v%d, v%d" % (VV + p, vacc + 2 * p, vacc + 2 * p + 1))
        a("s_nop 1")
        for m in range(2):
            a("v_mfma_f32_32x32x16_bf16 v[%d:%d], v[%d:%d], v[%d:%d], v[%d:%d]" % (VKV, VKV + 15, VPK + 4 * m, VPK + 4 * m + 3, VV + 4 * m, VV + 4 * m + 3, VKV, VKV + 15))
            a("v_mfma_f32_32x32x16_bf16 v[%d:%d], v[%d:%d], v[%d:%d], v[%d:%d]" % (VZ, VZ + 15, VPK + 4 * m, VPK + 4 * m + 3, VONE, VONE + 3, VZ, VZ + 15))
    a("s_sub_u32 s%d, s%d, 4" % (S_T0, S_CT))
    a("s_lshl_b32 s%d, s%d, 2" % (S_T0, S_T0))
    a("s_add_u32 s%d, s%d, s%d" % (S_T0, S_T0, S_WAVE))
    a("s_lshl_b32 s%d, s%d, 5" % (S_T1, S_RB))
    a("s_add_u32 s%d, s%d, s%d" % (S_T0, S_T0, S_T1))
    a("s_lshl_b32 s%d, s%d, 12" % (S_T1, S_T0))
    a("s_lshl_b32 s%d, s%d, 7" % (S_T2, S_T0))
    a("v_and_b32 v2, 31, v1")
    a("v_lshrrev_b32 v3, 5, v1")
    a("v_lshlrev_b32 v3, 4, v3")
    a("v_lshl_add_u32 v4, v2, 7, v3")
    a("v_add_u32 v4, s%d, v4" % S_T1)
    a("v_add_u32 v5, s%d, v3" % S_T2)
    a("v_cmp_eq_u32 vcc, 0, v2")
    a("s_nop 15")
    for g in range(4):
        a("buffer_store_dwordx4 v[%d:%d], v4, s[%d:%d], 0 offen offset:%d" % (VKV + 4 * g, VKV + 4 * g + 3, SRD_D, SRD_D + 3, 32 * g))
    a("s_and_saveexec_b64 s[%d:%d], vcc" % (S_EXEC, S_EXEC + 1))
    for g in range(4):
        a("buffer_store_dwordx4 v[%d:%d], v5, s[%d:%d], 0 offen offset:%d" % (VZ + 4 * g, VZ + 4 * g + 3, SRD_E, SRD_E + 3, 32 * g))
    a("s_mov_b64 exec, s[%d:%d]" % (S_EXEC, S_EXEC + 1))


def gen_k1(a):
    name = "k1_kernel"
    c = Cfg(256, 3)
    kernel_header(a, name, 256)
    a("s_and_b32 s%d, s%d, 1" % (S_T0, S_XCD))
    a("s_lshl_b32 s%d, s%d, 3" % (S_T0, S_T0))
    a("s_and_b32 s%d, s%d, 7" % (S_T1, S_J))
    a("s_add_u32 s%d, s%d, s%d" % (S_RB, S_T0, S_T1))
    a("s_lshr_b32 s%d, s%d, 1" % (S_T0, S_XCD))
    a("s_lshl_b32 s%d, s%d, 2" % (S_T0, S_T0))
    a("s_lshr_b32 s%d, s%d, 3" % (S_T1, S_J))
    a("s_add_u32 s%d, s%d, s%d" % (S_CT, S_T0, S_T1))
    a("s_lshl_b32 s%d, s%d, 7" % (S_ROW0, S_RB))
    a("s_waitcnt lgkmcnt(0)")
    make_srd(a, SRD_A, P_X, 0, S * D * 2)
    make_srd(a, SRD_D, P_WS, WS_KVP, 2 * MB)
    make_srd(a, SRD_E, P_WS, WS_ZP, 65536)
    lq, lkv, lw1, ldone = "L_k1_tq", "L_k1_tkv", "L_k1_tw1", "L_k1_tdone"
    a("s_cmp_lt_u32 s%d, 4" % S_CT)
    a("s_cbranch_scc1 %s" % lq)
    a("s_cmp_lt_u32 s%d, 12" % S_CT)
    a("s_cbranch_scc1 %s" % lkv)
    a.label(lw1)
    a("s_mov_b32 s%d, 2" % S_TYPE)
    make_srd(a, SRD_B, P_W1, 0, D * D * 2)
    make_srd(a, SRD_C, P_WS, WS_HS, S * D * 2)
    a("s_mov_b32 s%d, 2048" % S_LDB)
    a("s_sub_u32 s%d, s%d, 12" % (S_T0, S_CT))
    a("s_lshl_b32 s%d, s%d, 8" % (S_COL0, S_T0))
    a("s_mov_b32 s%d, 32" % S_SA)
    a("s_mov_b32 s%d, 64" % S_SB)
    a("s_lshr_b32 s%d, s%d, 1" % (S_T1, S_T0))
    a("s_add_u32 s%d, s%d, 1" % (S_T1, S_T1))
    a("s_sub_u32 s%d, 0, s%d" % (S_T2, S_T1))
    a("s_and_b32 s%d, s%d, 1" % (S_T0, S_T0))
    a("s_cmp_eq_u32 s%d, 0" % S_T0)
    a("s_cselect_b32 s%d, s%d, s%d" % (S_SHIFT, S_T1, S_T2))
    a("s_branch %s" % ldone)
    a.label(lq)
    a("s_mov_b32 s%d, 0" % S_TYPE)
    make_srd(a, SRD_B, P_WQKV, 0, D * 3 * D * 2)
    make_srd(a, SRD_C, P_WS, WS_PQ, S * D * 2)
    a("s_mov_b32 s%d, 6144" % S_LDB)
    a("s_lshl_b32 s%d, s%d, 8" % (S_COL0, S_CT))
    a("s_mov_b32 s%d, 32" % S_SA)
    a("s_mov_b32 s%d, 64" % S_SB)
    a("s_mov_b32 s%d, 0" % S_SHIFT)
    a("s_branch %s" % ldone)
    a.label(lkv)
    a("s_mov_b32 s%d, 1" % S_TYPE)
    make_srd(a, SRD_B, P_WQKV, 0, D * 3 * D * 2)
    make_srd(a, SRD_C, P_WS, WS_PQ, S * D * 2)
    a("s_mov_b32 s%d, 6144" % S_LDB)
    a("s_sub_u32 s%d, s%d, 4" % (S_T0, S_CT))
    a("s_lshl_b32 s%d, s%d, 7" % (S_T0, S_T0))
    a("s_add_u32 s%d, s%d, 1024" % (S_COL0, S_T0))
    a("s_mov_b32 s%d, 1024" % S_SA)
    a("s_mov_b32 s%d, 32" % S_SB)
    a("s_mov_b32 s%d, 0" % S_SHIFT)
    a.label(ldone)
    a("s_cmp_ge_u32 s%d, 4" % S_WAVE)
    a("s_cbranch_scc1 L_k1_loader")
    a("s_or_b32 s%d, s2, s%d" % (S_T0, S_WAVE))
    a("s_cmp_lg_u32 s%d, 0" % S_T0)
    a("s_cbranch_scc1 L_k1_noclr")
    make_srd(a, SRD_F, P_WS, WS_FLAG, 8192)
    a("v_lshlrev_b32 v2, 4, v1")
    for r in range(4):
        a("v_mov_b32 v%d, 0" % (4 + r))
    for t in range(4):
        a("buffer_store_dwordx4 v[4:7], v2, s[%d:%d], 0 offen offset:%d" % (SRD_F, SRD_F + 3, 1024 * t))
    a("v_add_u32 v2, 4096, v2")
    for t in range(4):
        a("buffer_store_dwordx4 v[4:7], v2, s[%d:%d], 0 offen offset:%d" % (SRD_F, SRD_F + 3, 1024 * t))
    a("s_nop 1")
    a.label("L_k1_noclr")
    PF = "nopf" not in EXP
    if PF and "k1nox" not in EXP:
        a("v_lshlrev_b32 v%d, 7, v1" % V_PF)
        prefetch_jobs(a, [(P_X, S * D * 2)])
    compute_addr_setup(a, c)
    zero_acc(a, V_ACC, 128)
    pf = None
    PF0 = 0
    for e in EXP:
        if e.startswith("pf0_"): PF0 = int(e[4:])
    if PF and "k1nolate" not in EXP:
        pf = pf_stream_setup(a, [(P_W2, D * D * 2, 0, 1), (P_W3, D * F * 2, 0, 3), (P_W3, D * F * 2, 1, 3), (P_W3, D * F * 2, 2, 3)], 16 - PF0)
    compute_start(a, c)
    a("s_cmp_eq_u32 s%d, 1" % S_TYPE)
    a("s_cbranch_scc1 L_k1_kvloop")
    if PF0:
        compute_loop(a, c, PF0, V_ACC, True, None)
    compute_loop(a, c, 16 - PF0, V_ACC, True, pf)
    stamp(a, 2)
    a("s_waitcnt lgkmcnt(0)")
    xfer_send(a)
    a("s_waitcnt lgkmcnt(0)")
    a("s_barrier")
    a.label("L_k1_epi")
    a("s_cmp_eq_u32 s%d, 0" % S_TYPE)
    a("s_cbranch_scc1 L_k1_epq")
    epi_ln_gelu(a, c, SRD_C, 2048, S_SHIFT)
    a("s_branch L_%s_cdone" % name)
    a.label("L_k1_epq")
    epi_phi_q(a, c, SRD_C, 2048)
    a("s_branch L_%s_cdone" % name)
    a.label("L_k1_kvloop")
    if PF0:
        compute_loop(a, c, PF0, V_ACC, False, None)
    compute_loop(a, c, 16 - PF0, V_ACC, False, pf)
    stamp(a, 2)
    a("s_waitcnt lgkmcnt(0)")
    a("s_barrier")
    a("s_nop 15")
    epi_kv(a, c)
    a("s_branch L_%s_cdone" % name)
    a.label("L_k1_loader")
    a("s_sub_u32 s%d, s%d, 4" % (S_LW, S_WAVE))
    loader_a_offsets(a, V_LA, 2048)
    loader_b_offsets_big(a, V_LB)
    a("s_cmp_eq_u32 s%d, 2" % S_TYPE)
    a("s_cselect_b32 s%d, 1, 0" % S_C0)
    loader_loop(a, c, [(16, SRD_A, SRD_B, V_LA, V_LB, "s_lshl_b32 s%d, s%d, 6" % (S_KBSTEP, S_LDB))], S_C0)
    a("s_cmp_eq_u32 s%d, 0" % S_C0)
    a("s_cbranch_scc1 L_k1_nofin")
    stats_finish(a, c)
    a("s_cmp_lg_u32 s%d, 0" % S_LW)
    a("s_cbranch_scc1 L_k1_nofin")
    a("s_cmp_gt_i32 s%d, 0" % S_SHIFT)
    a("s_cselect_b32 s%d, 0, 15" % S_T0)
    a("s_cmp_lg_u32 s%d, s%d" % (S_T0, S_RB))
    a("s_cbranch_scc1 L_k1_nofin")
    a("s_cmp_gt_i32 s%d, 0" % S_SHIFT)
    a("s_cselect_b32 s%d, 0, 2046" % S_T0)
    a("s_cselect_b32 s%d, s%d, 0" % (S_T1, S_SHIFT))
    a("v_lshrrev_b32 v3, 5, v1")
    a("v_add_u32 v3, s%d, v3" % S_T0)
    a("v_and_b32 v4, 31, v1")
    a("v_lshlrev_b32 v4, 4, v4")
    a("v_lshl_add_u32 v4, v3, 11, v4")
    a("s_lshl_b32 s%d, s%d, 1" % (S_T2, S_COL0))
    a("v_add_u32 v4, s%d, v4" % S_T2)
    a("s_add_u32 s%d, s%d, 2048" % (S_T2, S_SHIFT))
    a("s_cmp_gt_i32 s%d, 0" % S_SHIFT)
    a("s_cselect_b32 s%d, 0, s%d" % (S_T2, S_T2))
    a("s_cselect_b32 s%d, s%d, 2048" % (S_T1, S_SHIFT))
    a("v_cmp_le_u32 vcc, s%d, v3" % S_T2)
    a("v_cmp_gt_u32 s[%d:%d], s%d, v3" % (S_C0 + 2, S_C0 + 3, S_T1))
    a("v_mov_b32 v8, 0")
    a("v_mov_b32 v9, 0")
    a("v_mov_b32 v10, 0")
    a("v_mov_b32 v11, 0")
    a("s_and_b64 vcc, vcc, s[%d:%d]" % (S_C0 + 2, S_C0 + 3))
    a("s_and_saveexec_b64 s[%d:%d], vcc" % (S_EXEC, S_EXEC + 1))
    a("buffer_store_dwordx4 v[8:11], v4, s[%d:%d], 0 offen" % (SRD_C, SRD_C + 3))
    a("s_mov_b64 exec, s[%d:%d]" % (S_EXEC, S_EXEC + 1))
    a.label("L_k1_nofin")
    a("s_barrier")
    if NI_EPI == 2:
        a("s_cmp_eq_u32 s%d, 1" % S_TYPE)
        a("s_cbranch_scc1 L_%s_ldone" % name)
        xfer_recv(a)
        a("s_branch L_k1_epi")
    kernel_footer(a, name)
    descriptor(a, name)
    return name, 256, c.LDS_TOTAL


def small_tile_decode(a):
    a("s_and_b32 s%d, s%d, 3" % (S_T0, S_XCD))
    a("s_lshl_b32 s%d, s%d, 2" % (S_T0, S_T0))
    a("s_and_b32 s%d, s%d, 3" % (S_T1, S_J))
    a("s_add_u32 s%d, s%d, s%d" % (S_RB, S_T0, S_T1))
    a("s_lshr_b32 s%d, s%d, 2" % (S_T0, S_XCD))
    a("s_lshl_b32 s%d, s%d, 3" % (S_T0, S_T0))
    a("s_lshr_b32 s%d, s%d, 2" % (S_T1, S_J))
    a("s_add_u32 s%d, s%d, s%d" % (S_CT, S_T0, S_T1))
    a("s_lshl_b32 s%d, s%d, 7" % (S_ROW0, S_RB))
    a("s_lshl_b32 s%d, s%d, 6" % (S_COL0, S_CT))


def load_resid(a, c, dst, vaddr, srd, fl=""):
    for g in range(4):
        a("buffer_load_dwordx2 v[%d:%d], v%d, s[%d:%d], 0 offen offset:%d%s" % (dst + 2 * g, dst + 2 * g + 1, vaddr, srd, srd + 3, 16 * g, fl))


def unpack_bf16(a, dst, src, n):
    for p in range(n):
        a("v_lshlrev_b32 v%d, 16, v%d" % (dst + 2 * p, src + p))
        a("v_and_b32 v%d, 0xffff0000, v%d" % (dst + 2 * p + 1, src + p))


def round_regs_bf16(a, regs, n, tmp):
    for p in range(n // 2):
        a("v_cvt_pk_bf16_f32 v%d, v%d, v%d" % (tmp + p, regs + 2 * p, regs + 2 * p + 1))
    unpack_bf16(a, regs, tmp, n // 2)


def kv_reduce(a):
    lz, ldone, lcs = "L_k2_zred", "L_k2_reddone", "L_k2_cs"
    a("s_cmp_eq_u32 s%d, 1" % S_WAVE)
    a("s_cbranch_scc1 %s" % lz)
    a("s_cmp_lg_u32 s%d, 0" % S_WAVE)
    a("s_cbranch_scc1 %s" % lcs)
    make_srd(a, SRD_E, P_WS, WS_KVP, 2 * MB)
    make_srd(a, SRD_F, P_WS, WS_KVB, 65536)
    a("v_and_b32 v2, 31, v1")
    a("v_lshrrev_b32 v3, 5, v1")
    a("v_lshlrev_b32 v3, 20, v3")
    a("v_lshl_add_u32 v3, v2, 4, v3")
    a("s_lshl_b32 s%d, s2, 9" % S_T0)
    a("v_add_u32 v3, s%d, v3" % S_T0)
    for r in range(8):
        a("s_mov_b32 s%d, 0x%x" % (S_T1, r * 131072))
        a("buffer_load_dwordx4 v[%d:%d], v3, s[%d:%d], s%d offen" % (16 + 4 * r, 19 + 4 * r, SRD_E, SRD_E + 3, S_T1))
    a("s_waitcnt vmcnt(0)")
    for r in range(1, 8):
        a("v_pk_add_f32 v[16:17], v[16:17], v[%d:%d]" % (16 + 4 * r, 17 + 4 * r))
        a("v_pk_add_f32 v[18:19], v[18:19], v[%d:%d]" % (18 + 4 * r, 19 + 4 * r))
    for r in range(4):
        a("v_mov_b32 v%d, v%d" % (20 + r, 16 + r))
    a("s_nop 1")
    for r in range(4):
        a("v_permlane32_swap_b32 v%d, v%d" % (16 + r, 20 + r))
    a("s_nop 1")
    a("v_pk_add_f32 v[16:17], v[16:17], v[20:21]")
    a("v_pk_add_f32 v[18:19], v[18:19], v[22:23]")
    a("v_cvt_pk_bf16_f32 v16, v16, v17")
    a("v_cvt_pk_bf16_f32 v17, v18, v19")
    a("s_lshl_b32 s%d, s2, 8" % S_T0)
    a("v_lshlrev_b32 v2, 3, v2")
    a("v_add_u32 v2, s%d, v2" % S_T0)
    a("s_mov_b32 exec_hi, 0")
    a("buffer_store_dwordx2 v[16:17], v2, s[%d:%d], 0 offen%s" % (SRD_F, SRD_F + 3, HO))
    a("s_mov_b64 exec, -1")
    a("s_branch %s" % ldone)
    a.label(lz)
    a("s_and_b32 s%d, s2, 7" % S_T0)
    a("s_cmp_lg_u32 s%d, 0" % S_T0)
    a("s_cbranch_scc1 %s" % ldone)
    make_srd(a, SRD_E, P_WS, WS_ZP, 65536)
    make_srd(a, SRD_F, P_WS, WS_ZB, 2048)
    a("v_and_b32 v2, 7, v1")
    a("v_lshrrev_b32 v3, 3, v1")
    a("v_lshlrev_b32 v3, 12, v3")
    a("v_lshl_add_u32 v3, v2, 4, v3")
    a("s_lshl_b32 s%d, s2, 4" % S_T0)
    a("v_add_u32 v3, s%d, v3" % S_T0)
    a("s_mov_b32 s%d, 0x8000" % S_T1)
    a("buffer_load_dwordx4 v[16:19], v3, s[%d:%d], 0 offen" % (SRD_E, SRD_E + 3))
    a("buffer_load_dwordx4 v[20:23], v3, s[%d:%d], s%d offen" % (SRD_E, SRD_E + 3, S_T1))
    a("s_waitcnt vmcnt(0)")
    a("v_pk_add_f32 v[16:17], v[16:17], v[20:21]")
    a("v_pk_add_f32 v[18:19], v[18:19], v[22:23]")
    for pat in (0x201F, 0x401F):
        for r in range(4):
            a("ds_swizzle_b32 v%d, v%d offset:0x%x" % (20 + r, 16 + r, pat))
        a("s_waitcnt lgkmcnt(0)")
        a("v_pk_add_f32 v[16:17], v[16:17], v[20:21]")
        a("v_pk_add_f32 v[18:19], v[18:19], v[22:23]")
    for r in range(4):
        a("v_mov_b32 v%d, v%d" % (20 + r, 16 + r))
    a("s_nop 1")
    for r in range(4):
        a("v_permlane32_swap_b32 v%d, v%d" % (16 + r, 20 + r))
    a("s_nop 1")
    a("v_pk_add_f32 v[16:17], v[16:17], v[20:21]")
    a("v_pk_add_f32 v[18:19], v[18:19], v[22:23]")
    a("v_cvt_pk_bf16_f32 v16, v16, v17")
    a("v_cvt_pk_bf16_f32 v17, v18, v19")
    a("s_lshl_b32 s%d, s2, 3" % S_T0)
    a("v_lshlrev_b32 v2, 3, v2")
    a("v_add_u32 v2, s%d, v2" % S_T0)
    a("s_mov_b64 exec, 0xff")
    a("buffer_store_dwordx2 v[16:17], v2, s[%d:%d], 0 offen%s" % (SRD_F, SRD_F + 3, HO))
    a("s_mov_b64 exec, -1")
    a("s_branch %s" % ldone)
    a.label(lcs)
    a("s_cmp_ge_u32 s2, 224")
    a("s_cbranch_scc1 %s" % ldone)
    make_srd(a, SRD_E, P_W3, 0, D * F * 2)
    make_srd(a, SRD_F, P_WS, WS_CSP, 8 * F * 4)
    a("s_lshl_b32 s%d, s2, 1" % S_T0)
    a("s_add_u32 s%d, s%d, s%d" % (S_T0, S_T0, S_WAVE))
    a("s_sub_u32 s%d, s%d, 2" % (S_T0, S_T0))
    a("s_mul_i32 s%d, s%d, 1171" % (S_T1, S_T0))
    a("s_lshr_b32 s%d, s%d, 16" % (S_T1, S_T1))
    a("s_mul_i32 s%d, s%d, 56" % (S_T2, S_T1))
    a("s_sub_u32 s%d, s%d, s%d" % (S_T2, S_T0, S_T2))
    a("v_lshrrev_b32 v3, 3, v1")
    a("s_lshl_b32 s%d, s%d, 7" % (S_T0, S_T1))
    a("v_add_u32 v3, s%d, v3" % S_T0)
    a("s_mov_b32 s%d, %d" % (S_T0, F * 2))
    a("v_mul_lo_u32 v3, v3, s%d" % S_T0)
    a("v_and_b32 v2, 7, v1")
    a("v_lshl_add_u32 v3, v2, 4, v3")
    a("s_lshl_b32 s%d, s%d, 7" % (S_T0, S_T2))
    a("v_add_u32 v3, s%d, v3" % S_T0)
    for t in range(16):
        a("s_mov_b32 s%d, %d" % (S_T0, t * 8 * F * 2))
        a("buffer_load_dwordx4 v[%d:%d], v3, s[%d:%d], s%d offen" % (32 + 4 * t, 35 + 4 * t, SRD_E, SRD_E + 3, S_T0))
    for r in range(8):
        a("v_mov_b32 v%d, 0" % (16 + r))
    for t in range(16):
        a("s_waitcnt vmcnt(%d)" % (15 - t))
        unpack_bf16(a, 24, 32 + 4 * t, 4)
        for q in range(4):
            a("v_pk_add_f32 v[%d:%d], v[%d:%d], v[%d:%d]" % (16 + 2 * q, 17 + 2 * q, 16 + 2 * q, 17 + 2 * q, 24 + 2 * q, 25 + 2 * q))
    for pat in (0x201F, 0x401F):
        for r in range(8):
            a("ds_swizzle_b32 v%d, v%d offset:0x%x" % (24 + r, 16 + r, pat))
        a("s_waitcnt lgkmcnt(0)")
        for q in range(4):
            a("v_pk_add_f32 v[%d:%d], v[%d:%d], v[%d:%d]" % (16 + 2 * q, 17 + 2 * q, 16 + 2 * q, 17 + 2 * q, 24 + 2 * q, 25 + 2 * q))
    for r in range(8):
        a("v_mov_b32 v%d, v%d" % (24 + r, 16 + r))
    a("s_nop 1")
    for r in range(8):
        a("v_permlane32_swap_b32 v%d, v%d" % (16 + r, 24 + r))
    a("s_nop 1")
    for q in range(4):
        a("v_pk_add_f32 v[%d:%d], v[%d:%d], v[%d:%d]" % (16 + 2 * q, 17 + 2 * q, 16 + 2 * q, 17 + 2 * q, 24 + 2 * q, 25 + 2 * q))
    a("s_mul_i32 s%d, s%d, %d" % (S_T0, S_T1, F * 4))
    a("s_lshl_b32 s%d, s%d, 8" % (S_T2, S_T2))
    a("s_add_u32 s%d, s%d, s%d" % (S_T0, S_T0, S_T2))
    a("v_lshlrev_b32 v2, 5, v2")
    a("v_add_u32 v2, s%d, v2" % S_T0)
    a("s_mov_b64 exec, 0xff")
    a("buffer_store_dwordx4 v[16:19], v2, s[%d:%d], 0 offen%s" % (SRD_F, SRD_F + 3, HO))
    a("buffer_store_dwordx4 v[20:23], v2, s[%d:%d], 0 offen offset:16%s" % (SRD_F, SRD_F + 3, HO))
    a("s_mov_b64 exec, -1")
    a("s_nop 1")
    a.label(ldone)


def gen_k2(a):
    name = "k2_kernel"
    c = Cfg(64, 6)
    kernel_header(a, name, 256)
    small_tile_decode(a)
    a("s_waitcnt lgkmcnt(0)")
    make_srd(a, SRD_A, P_WS, WS_HS, S * D * 2)
    make_srd(a, SRD_B, P_W2, 0, D * D * 2)
    make_srd(a, SRD_C, P_WS, WS_X1, S * D * 2)
    make_srd(a, SRD_D, P_X, 0, S * D * 2)
    a("s_cmp_ge_u32 s%d, 4" % S_WAVE)
    a("s_cbranch_scc1 L_k2_loader")
    kv_reduce(a)
    VST, VLD, VX = 200, 204, 208
    epi_store_addr(a, c, 2048, VST, 2)
    a("v_lshrrev_b32 v3, 5, v1")
    a("v_lshlrev_b32 v3, 3, v3")
    for i in range(2):
        a("v_sub_u32 v%d, v%d, v3" % (VLD + i, VST + i))
    for i in range(2):
        load_resid(a, c, VX + 8 * i, VLD + i, SRD_D)
    compute_addr_setup(a, c)
    zero_acc(a, V_ACC, 32)
    pf = None
    if "nopf" not in EXP:
        pf = pf_stream_setup(a, [(P_WO, D * D * 2, w, 4) for w in range(4)], 16)
    compute_start(a, c)
    compute_loop(a, c, 16, V_ACC, True, pf)
    stamp(a, 2)
    a("s_waitcnt vmcnt(0) lgkmcnt(0)")
    a("s_nop 15")
    for i in range(2):
        acc = V_ACC + 16 * i
        round_regs_bf16(a, acc, 16, 16)
        unpack_bf16(a, 32, VX + 8 * i, 8)
        for p in range(8):
            a("v_pk_add_f32 v[%d:%d], v[%d:%d], v[%d:%d]" % (acc + 2 * p, acc + 2 * p + 1, acc + 2 * p, acc + 2 * p + 1, 32 + 2 * p, 33 + 2 * p))
        pack_swap_store(a, acc, 48 + 8 * i, VST + i, SRD_C, 0)
    make_srd(a, SRD_E, P_WS, WS_XS, S * 256)
    a("v_mov_b32 v64, 0x3f803f80")
    for i in range(2):
        for r in range(4):
            a("v_mov_b32 v%d, 0" % (68 + 4 * i + r))
    for p in range(8):
        for i in range(2):
            b = 68 + 4 * i + 2 * (p & 1)
            a("v_dot2_f32_bf16 v%d, v%d, v64, v%d" % (b, 48 + 8 * i + p, b))
            a("v_dot2_f32_bf16 v%d, v%d, v%d, v%d" % (b + 1, 48 + 8 * i + p, 48 + 8 * i + p, b + 1))
    a("s_lshl_b32 s%d, s%d, 1" % (S_T0, S_CT))
    a("s_and_b32 s%d, s%d, 1" % (S_T1, S_WAVE))
    a("s_add_u32 s%d, s%d, s%d" % (S_T0, S_T0, S_T1))
    a("s_lshl_b32 s%d, s%d, 3" % (S_T0, S_T0))
    a("s_nop 1")
    for i in range(2):
        b = 68 + 4 * i
        a("v_pk_add_f32 v[%d:%d], v[%d:%d], v[%d:%d]" % (b, b + 1, b, b + 1, b + 2, b + 3))
        a("v_mov_b32 v%d, v%d" % (b + 2, b))
        a("v_mov_b32 v%d, v%d" % (b + 3, b + 1))
        a("s_nop 1")
        a("v_permlane32_swap_b32 v%d, v%d" % (b, b + 2))
        a("v_permlane32_swap_b32 v%d, v%d" % (b + 1, b + 3))
        a("s_nop 1")
        a("v_pk_add_f32 v[%d:%d], v[%d:%d], v[%d:%d]" % (b, b + 1, b, b + 1, b + 2, b + 3))
        a("v_lshrrev_b32 v3, 11, v%d" % (VST + i))
        a("v_lshlrev_b32 v3, 8, v3")
        a("v_add_u32 v3, s%d, v3" % S_T0)
        a("buffer_store_dwordx2 v[%d:%d], v3, s[%d:%d], 0 offen" % (b, b + 1, SRD_E, SRD_E + 3))
    a("s_branch L_%s_cdone" % name)
    a.label("L_k2_loader")
    a("s_sub_u32 s%d, s%d, 4" % (S_LW, S_WAVE))
    loader_a_offsets(a, V_LA, 2048)
    loader_b_offsets_small(a, V_LB, 2048)
    loader_loop(a, c, [(16, SRD_A, SRD_B, V_LA, V_LB, 64 * 2048)], None)
    kernel_footer(a, name, 1)
    descriptor(a, name)
    return name, 256, c.LDS_TOTAL


def k3_stats_from_partials(a, c):
    k3_stats_issue(a, c, S_WAVE)
    k3_stats_fin(a, c, S_WAVE)


def k3_stats_issue(a, c, S_WAVE):
    make_srd(a, SRD_D, P_WS, WS_XS, 256 * 1024)
    make_srd(a, SRD_E, P_WS, WS_CSP, 8 * F * 4)
    a("v_and_b32 v2, 31, v1")
    a("s_lshl_b32 s%d, s%d, 8" % (S_T0, S_WAVE))
    a("s_lshl_b32 s%d, s%d, 14" % (S_T1, S_RB))
    a("s_add_u32 s%d, s%d, s%d" % (S_T0, S_T0, S_T1))
    a("v_lshlrev_b32 v2, 3, v2")
    a("v_add_u32 v2, s%d, v2" % S_T0)
    a("v_lshrrev_b32 v3, 5, v1")
    a("v_lshl_add_u32 v2, v3, 13, v2")
    a("v_add_u32 v4, 4096, v2")
    for t in range(8):
        a("buffer_load_dwordx2 v[%d:%d], v%d, s[%d:%d], 0 offen offset:%d%s" % (64 + 2 * t, 65 + 2 * t, 2 if t < 4 else 4, SRD_D, SRD_D + 3, 1024 * (t & 3), HO))
    a("s_lshl_b32 s%d, s%d, 6" % (S_T0, S_WAVE))
    a("s_add_u32 s%d, s%d, s%d" % (S_T0, S_T0, S_COL0))
    a("v_add_u32 v3, s%d, v1" % S_T0)
    a("v_lshlrev_b32 v3, 2, v3")
    for t in range(8):
        a("s_mov_b32 s%d, %d" % (S_T1, t * F * 4))
        a("buffer_load_dword v%d, v3, s[%d:%d], s%d offen%s" % (96 + t, SRD_E, SRD_E + 3, S_T1, HO))


def k3_stats_fin(a, c, S_WAVE):
    a("s_waitcnt vmcnt(0)")
    for t in range(1, 8):
        a("v_pk_add_f32 v[64:65], v[64:65], v[%d:%d]" % (64 + 2 * t, 65 + 2 * t))
    for t in range(1, 8):
        a("v_add_f32 v96, v96, v%d" % (96 + t))
    a("v_mov_b32 v%d, v64" % V_SUM)
    a("v_mov_b32 v%d, v65" % V_SQ)
    a("v_mov_b32 v%d, v96" % V_CS0)
    for r in (V_SUM2, V_SQ2, V_CS1):
        a("v_mov_b32 v%d, 0" % r)
    stats_finish(a, c, S_WAVE)


def gen_k3(a):
    name = "k3_kernel"
    c = Cfg(256, 3)
    kernel_header(a, name, 256)
    a("s_cmp_ge_u32 s%d, 28" % S_J)
    a("s_cbranch_scc1 L_k3_owg")
    a("s_and_b32 s%d, s%d, 3" % (S_T0, S_XCD))
    a("s_lshl_b32 s%d, s%d, 2" % (S_T0, S_T0))
    a("s_and_b32 s%d, s%d, 3" % (S_T1, S_J))
    a("s_add_u32 s%d, s%d, s%d" % (S_RB, S_T0, S_T1))
    a("s_lshr_b32 s%d, s%d, 2" % (S_T0, S_XCD))
    a("s_mul_i32 s%d, s%d, 7" % (S_T0, S_T0))
    a("s_lshr_b32 s%d, s%d, 2" % (S_T1, S_J))
    a("s_add_u32 s%d, s%d, s%d" % (S_CT, S_T0, S_T1))
    a("s_lshl_b32 s%d, s%d, 7" % (S_ROW0, S_RB))
    a("s_lshl_b32 s%d, s%d, 8" % (S_COL0, S_CT))
    a("s_waitcnt lgkmcnt(0)")
    make_srd(a, SRD_A, P_WS, WS_X1, S * D * 2)
    make_srd(a, SRD_B, P_W3, 0, D * F * 2)
    make_srd(a, SRD_C, P_WS, WS_ACT, S * F * 2)
    a("s_mov_b32 s%d, %d" % (S_LDB, F * 2))
    a("s_mov_b32 s%d, 32" % S_SA)
    a("s_mov_b32 s%d, 64" % S_SB)
    a("s_cmp_ge_u32 s%d, 4" % S_WAVE)
    a("s_cbranch_scc1 L_k3_loader")
    k3_stats_from_partials(a, c)
    compute_addr_setup(a, c)
    zero_acc(a, V_ACC, 128)
    pf = None
    if "nopf" not in EXP:
        pf = pf_stream_setup(a, [(P_W4, D * F * 2, w, 4) for w in range(4)], 16)
    compute_start(a, c)
    compute_loop(a, c, 16, V_ACC, True, pf)
    stamp(a, 2)
    a("s_waitcnt lgkmcnt(0)")
    xfer_send(a)
    a("s_waitcnt lgkmcnt(0)")
    a("s_barrier")
    a.label("L_k3_epi")
    epi_ln_gelu(a, c, SRD_C, F * 2, None)
    a("s_branch L_%s_cdone" % name)
    a.label("L_k3_loader")
    a("s_sub_u32 s%d, s%d, 4" % (S_LW, S_WAVE))
    loader_a_offsets(a, V_LA, 2048)
    loader_b_offsets_big(a, V_LB)
    loader_loop(a, c, [(16, SRD_A, SRD_B, V_LA, V_LB, 64 * F * 2)], None)
    a("s_barrier")
    if NI_EPI == 2:
        xfer_recv(a)
        a("s_branch L_k3_epi")
    else:
        a("s_branch L_%s_ldone" % name)
    a.label("L_k3_owg")
    gen_owg(a)
    a("s_branch L_%s_cdone" % name)
    kernel_footer(a, name, 2)
    descriptor(a, name)
    return name, 256, c.LDS_TOTAL


def gen_owg(a):
    S_HEAD = S_CT
    a("s_sub_u32 s%d, s%d, 28" % (S_T0, S_J))
    a("s_lshl_b32 s%d, s%d, 2" % (S_T1, S_XCD))
    a("s_add_u32 s%d, s%d, s%d" % (S_HEAD, S_T0, S_T1))
    a("s_waitcnt lgkmcnt(0)")
    make_srd(a, SRD_A, P_WS, WS_KVB, 65536)
    make_srd(a, SRD_B, P_WS, WS_ZB, 2048)
    make_srd(a, SRD_C, P_WS, WS_PQ, S * D * 2)
    make_srd(a, SRD_D, P_WS, WS_O, S * D * 2)
    make_srd(a, SRD_E, P_X, 0, S * D * 2)
    make_srd(a, SRD_A2, P_WS, WS_G, 8192)
    a("v_and_b32 v2, 31, v1")
    a("v_lshrrev_b32 v3, 5, v1")
    a("v_lshlrev_b32 v3, 4, v3")
    a("v_lshl_add_u32 v4, v2, 6, v3")
    a("s_lshl_b32 s%d, s%d, 13" % (S_T0, S_WAVE))
    a("v_add_u32 v4, s%d, v4" % S_T0)
    a("s_lshl_b32 s%d, s%d, 8" % (S_T0, S_WAVE))
    a("v_add_u32 v5, s%d, v3" % S_T0)
    a("s_lshl_b32 s%d, s%d, 6" % (S_T1, S_HEAD))
    a("v_add_u32 v6, s%d, v2" % S_T1)
    a("v_lshlrev_b32 v6, 11, v6")
    a("v_add3_u32 v6, v6, v3, s%d" % S_T0)
    a("v_add_u32 v7, 0x10000, v6")
    KVB, ZB, PQ = 16, 48, 80
    for h in range(4):
        for m in range(2):
            a("buffer_load_dwordx4 v[%d:%d], v%d, s[%d:%d], 0 offen offset:%d%s" % (KVB + 8 * h + 4 * m, KVB + 8 * h + 4 * m + 3, 4 if h < 2 else 8, SRD_A, SRD_A + 3, 2048 * (h & 1) + 32 * m, HO))
        if h == 1:
            a("v_add_u32 v8, 4096, v4")
    for h in range(4):
        for m in range(2):
            a("buffer_load_dwordx4 v[%d:%d], v5, s[%d:%d], 0 offen offset:%d%s" % (ZB + 8 * h + 4 * m, ZB + 8 * h + 4 * m + 3, SRD_B, SRD_B + 3, 64 * h + 32 * m, HO))
    for rb in range(2):
        for h in range(4):
            for m in range(2):
                b = PQ + 32 * rb + 8 * h + 4 * m
                a("buffer_load_dwordx4 v[%d:%d], v%d, s[%d:%d], 0 offen offset:%d" % (b, b + 3, 6 + rb, SRD_C, SRD_C + 3, 64 * h + 32 * m))
    a("s_waitcnt vmcnt(0)")
    if "nopf" not in EXP:
        a("v_lshlrev_b32 v%d, 7, v1" % 14)
        prefetch_jobs(a, [(P_W4, D * F * 2)], 14, 15)
    NUM = 144
    t = 0
    OVST, OVW, OVR, OVAT, OVD = 9, 240, 10, 244, 16
    a("s_lshl_b32 s%d, s%d, 6" % (S_T2, S_HEAD))
    a("s_lshl_b32 s%d, s%d, 8" % (S_T3, S_WAVE))
    line_store_setup(a, 2048, OVST, OVW, OVR, S_T2, S_T3, 65536)
    for rb in range(2):
        for h in range(4):
            nb = NUM + 48 * (t & 1)
            db = nb + 16
            tp = nb + 32
            for m in range(2):
                cin_n = "0" if m == 0 else "v[%d:%d]" % (nb, nb + 15)
                cin_d = "0" if m == 0 else "v[%d:%d]" % (db, db + 15)
                b = PQ + 32 * rb + 8 * h + 4 * m
                a("v_mfma_f32_32x32x16_bf16 v[%d:%d], v[%d:%d], v[%d:%d], %s" % (nb, nb + 15, KVB + 8 * h + 4 * m, KVB + 8 * h + 4 * m + 3, b, b + 3, cin_n))
                a("v_mfma_f32_32x32x16_bf16 v[%d:%d], v[%d:%d], v[%d:%d], %s" % (db, db + 15, ZB + 8 * h + 4 * m, ZB + 8 * h + 4 * m + 3, b, b + 3, cin_d))
            a("s_nop 15")
            a("s_nop 3")
            bf16_round(a, db, db)
            a("v_add_f32 v%d, %s, v%d" % (db, f32(1e-6), db))
            bf16_round(a, db, db)
            a("v_rcp_f32 v%d, v%d" % (db, db))
            round_regs_bf16(a, nb, 16, tp)
            for p in range(8):
                a("v_pk_mul_f32 v[%d:%d], v[%d:%d], v[%d:%d] op_sel:[0,0] op_sel_hi:[1,0]" % (nb + 2 * p, nb + 2 * p + 1, nb + 2 * p, nb + 2 * p + 1, db, db + 1))
            off = 4096 * ((t >> 1) & 1)
            line_pack_write(a, nb, tp + 8, OVW, h & 1, off)
            if h & 1:
                vd = PQ + 32 * rb + 16 * (h >> 1)
                line_read(a, vd, OVR, off)
                a("s_waitcnt lgkmcnt(0)")
                line_store(a, vd, OVST, OVAT, SRD_D, 2048, rb, HO, 128 * (h >> 1))
            t += 1
    a("s_waitcnt vmcnt(0)")
    make_srd(a, SRD_F, P_GATE, 0, 2048)
    a("v_lshlrev_b32 v8, 4, v1")
    a("buffer_load_dwordx4 v[16:19], v8, s[%d:%d], 0 offen" % (SRD_F, SRD_F + 3))
    a("buffer_load_dwordx4 v[20:23], v8, s[%d:%d], 0 offen offset:1024" % (SRD_F, SRD_F + 3))
    a("s_lshl_b32 s%d, s%d, 6" % (S_T0, S_HEAD))
    a("s_lshl_b32 s%d, s%d, 3" % (S_T1, S_WAVE))
    a("s_add_u32 s%d, s%d, s%d" % (S_T2, S_T0, S_T1))
    a("s_lshl_b32 s%d, s%d, 11" % (S_T0, S_T2))
    for t in range(8):
        a("buffer_load_dwordx4 v[%d:%d], v8, s[%d:%d], s%d offen" % (64 + 8 * t, 67 + 8 * t, SRD_E, SRD_E + 3, S_T0))
        a("buffer_load_dwordx4 v[%d:%d], v8, s[%d:%d], s%d offen offset:1024" % (68 + 8 * t, 71 + 8 * t, SRD_E, SRD_E + 3, S_T0))
        a("s_add_u32 s%d, s%d, 2048" % (S_T0, S_T0))
    for t in range(8):
        a("v_mov_b32 v%d, 0" % (32 + t))
    a("s_waitcnt vmcnt(0)")
    for r in range(8):
        for t in range(8):
            a("v_dot2_f32_bf16 v%d, v%d, v%d, v%d" % (32 + t, 64 + 8 * t + r, 16 + r, 32 + t))
    a("s_nop 3")
    for pat in (0x041F, 0x081F, 0x101F, 0x201F, 0x401F):
        for t in range(8):
            a("ds_swizzle_b32 v%d, v%d offset:0x%x" % (40 + t, 32 + t, pat))
        a("s_waitcnt lgkmcnt(0)")
        for t in range(8):
            a("v_add_f32 v%d, v%d, v%d" % (32 + t, 32 + t, 40 + t))
    for t in range(8):
        a("v_mov_b32 v%d, v%d" % (40 + t, 32 + t))
    a("s_nop 1")
    for t in range(8):
        a("v_permlane32_swap_b32 v%d, v%d" % (32 + t, 40 + t))
    a("s_nop 1")
    for t in range(8):
        a("v_add_f32 v%d, v%d, v%d" % (32 + t, 32 + t, 40 + t))
    a("v_mov_b32 v48, v32")
    for t in range(1, 8):
        a("v_cmp_eq_u32 vcc, %d, v1" % t)
        a("s_nop 1")
        a("v_cndmask_b32 v48, v48, v%d, vcc" % (32 + t))
    bf16_round(a, 48, 48)
    a("v_mul_f32 v48, %s, v48" % f32(-LOG2E))
    a("v_exp_f32 v48, v48")
    a("s_nop 0")
    a("v_add_f32 v48, 1.0, v48")
    a("v_rcp_f32 v48, v48")
    a("s_nop 0")
    bf16_round(a, 48, 48)
    a("v_add_u32 v9, s%d, v1" % S_T2)
    a("v_lshlrev_b32 v9, 2, v9")
    a("v_cmp_gt_u32 vcc, 8, v1")
    a("s_and_saveexec_b64 s[%d:%d], vcc" % (S_EXEC, S_EXEC + 1))
    a("buffer_store_dword v48, v9, s[%d:%d], 0 offen%s" % (SRD_A2, SRD_A2 + 3, HO))
    a("s_mov_b64 exec, s[%d:%d]" % (S_EXEC, S_EXEC + 1))


def gen_k4(a):
    name = "k4_kernel"
    c = Cfg(64, 6)
    kernel_header(a, name, 256)
    small_tile_decode(a)
    a("s_waitcnt lgkmcnt(0)")
    make_srd(a, SRD_A, P_WS, WS_O, S * D * 2)
    make_srd(a, SRD_B, P_WO, 0, D * D * 2)
    make_srd(a, SRD_A2, P_WS, WS_ACT, S * F * 2)
    make_srd(a, SRD_B2, P_W4, 0, F * D * 2)
    make_srd(a, SRD_C, P_OUT, 0, S * D * 2)
    make_srd(a, SRD_D, P_WS, WS_X1, S * D * 2)
    make_srd(a, SRD_E, P_WS, WS_G, 8192)
    a("s_cmp_ge_u32 s%d, 4" % S_WAVE)
    a("s_cbranch_scc1 L_k4_loader")
    VST, VLD, VX, VG = 200, 204, 208, 224
    epi_store_addr(a, c, 2048, VST, 2)
    a("v_lshrrev_b32 v3, 5, v1")
    a("v_lshlrev_b32 v3, 3, v3")
    for i in range(2):
        a("v_sub_u32 v%d, v%d, v3" % (VLD + i, VST + i))
    for i in range(2):
        load_resid(a, c, VX + 8 * i, VLD + i, SRD_D)
    for i in range(2):
        a("v_lshrrev_b32 v3, 11, v%d" % (VST + i))
        a("v_lshlrev_b32 v3, 2, v3")
        a("buffer_load_dword v%d, v3, s[%d:%d], 0 offen" % (VG + 2 * i, SRD_E, SRD_E + 3))
    compute_addr_setup(a, c)
    zero_acc(a, V_ACC, 64)
    compute_start(a, c)
    compute_loop(a, c, 16, V_ACC, True)
    compute_loop(a, c, 56, V_ACC + 32, True)
    stamp(a, 2)
    a("s_waitcnt vmcnt(0) lgkmcnt(0)")
    a("s_nop 15")
    for i in range(2):
        aa = V_ACC + 16 * i
        bb = V_ACC + 32 + 16 * i
        g = VG + 2 * i
        a("v_sub_f32 v%d, 1.0, v%d" % (g + 1, g))
        bf16_round(a, g + 1, g + 1)
        round_regs_bf16(a, aa, 16, 16)
        round_regs_bf16(a, bb, 16, 24)
        unpack_bf16(a, 32, VX + 8 * i, 8)
        for p in range(8):
            a("v_pk_add_f32 v[%d:%d], v[%d:%d], v[%d:%d]" % (bb + 2 * p, bb + 2 * p + 1, bb + 2 * p, bb + 2 * p + 1, 32 + 2 * p, 33 + 2 * p))
        round_regs_bf16(a, bb, 16, 24)
        for p in range(8):
            a("v_pk_mul_f32 v[%d:%d], v[%d:%d], v[%d:%d] op_sel:[0,0] op_sel_hi:[1,0]" % (aa + 2 * p, aa + 2 * p + 1, aa + 2 * p, aa + 2 * p + 1, g, g + 1))
        for p in range(8):
            a("v_pk_mul_f32 v[%d:%d], v[%d:%d], v[%d:%d] op_sel:[0,1] op_sel_hi:[1,1]" % (bb + 2 * p, bb + 2 * p + 1, bb + 2 * p, bb + 2 * p + 1, g, g + 1))
        round_regs_bf16(a, aa, 16, 16)
        round_regs_bf16(a, bb, 16, 24)
        for p in range(8):
            a("v_pk_add_f32 v[%d:%d], v[%d:%d], v[%d:%d]" % (aa + 2 * p, aa + 2 * p + 1, aa + 2 * p, aa + 2 * p + 1, bb + 2 * p, bb + 2 * p + 1))
        pack_swap_store(a, aa, 48 + 8 * i, VST + i, SRD_C, 0)
    a("s_branch L_%s_cdone" % name)
    a.label("L_k4_loader")
    a("s_sub_u32 s%d, s%d, 4" % (S_LW, S_WAVE))
    loader_a_offsets(a, V_LA, 2048)
    loader_b_offsets_small(a, V_LB, 2048)
    loader_a_offsets(a, V_LA2, F * 2)
    loader_loop(a, c, [(16, SRD_A, SRD_B, V_LA, V_LB, 64 * 2048), (56, SRD_A2, SRD_B2, V_LA2, V_LB, 64 * 2048)], None)
    kernel_footer(a, name, 3)
    descriptor(a, name)
    return name, 256, c.LDS_TOTAL


SRD_FL = SRD_B2


def flag_srd(a):
    make_srd(a, SRD_FL, P_WS, WS_FLAG, 8192)


def flag_signal(a, base, idx_sgpr):
    flag_srd(a)
    if idx_sgpr is None:
        a("v_mov_b32 v2, %d" % base)
    else:
        a("s_lshl_b32 s%d, s%d, 7" % (S_T0, idx_sgpr))
        a("s_add_u32 s%d, s%d, %d" % (S_T0, S_T0, base))
        a("v_mov_b32 v2, s%d" % S_T0)
    a("v_mov_b32 v3, 1")
    a("s_mov_b64 exec, 1")
    a("buffer_atomic_add v3, v2, s[%d:%d], 0 offen sc1" % (SRD_FL, SRD_FL + 3))
    a("s_mov_b64 exec, -1")


def flag_poll(a, base, idx_sgpr, target):
    flag_srd(a)
    if idx_sgpr is None:
        a("v_mov_b32 v2, %d" % base)
    else:
        a("s_lshl_b32 s%d, s%d, 7" % (S_T0, idx_sgpr))
        a("s_add_u32 s%d, s%d, %d" % (S_T0, S_T0, base))
        a("v_mov_b32 v2, s%d" % S_T0)
    lp, ld = a.newlabel("poll"), a.newlabel("polld")
    a("s_mov_b32 s%d, 0x400000" % S_T1)
    a.label(lp)
    a("buffer_load_dword v3, v2, s[%d:%d], 0 offen sc1" % (SRD_FL, SRD_FL + 3))
    a("s_waitcnt vmcnt(0)")
    a("v_readfirstlane_b32 s%d, v3" % S_T0)
    a("s_sub_u32 s%d, s%d, 1" % (S_T1, S_T1))
    a("s_cmp_eq_u32 s%d, 0" % S_T1)
    a("s_cbranch_scc1 %s" % ld)
    a("s_cmp_ge_u32 s%d, %d" % (S_T0, target))
    a("s_cbranch_scc1 %s" % ld)
    a("s_sleep 1")
    a("s_branch %s" % lp)
    a.label(ld)


def wave0(a, fn):
    l = a.newlabel("w0")
    a("s_cmp_lg_u32 s%d, 0" % S_WAVE)
    a("s_cbranch_scc1 %s" % l)
    fn()
    a.label(l)


def p3_decode(a):
    a("s_lshr_b32 s%d, s%d, 2" % (S_T0, S_XCD))
    a("s_mul_i32 s%d, s%d, 7" % (S_T0, S_T0))
    a("s_lshr_b32 s%d, s%d, 2" % (S_T1, S_J))
    a("s_add_u32 s%d, s%d, s%d" % (S_CT, S_T0, S_T1))
    a("s_lshl_b32 s%d, s%d, 8" % (S_COL0, S_CT))
    make_srd(a, SRD_A, P_WS, WS_X1, S * D * 2)
    make_srd(a, SRD_B, P_W3, 0, D * F * 2)
    make_srd(a, SRD_C, P_WS, WS_ACT, S * F * 2)
    a("s_mov_b32 s%d, %d" % (S_LDB, F * 2))
    a("s_mov_b32 s%d, 32" % S_SA)
    a("s_mov_b32 s%d, 64" % S_SB)


def p4_decode(a):
    a("s_lshr_b32 s%d, s2, 3" % S_J)
    a("s_bfe_u32 s%d, s%d, 0x20002" % (S_T0, S_J))
    a("s_xor_b32 s%d, s%d, 16" % (S_T1, S_J))
    a("s_cmp_eq_u32 s%d, 3" % S_T0)
    a("s_cselect_b32 s%d, s%d, s%d" % (S_J, S_T1, S_J))
    small_tile_decode(a)
    make_srd(a, SRD_A, P_WS, WS_O, S * D * 2)
    make_srd(a, SRD_B, P_WO, 0, D * D * 2)
    make_srd(a, SRD_A2, P_WS, WS_ACT, S * F * 2)
    make_srd(a, SRD_C, P_OUT, 0, S * D * 2)
    make_srd(a, SRD_D, P_WS, WS_X1, S * D * 2)
    make_srd(a, SRD_E, P_WS, WS_G, 8192)


def small_epi_setup(a, VLD, VST, VW, VR):
    a("s_lshl_b32 s%d, s%d, 5" % (S_T2, S_WAVE))
    a("s_add_u32 s%d, s%d, s%d" % (S_T2, S_T2, S_ROW0))
    a("s_lshl_b32 s%d, s%d, 1" % (S_T3, S_COL0))
    line_store_setup(a, 2048, VST, VW, VR, S_T2, S_T3, 98304)
    a("v_and_b32 v2, 31, v1")
    a("v_add_u32 v2, s%d, v2" % S_T2)
    a("v_lshrrev_b32 v3, 5, v1")
    a("v_lshlrev_b32 v3, 3, v3")
    a("v_lshl_add_u32 v2, v2, 11, v3")
    a("v_add_u32 v%d, s%d, v2" % (VLD, S_T3))


def load_resid2(a, dst, vaddr, srd, fl=""):
    for j in range(2):
        for g in range(4):
            a("buffer_load_dwordx2 v[%d:%d], v%d, s[%d:%d], 0 offen offset:%d%s" % (dst + 8 * j + 2 * g, dst + 8 * j + 2 * g + 1, vaddr, srd, srd + 3, 64 * j + 16 * g, fl))


def mstamp(a, name):
    sets = {"st0": ["E2", "G3", "E3", "G4"], "stA": ["P2", "L2", "E2", "G3"], "stB": ["G3", "P3", "L3", "E3"], "stC": ["G4", "P4", "M4", "L4"]}
    cur = "st0"
    for k in sets:
        if k in EXP:
            cur = k
    if name in sets[cur]:
        stamp(a, 1 + sets[cur].index(name))


def gen_k234(a):
    global INSTR
    name = "k234_kernel"
    cs2 = Cfg(64, 6)
    cb = Cfg(256, 3)
    cb.aflag = HO
    cs4 = Cfg(64, 6)
    cs4.aflag = HO
    kernel_header(a, name, 256)
    small_tile_decode(a)
    a("s_waitcnt lgkmcnt(0)")
    make_srd(a, SRD_A, P_WS, WS_HS, S * D * 2)
    make_srd(a, SRD_B, P_W2, 0, D * D * 2)
    make_srd(a, SRD_C, P_WS, WS_X1, S * D * 2)
    make_srd(a, SRD_D, P_X, 0, S * D * 2)
    a("s_cmp_ge_u32 s%d, 4" % S_WAVE)
    a("s_cbranch_scc1 L_m_loader2")
    c = cs2
    kv_reduce(a)
    a("s_waitcnt vmcnt(0)")
    VST, VLD, VW, VR, VX, VAT = 200, 201, 204, 202, 208, 228
    small_epi_setup(a, VLD, VST, VW, VR)
    load_resid2(a, VX, VLD, SRD_D)
    compute_addr_setup(a, c)
    zero_acc(a, V_ACC, 32)
    pf = pf_stream_setup(a, [(P_WO, D * D * 2, w, 4) for w in range(4)], 16)
    a("s_barrier")
    mstamp(a, "P2")
    for r in frag_reads(c, 0, 0):
        a(r)
    wave0(a, lambda: flag_signal(a, FL_RED, None))
    compute_loop(a, c, 16, V_ACC, True, pf)
    mstamp(a, "L2")
    a("s_waitcnt vmcnt(0) lgkmcnt(0)")
    a("s_nop 15")
    for j in range(2):
        acc = V_ACC + 16 * j
        round_regs_bf16(a, acc, 16, 16)
        unpack_bf16(a, 32, VX + 8 * j, 8)
        for p in range(8):
            a("v_pk_add_f32 v[%d:%d], v[%d:%d], v[%d:%d]" % (acc + 2 * p, acc + 2 * p + 1, acc + 2 * p, acc + 2 * p + 1, 32 + 2 * p, 33 + 2 * p))
        line_pack_write(a, acc, 48 + 8 * j, VW, j, 0)
    line_read(a, 80, VR, 0)
    make_srd(a, SRD_E, P_WS, WS_XS, 256 * 1024)
    a("v_mov_b32 v64, 0x3f803f80")
    for r in range(4):
        a("v_mov_b32 v%d, 0" % (68 + r))
    for p in range(16):
        b = 68 + 2 * (p & 1)
        a("v_dot2_f32_bf16 v%d, v%d, v64, v%d" % (b, 48 + p, b))
        a("v_dot2_f32_bf16 v%d, v%d, v%d, v%d" % (b + 1, 48 + p, 48 + p, b + 1))
    a("s_waitcnt lgkmcnt(0)")
    line_store(a, 80, VST, VAT, SRD_C, 2048, 0, HO)
    a("s_lshl_b32 s%d, s%d, 4" % (S_T0, S_RB))
    a("s_add_u32 s%d, s%d, s%d" % (S_T0, S_T0, S_CT))
    a("s_lshl_b32 s%d, s%d, 10" % (S_T0, S_T0))
    a("s_lshl_b32 s%d, s%d, 8" % (S_T1, S_WAVE))
    a("s_add_u32 s%d, s%d, s%d" % (S_T0, S_T0, S_T1))
    a("v_pk_add_f32 v[68:69], v[68:69], v[70:71]")
    a("v_mov_b32 v70, v68")
    a("v_mov_b32 v71, v69")
    a("s_nop 1")
    a("v_permlane32_swap_b32 v68, v70")
    a("v_permlane32_swap_b32 v69, v71")
    a("s_nop 1")
    a("v_pk_add_f32 v[68:69], v[68:69], v[70:71]")
    a("v_lshlrev_b32 v3, 3, v1")
    a("v_add_u32 v3, s%d, v3" % S_T0)
    a("s_mov_b32 exec_hi, 0")
    a("buffer_store_dwordx2 v[68:69], v3, s[%d:%d], 0 offen%s" % (SRD_E, SRD_E + 3, HO))
    a("s_mov_b64 exec, -1")
    a("s_waitcnt vmcnt(0)")
    mstamp(a, "E2")
    a("s_barrier")

    def sig2():
        l, l2, l3 = a.newlabel("slow"), a.newlabel("sigd"), a.newlabel("isowg")
        a("s_and_b32 s%d, s%d, 7" % (S_T2, S_CT))
        a("s_cmp_eq_u32 s%d, 3" % S_T2)
        a("s_cbranch_scc1 %s" % l)
        flag_signal(a, FL_X1, S_RB)
        a("s_branch %s" % l2)
        a.label(l)
        flag_signal(a, FL_X1S, S_RB)
        a.label(l2)
        a("s_cmp_ge_u32 s%d, 28" % S_J)
        a("s_cbranch_scc1 %s" % l3)
        flag_poll(a, FL_X1, S_RB, 14)
        a("s_branch %s_d" % l3)
        a.label(l3)
        flag_poll(a, FL_RED, None, 256)
        a.label(l3 + "_d")
    wave0(a, sig2)
    a("s_barrier")
    mstamp(a, "G3")
    a("s_cmp_ge_u32 s%d, 28" % S_J)
    a("s_cbranch_scc1 L_m_owg")
    c = cb
    p3_decode(a)
    compute_addr_setup(a, c)
    zero_acc(a, V_ACC, 128)
    pf = pf_stream_setup(a, [(P_W4, D * F * 2, w, 4) for w in range(4)], 16)
    a("s_barrier")
    mstamp(a, "P3")
    for r in frag_reads(c, 0, 0):
        a(r)
    compute_loop(a, c, 11, V_ACC, True, pf)

    def poll3():
        flag_poll(a, FL_X1S, S_RB, 2)
        flag_poll(a, FL_RED, None, 256)
    wave0(a, poll3)
    compute_loop(a, c, 5, V_ACC, True, pf)
    mstamp(a, "L3")
    a("s_waitcnt lgkmcnt(0)")
    a("s_mov_b32 s%d, 0" % S_STOFF)
    a("s_nop 15")
    epi_ln_gelu(a, c, SRD_C, F * 2, None)
    a("s_waitcnt vmcnt(0)")
    mstamp(a, "E3")
    a("s_barrier")
    wave0(a, lambda: flag_signal(a, FL_ACT, S_RB))
    a.label("L_m_c4")
    def poll4():
        flag_poll(a, FL_O, S_RB, 2)
        flag_poll(a, FL_X1, S_RB, 14)
        flag_poll(a, FL_X1S, S_RB, 2)
    wave0(a, poll4)
    a("s_barrier")
    mstamp(a, "G4")
    c = cs4
    p4_decode(a)
    VST, VLD, VW, VR, VX, VAT, VG = 200, 201, 204, 202, 208, 228, 224
    small_epi_setup(a, VLD, VST, VW, VR)
    load_resid2(a, VX, VLD, SRD_D, HO)
    a("v_lshrrev_b32 v3, 11, v%d" % VLD)
    a("v_lshlrev_b32 v3, 2, v3")
    a("buffer_load_dword v%d, v3, s[%d:%d], 0 offen%s" % (VG, SRD_E, SRD_E + 3, HO))
    compute_addr_setup(a, c)
    zero_acc(a, V_ACC, 64)
    a("s_barrier")
    mstamp(a, "P4")
    for r in frag_reads(c, 0, 0):
        a(r)
    compute_loop(a, c, 10, V_ACC, True)
    wave0(a, lambda: flag_poll(a, FL_ACT, S_RB, 14))
    compute_loop(a, c, 6, V_ACC, True)
    mstamp(a, "M4")
    compute_loop(a, c, 56, V_ACC + 32, True)
    mstamp(a, "L4")
    a("s_waitcnt vmcnt(0) lgkmcnt(0)")
    a("s_nop 15")
    g = VG
    a("v_sub_f32 v%d, 1.0, v%d" % (g + 1, g))
    bf16_round(a, g + 1, g + 1)
    for j in range(2):
        aa = V_ACC + 16 * j
        bb = V_ACC + 32 + 16 * j
        round_regs_bf16(a, aa, 16, 16)
        round_regs_bf16(a, bb, 16, 24)
        unpack_bf16(a, 32, VX + 8 * j, 8)
        for p in range(8):
            a("v_pk_add_f32 v[%d:%d], v[%d:%d], v[%d:%d]" % (bb + 2 * p, bb + 2 * p + 1, bb + 2 * p, bb + 2 * p + 1, 32 + 2 * p, 33 + 2 * p))
        round_regs_bf16(a, bb, 16, 24)
        for p in range(8):
            a("v_pk_mul_f32 v[%d:%d], v[%d:%d], v[%d:%d] op_sel:[0,0] op_sel_hi:[1,0]" % (aa + 2 * p, aa + 2 * p + 1, aa + 2 * p, aa + 2 * p + 1, g, g + 1))
        for p in range(8):
            a("v_pk_mul_f32 v[%d:%d], v[%d:%d], v[%d:%d] op_sel:[0,1] op_sel_hi:[1,1]" % (bb + 2 * p, bb + 2 * p + 1, bb + 2 * p, bb + 2 * p + 1, g, g + 1))
        round_regs_bf16(a, aa, 16, 16)
        round_regs_bf16(a, bb, 16, 24)
        for p in range(8):
            a("v_pk_add_f32 v[%d:%d], v[%d:%d], v[%d:%d]" % (aa + 2 * p, aa + 2 * p + 1, aa + 2 * p, aa + 2 * p + 1, bb + 2 * p, bb + 2 * p + 1))
        line_pack_write(a, aa, 48 + 8 * j, VW, j, 0)
    line_read(a, 80, VR, 0)
    a("s_waitcnt lgkmcnt(0)")
    line_store(a, 80, VST, VAT, SRD_C, 2048, 0, "")
    if INSTR:
        a("s_waitcnt vmcnt(0)")
        stamp_flush(a, 1, 5)
    a("s_branch L_%s_end" % name)
    a.label("L_m_owg")
    gen_owg(a)
    a("s_waitcnt vmcnt(0)")
    mstamp(a, "E3")
    a("s_barrier")
    a("s_cmp_ge_u32 s%d, 4" % S_WAVE)
    a("s_cbranch_scc1 L_m_loader4o")

    def sigo():
        a("s_lshr_b32 s%d, s%d, 1" % (S_T2, S_CT))
        flag_signal(a, FL_O, S_T2)
    wave0(a, sigo)
    a("s_branch L_m_c4")
    a.label("L_m_loader2")
    keep = INSTR
    INSTR = False
    a("s_sub_u32 s%d, s%d, 4" % (S_LW, S_WAVE))
    loader_a_offsets(a, V_LA, 2048)
    loader_b_offsets_small(a, V_LB, 2048)
    loader_loop(a, cs2, [(16, SRD_A, SRD_B, V_LA, V_LB, 64 * 2048)], None)
    a("s_cmp_lt_u32 s%d, 28" % S_J)
    a("s_cbranch_scc1 L_m_loader3")
    a("s_barrier")
    a("s_barrier")
    a("s_branch L_m_owg")
    a.label("L_m_loader3")
    p3_decode(a)
    loader_b_offsets_big(a, V_LB)

    def gate3():
        a("s_barrier")
        a("s_barrier")
    kb3 = 64 * F * 2
    loader_loop(a, cb, [(n, SRD_A, SRD_B, V_LA, V_LB, kb3, c0) for n, c0 in ((3, 0), (7, 4), (4, 12), (1, 3), (1, 11))], None, gate3,
                (lambda: k3_stats_issue(a, cb, S_LW), 16, lambda: k3_stats_fin(a, cb, S_LW)))
    p4_decode(a)
    make_srd(a, SRD_B2, P_W4, 0, F * D * 2)
    loader_b_offsets_small(a, V_LB, 2048)
    loader_a_offsets(a, V_LA2, F * 2)
    a("s_mov_b32 s%d, 1" % S_C0)
    a("s_branch L_m_loader4")
    a.label("L_m_loader4o")
    p4_decode(a)
    make_srd(a, SRD_B2, P_W4, 0, F * D * 2)
    loader_a_offsets(a, V_LA, 2048)
    loader_b_offsets_small(a, V_LB, 2048)
    loader_a_offsets(a, V_LA2, F * 2)
    a("s_mov_b32 s%d, 0" % S_C0)
    a.label("L_m_loader4")

    def gate4():
        l = a.newlabel("noe3")
        a("s_cmp_eq_u32 s%d, 0" % S_C0)
        a("s_cbranch_scc1 %s" % l)
        a("s_barrier")
        a.label(l)
        a("s_barrier")
    loader_loop(a, cs4, [(16, SRD_A, SRD_B, V_LA, V_LB, 64 * 2048), (56, SRD_A2, SRD_B2, V_LA2, V_LB, 64 * 2048)], None, gate4)
    INSTR = keep
    a.label("L_%s_end" % name)
    a("s_endpgm")
    descriptor(a, name)
    return name, 256, cb.LDS_TOTAL


def main():
    global INSTR
    if "--instr" in sys.argv:
        INSTR = True
        sys.argv.remove("--instr")
    for x in list(sys.argv):
        if x.startswith("--exp="):
            EXP.update(x[6:].split(","))
            sys.argv.remove(x)
    body = Asm()
    launches = []
    for g in (gen_k1, gen_k234):
        launches.append(g(body))
    hdr = []
    for name, nwg, lds in launches:
        hdr.append("; @launch kernel=%s grid=(%d,1,1) block=(512,1,1) lds=%d" % (name, nwg, lds))
    hdr.append('.amdgcn_target "amdgcn-amd-amdhsa--gfx950"')
    hdr.append(".text")
    out = "\n".join(hdr + body.lines) + "\n"
    path = sys.argv[1] if len(sys.argv) > 1 else "gated_mix__linear_attn_block__mixer_s_mlp__prompt.s"
    open(path, "w").write(out)
    print("wrote", path, len(out), "bytes")


if __name__ == "__main__":
    main()
```

```python
import struct, sys

MB = 1 << 20
WS_PQ = 0 * MB
WS_HS = 4 * MB
WS_X1 = 8 * MB
WS_O = 12 * MB
WS_ACT = 16 * MB
WS_KVP = 32 * MB
WS_ZP = 34 * MB
WS_G = 35 * MB
WS_XS = 37 * MB
WS_FLAG = 39 * MB
FL_X1, FL_ACT, FL_O, FL_RED, FL_X1S = 0, 2048, 4096, 6144, 64
MERGED = True
HO = " sc1"
WS_CSP = 38 * MB
WS_KVB = 36 * MB
WS_ZB = 36 * MB + 65536

S, D, F = 2048, 1024, 3584


def f32(x):
    return "0x%08x" % struct.unpack("<I", struct.pack("<f", x))[0]


LOG2E = 1.4426950408889634
GC0 = -2.0 * 0.7978845608028654 * LOG2E
GC1 = GC0 * 0.044715


class Asm:
    def __init__(self):
        self.lines = []
        self.uid = 0

    def __call__(self, s):
        for ln in s.strip("\n").split("\n"):
            self.lines.append("    " + ln.strip())

    def label(self, l):
        self.lines.append(l + ":")

    def newlabel(self, base):
        self.uid += 1
        return "L_%s_%d" % (base, self.uid)

    def raw(self, s):
        self.lines.append(s)


def vr(a, n=1):
    return "v%d" % a if n == 1 else "v[%d:%d]" % (a, a + n - 1)


def sr(a, n=1):
    return "s%d" % a if n == 1 else "s[%d:%d]" % (a, a + n - 1)


P_X, P_WQKV, P_WO, P_W1, P_W2, P_W3, P_W4, P_GATE, P_OUT, P_DBG, P_WS = 4, 6, 8, 12, 14, 16, 18, 20, 22, 24, 26
SRD_A, SRD_B, SRD_C, SRD_D, SRD_A2, SRD_B2, SRD_E, SRD_F = 28, 32, 36, 40, 44, 48, 52, 56
S_WAVE, S_ROW0, S_COL0, S_TYPE, S_LDB, S_SA, S_SB, S_CNT = 60, 61, 62, 63, 64, 65, 66, 67
S_KA, S_KB, S_BUF, S_T0, S_T1, S_T2, S_T3, S_LW = 68, 69, 70, 71, 72, 73, 74, 75
S_SHIFT, S_RB, S_CT, S_XCD, S_J, S_KBSTEP = 76, 77, 78, 79, 80, 81
S_EXEC = 82
S_C0 = 84


def make_srd(a, srd, ptr, off, nbytes):
    if off:
        a("s_add_u32 s%d, s%d, 0x%x" % (srd, ptr, off))
        a("s_addc_u32 s%d, s%d, 0" % (srd + 1, ptr + 1))
    else:
        a("s_mov_b32 s%d, s%d" % (srd, ptr))
        a("s_mov_b32 s%d, s%d" % (srd + 1, ptr + 1))
    a("s_mov_b32 s%d, 0x%x" % (srd + 2, nbytes))
    a("s_mov_b32 s%d, 0x20000" % (srd + 3))


def kernel_header(a, name, nwg):
    a.raw(".globl %s" % name)
    a.raw(".p2align 8")
    a.raw(".type %s,@function" % name)
    a.label(name)
    a("s_cmp_ge_u32 s2, %d" % nwg)
    a("s_cbranch_scc1 L_%s_end" % name)
    if INSTR:
        a("s_memrealtime s[%d:%d]" % (S_TS + 12, S_TS + 13))
    stamp(a, 0)
    a("s_load_dwordx16 s[4:19], s[0:1], 0")
    a("s_load_dwordx8 s[20:27], s[0:1], 64")
    a("v_lshrrev_b32 v2, 6, v0")
    a("v_and_b32 v1, 63, v0")
    a("s_and_b32 s%d, s2, 7" % S_XCD)
    a("v_readfirstlane_b32 s%d, v2" % S_WAVE)
    a("s_lshr_b32 s%d, s2, 3" % S_J)
    if INSTR:
        a("s_nop 3")
        a("s_mov_b32 s3, s%d" % S_WAVE)


def kernel_footer(a, name, kidx=0):
    a.label("L_%s_ldone" % name)
    if INSTR:
        stamp(a, 4)
        stamp_flush(a, kidx, 5)
    a("s_branch L_%s_end" % name)
    a.label("L_%s_cdone" % name)
    stamp(a, 3)
    if INSTR:
        a("s_waitcnt vmcnt(0)")
    stamp(a, 4)
    stamp_flush(a, kidx, 5)
    a.label("L_%s_end" % name)
    a("s_endpgm")


def descriptor(a, name, vgprs=256):
    a.raw(".section .rodata,\"a\"")
    a.raw(".p2align 6")
    a.raw(".amdhsa_kernel %s" % name)
    a.raw("  .amdhsa_next_free_vgpr %d" % vgprs)
    a.raw("  .amdhsa_next_free_sgpr 102")
    a.raw("  .amdhsa_accum_offset %d" % vgprs)
    a.raw("  .amdhsa_group_segment_fixed_size 0")
    a.raw("  .amdhsa_kernarg_size 96")
    a.raw("  .amdhsa_user_sgpr_count 2")
    a.raw("  .amdhsa_user_sgpr_kernarg_segment_ptr 1")
    a.raw("  .amdhsa_system_sgpr_workgroup_id_x 1")
    a.raw(".end_amdhsa_kernel")
    a.raw(".text")


INSTR = False
EXP = set()
WS_DBGT = 40 * MB
S_TS = 88


def stamp(a, n):
    if not INSTR:
        return
    a("s_memtime s[%d:%d]" % (S_TS + 2 * n, S_TS + 2 * n + 1))
    a("s_waitcnt lgkmcnt(0)")


def stamp_flush(a, kidx, nst):
    if not INSTR:
        return
    a("s_memrealtime s[%d:%d]" % (S_TS + 2 * nst, S_TS + 2 * nst + 1))
    a("s_waitcnt lgkmcnt(0)")
    make_srd(a, SRD_F, P_WS, WS_DBGT + kidx * 65536, 65536)
    a("s_lshl_b32 s%d, s2, 8" % S_T0)
    a("s_lshl_b32 s%d, s3, 5" % (S_T1,))
    a("s_add_u32 s%d, s%d, s%d" % (S_T0, S_T0, S_T1))
    a("v_mov_b32 v2, s%d" % S_T0)
    for n in range(nst + 2):
        a("v_mov_b32 v3, s%d" % (S_TS + 2 * n))
        a("buffer_store_dword v3, v2, s[%d:%d], 0 offen offset:%d" % (SRD_F, SRD_F + 3, 4 * n))
        a("s_nop 1")


class Cfg:
    def __init__(self, BN, NBUF):
        self.BN = BN
        self.NBUF = NBUF
        self.STAGE = 16384 + BN * 128
        self.big = BN == 256
        self.MI = 4 if self.big else 1
        self.NI = 2
        self.LA = 4
        self.LB = BN // 32
        self.LPS = self.LA + self.LB
        self.NSUB = 4 if self.big else 1
        self.KPS = 4 // self.NSUB
        self.INIT = 2
        self.aflag = ""
        self.RAMP = 1 if self.big else 2
        for e in EXP:
            if e.startswith("initb") and self.big: self.INIT = int(e[5:])
            if e.startswith("inits") and not self.big: self.INIT = int(e[5:])
            if e.startswith("rampb") and self.big: self.RAMP = int(e[5:])
            if e.startswith("ramps") and not self.big: self.RAMP = int(e[5:])
        self.LDS_STATS = self.NBUF * self.STAGE
        self.LDS_CS = self.LDS_STATS + 1024
        self.LDS_TOTAL = self.LDS_CS + 1024


V_LA = 16
V_LB = 20
V_LA2 = 28
V_LB2 = 32
V_SA = 40
V_SAB = 44
V_SB = 48
V_SBB = 49
V_SUM, V_SQ, V_CS0, V_CS1, V_ONES = 50, 51, 52, 53, 54
V_SUM2, V_SQ2 = 55, 56
V_SD = 64


def loader_a_offsets(a, vdst, lda):
    a("v_lshrrev_b32 v3, 3, v1")
    a("v_and_b32 v4, 7, v1")
    a("v_lshrrev_b32 v5, 4, v1")
    a("v_xor_b32 v4, v4, v5")
    a("s_lshl_b32 s%d, s%d, 5" % (S_T0, S_LW))
    a("s_add_u32 s%d, s%d, s%d" % (S_T0, S_T0, S_ROW0))
    a("v_add_u32 v3, s%d, v3" % S_T0)
    a("s_mov_b32 s%d, %d" % (S_T1, lda))
    a("v_mul_lo_u32 v3, v3, s%d" % S_T1)
    for j in range(4):
        if j & 1:
            a("v_xor_b32 v5, 4, v4")
        else:
            a("v_mov_b32 v5, v4")
        a("v_lshl_add_u32 v5, v5, 4, v3")
        a("v_add_u32 v%d, 0x%x, v5" % (vdst + j, 8 * j * lda - 1024 * j))


def loader_b_offsets_big(a, vdst):
    a("v_lshrrev_b32 v3, 5, v1")
    a("v_and_b32 v4, 31, v1")
    a("s_lshl_b32 s%d, s%d, 4" % (S_T0, S_LW))
    a("v_add_u32 v6, s%d, v3" % S_T0)
    a("v_mul_lo_u32 v6, v6, s%d" % S_LDB)
    for par in range(2):
        a("v_or_b32 v5, %d, v3" % (par << 1))
        a("v_lshlrev_b32 v5, 2, v5")
        a("v_xor_b32 v5, v5, v4")
        a("v_bfe_u32 v7, v5, 2, 1")
        a("v_mul_lo_u32 v7, v7, s%d" % S_SA)
        a("v_lshrrev_b32 v8, 3, v5")
        a("v_mul_lo_u32 v8, v8, s%d" % S_SB)
        a("v_and_b32 v9, 3, v5")
        a("v_lshlrev_b32 v9, 3, v9")
        a("v_add3_u32 v7, v7, v8, v9")
        a("v_add_u32 v7, s%d, v7" % S_COL0)
        a("v_lshl_add_u32 v%d, v7, 1, v6" % (10 + par))
    for j in range(8):
        a("s_mul_i32 s%d, s%d, %d" % (S_T0, S_LDB, 2 * j))
        a("s_sub_u32 s%d, s%d, %d" % (S_T0, S_T0, 1024 * (j & 3)))
        a("v_add_u32 v%d, s%d, v%d" % (vdst + j, S_T0, 10 + (j & 1)))


def loader_b_offsets_small(a, vdst, ldb):
    a("v_lshrrev_b32 v3, 3, v1")
    a("s_lshl_b32 s%d, s%d, 4" % (S_T0, S_LW))
    a("v_add_u32 v3, s%d, v3" % S_T0)
    a("s_mov_b32 s%d, %d" % (S_T1, ldb))
    a("v_mul_lo_u32 v3, v3, s%d" % S_T1)
    a("v_and_b32 v4, 7, v1")
    a("v_bfe_u32 v5, v1, 4, 1")
    a("v_lshlrev_b32 v5, 2, v5")
    a("v_xor_b32 v4, v4, v5")
    a("v_lshl_add_u32 v3, v4, 4, v3")
    a("s_lshl_b32 s%d, s%d, 1" % (S_T0, S_COL0))
    a("v_add_u32 v3, s%d, v3" % S_T0)
    for j in range(2):
        a("v_add_u32 v%d, 0x%x, v3" % (vdst + j, 8 * j * ldb - 1024 * j))


def loader_issue(a, c, srda, srdb, vla, vlb, part="AB"):
    if "nodma" in EXP:
        return
    if "A" in part:
        a("s_lshl_b32 s%d, s%d, 12" % (S_T0, S_LW))
        a("s_add_u32 m0, s%d, s%d" % (S_BUF, S_T0))
        a("s_nop 0")
        for j in range(4):
            a("buffer_load_dwordx4 v%d, s[%d:%d], s%d offen offset:%d%s lds" % (vla + j, srda, srda + 3, S_KA, 1024 * j, c.aflag))
    if "B" not in part:
        pass
    elif c.big:
        a("s_lshl_b32 s%d, s%d, 13" % (S_T0, S_LW))
        a("s_add_u32 s%d, s%d, s%d" % (S_T0, S_T0, S_BUF))
        a("s_add_u32 m0, s%d, 16384" % S_T0)
        a("s_nop 0")
        for j in range(4):
            a("buffer_load_dwordx4 v%d, s[%d:%d], s%d offen offset:%d lds" % (vlb + j, srdb, srdb + 3, S_KB, 1024 * j))
        a("s_add_u32 m0, s%d, %d" % (S_T0, 16384 + 4096))
        a("s_nop 0")
        for j in range(4, 8):
            a("buffer_load_dwordx4 v%d, s[%d:%d], s%d offen offset:%d lds" % (vlb + j, srdb, srdb + 3, S_KB, 1024 * (j & 3)))
    else:
        a("s_lshl_b32 s%d, s%d, 11" % (S_T0, S_LW))
        a("s_add_u32 s%d, s%d, s%d" % (S_T0, S_T0, S_BUF))
        a("s_add_u32 m0, s%d, 16384" % S_T0)
        a("s_nop 0")
        for j in range(2):
            a("buffer_load_dwordx4 v%d, s[%d:%d], s%d offen offset:%d lds" % (vlb + j, srdb, srdb + 3, S_KB, 1024 * j))
    if "A" in part:
        a("s_add_u32 s%d, s%d, 128" % (S_KA, S_KA))
    if "B" in part:
        a("s_add_u32 s%d, s%d, s%d" % (S_KB, S_KB, S_KBSTEP))
    a("s_add_u32 s%d, s%d, %d" % (S_BUF, S_BUF, c.STAGE))
    a("s_cmp_eq_u32 s%d, %d" % (S_BUF, c.STAGE * c.NBUF))
    a("s_cselect_b32 s%d, 0, s%d" % (S_BUF, S_BUF))


def stats_setup(a, c):
    a("v_and_b32 v3, 31, v1")
    a("s_lshl_b32 s%d, s%d, 5" % (S_T0, S_LW))
    a("v_add_u32 v3, s%d, v3" % S_T0)
    a("v_lshlrev_b32 v3, 7, v3")
    a("v_bfe_u32 v4, v1, 1, 3")
    a("v_lshrrev_b32 v5, 5, v1")
    a("v_lshlrev_b32 v5, 2, v5")
    a("v_xor_b32 v4, v4, v5")
    for t in range(4):
        a("v_xor_b32 v5, %d, v4" % t)
        a("v_lshl_add_u32 v%d, v5, 4, v3" % (V_SAB + t))
        a("v_mov_b32 v%d, v%d" % (V_SA + t, V_SAB + t))
    a("v_bfe_u32 v3, v1, 2, 2")
    a("v_and_b32 v4, 3, v1")
    a("v_lshrrev_b32 v5, 4, v1")
    a("v_lshlrev_b32 v5, 1, v5")
    a("v_lshrrev_b32 v6, 1, v4")
    a("v_add_u32 v5, v5, v6")
    a("s_lshl_b32 s%d, s%d, 3" % (S_T0, S_LW))
    a("v_add_u32 v5, s%d, v5" % S_T0)
    a("v_lshlrev_b32 v6, 2, v3")
    a("v_xor_b32 v5, v5, v6")
    a("v_lshlrev_b32 v5, 4, v5")
    a("v_lshl_add_u32 v5, v3, 9, v5")
    a("v_and_b32 v4, 1, v4")
    a("v_lshl_add_u32 v5, v4, 3, v5")
    a("v_add_u32 v%d, 16384, v5" % V_SBB)
    a("v_mov_b32 v%d, v%d" % (V_SB, V_SBB))
    for r in (V_SUM, V_SQ, V_CS0, V_CS1, V_SUM2, V_SQ2):
        a("v_mov_b32 v%d, 0" % r)
    a("v_mov_b32 v%d, 0x3f803f80" % V_ONES)
    a("s_mov_b32 s%d, 0" % S_T3)


def stats_step(a, c):
    for t in range(4):
        a("ds_read_b128 v[%d:%d], v%d" % (V_SD + 4 * t, V_SD + 4 * t + 3, V_SA + t))
    for m in range(16):
        a("ds_read_b64_tr_b16 v[%d:%d], v%d offset:%d" % (V_SD + 16 + 2 * m, V_SD + 17 + 2 * m, V_SB, 2048 * m))
    a("s_add_u32 s%d, s%d, %d" % (S_T3, S_T3, c.STAGE))
    a("s_cmp_eq_u32 s%d, %d" % (S_T3, c.STAGE * c.NBUF))
    a("s_cselect_b32 s%d, 0, s%d" % (S_T3, S_T3))
    a("s_waitcnt lgkmcnt(15)")
    for t in range(16):
        s, q = (V_SUM, V_SQ) if t & 1 else (V_SUM2, V_SQ2)
        a("v_dot2_f32_bf16 v%d, v%d, v%d, v%d" % (s, V_SD + t, V_ONES, s))
        a("v_dot2_f32_bf16 v%d, v%d, v%d, v%d" % (q, V_SD + t, V_SD + t, q))
    a("s_waitcnt lgkmcnt(0)")
    for t in range(4):
        a("v_add_u32 v%d, s%d, v%d" % (V_SA + t, S_T3, V_SAB + t))
    a("v_add_u32 v%d, s%d, v%d" % (V_SB, S_T3, V_SBB))
    for m in range(32):
        cs = V_CS0 if m & 1 else V_CS1
        a("v_dot2_f32_bf16 v%d, v%d, v%d, v%d" % (cs, V_SD + 16 + m, V_ONES, cs))


def bf16_round(a, dst, src):
    a("v_cvt_pk_bf16_f32 v%d, v%d, v%d" % (dst, src, src))
    a("v_lshlrev_b32 v%d, 16, v%d" % (dst, dst))


def stats_finish(a, c, S_LW=S_LW):
    a("s_nop 3")
    a("v_add_f32 v%d, v%d, v%d" % (V_SUM, V_SUM, V_SUM2))
    a("v_add_f32 v%d, v%d, v%d" % (V_SQ, V_SQ, V_SQ2))
    a("v_add_f32 v%d, v%d, v%d" % (V_CS0, V_CS0, V_CS1))
    a("v_mov_b32 v3, v%d" % V_SUM)
    a("v_mov_b32 v4, v%d" % V_SUM)
    a("v_mov_b32 v5, v%d" % V_SQ)
    a("v_mov_b32 v6, v%d" % V_SQ)
    a("s_nop 1")
    a("v_permlane32_swap_b32 v3, v4")
    a("v_permlane32_swap_b32 v5, v6")
    a("s_nop 1")
    a("v_add_f32 v3, v3, v4")
    a("v_add_f32 v5, v5, v6")
    a("v_mul_f32 v3, %s, v3" % f32(1.0 / 1024))
    a("v_mul_f32 v5, %s, v5" % f32(1.0 / 1024))
    a("v_fma_f32 v5, -v3, v3, v5")
    a("v_max_f32 v5, 0, v5")
    bf16_round(a, 3, 3)
    bf16_round(a, 5, 5)
    a("v_add_f32 v5, %s, v5" % f32(1e-5))
    bf16_round(a, 5, 5)
    a("v_sqrt_f32 v5, v5")
    a("s_nop 0")
    bf16_round(a, 5, 5)
    a("v_rcp_f32 v6, v5")
    a("s_nop 0")
    a("v_mul_f32 v7, v3, v6")
    a("v_sub_f32 v7, 0, v7")
    a("v_and_b32 v3, 31, v1")
    a("s_lshl_b32 s%d, s%d, 5" % (S_T0, S_LW))
    a("v_add_u32 v3, s%d, v3" % S_T0)
    a("v_lshlrev_b32 v3, 3, v3")
    a("v_add_u32 v3, %d, v3" % c.LDS_STATS)
    a("ds_write_b64 v3, v[6:7]")
    a("s_lshl_b32 s%d, s%d, 6" % (S_T0, S_LW))
    a("v_add_u32 v3, s%d, v1" % S_T0)
    a("v_lshlrev_b32 v3, 2, v3")
    a("v_add_u32 v3, %d, v3" % c.LDS_CS)
    a("ds_write_b32 v3, v%d" % V_CS0)
    a("s_waitcnt lgkmcnt(0)")


def loader_loop(a, c, phases, stats, gate=None, tail=None):
    NIT = sum(p[0] for p in phases)
    NBUF, LPS = c.NBUF, c.LPS
    starts = []
    t = 0
    for p in phases:
        starts.append(t)
        t += p[0]

    def phase_of(s):
        k = 0
        for i, st in enumerate(starts):
            if s >= st:
                k = i
        return k

    def set_phase(k):
        c0 = phases[k][6] if len(phases[k]) > 6 else 0
        a("s_mov_b32 s%d, %d" % (S_KA, c0 * 128))
        a("s_mov_b32 s%d, %d" % (S_KB, c0 * phases[k][5] if c0 else 0))
        kb = phases[k][5]
        if isinstance(kb, int):
            a("s_mov_b32 s%d, %d" % (S_KBSTEP, kb))
        else:
            a(kb)

    def issue(s):
        k = phase_of(s)
        if s == starts[k]:
            set_phase(k)
        p = phases[k]
        loader_issue(a, c, p[1], p[2], p[3], p[4])

    def do_stats():
        if stats is None:
            return
        if stats == 'always':
            stats_step(a, c)
        else:
            l = a.newlabel("nostat")
            a("s_cmp_eq_u32 s%d, 0" % stats)
            a("s_cbranch_scc1 %s" % l)
            stats_step(a, c)
            a.label(l)

    a("s_mov_b32 s%d, 0" % S_BUF)
    stamp(a, 1)
    init = c.INIT
    issued = 0
    if gate is None:
        for s in range(init):
            issue(s)
            issued += 1
    else:
        set_phase(0)
        p = phases[0]
        for s in range(init):
            loader_issue(a, c, p[1], p[2], p[3], p[4], "B")
        gate()
        a("s_mov_b32 s%d, 0" % S_BUF)
        for s in range(init):
            loader_issue(a, c, p[1], p[2], p[3], p[4], "A")
            issued += 1
    stamp(a, 2)
    if stats is not None:
        stats_setup(a, c)
    a("s_waitcnt vmcnt(%d)" % ((issued - 1) * (LPS if gate is None else c.LA)))
    stamp(a, 3)
    a("s_barrier")
    it = 0
    b = -1
    while True:
        n = 0
        while issued <= b + NBUF and issued < NIT and n < c.RAMP:
            issue(issued)
            issued += 1
            n += 1
        if issued == b + NBUF + 1 or issued == NIT:
            break
        do_stats()
        a("s_waitcnt vmcnt(%d)" % ((issued - (it + 2)) * LPS))
        a("s_barrier")
        b = it
        it += 1
    while it < NIT:
        s = it + NBUF
        if s < NIT:
            k = phase_of(s)
            end_s = starts[k] + phases[k][0]
            n = end_s - s
            if s == starts[k]:
                set_phase(k)
            p = phases[k]
            lbl = a.newlabel("ld")
            if n > 1:
                a("s_mov_b32 s%d, %d" % (S_CNT, n))
                a.label(lbl)
            do_stats()
            a("s_waitcnt vmcnt(%d)" % ((NBUF - 2) * LPS))
            a("s_barrier")
            loader_issue(a, c, p[1], p[2], p[3], p[4])
            if n > 1:
                a("s_sub_u32 s%d, s%d, 1" % (S_CNT, S_CNT))
                a("s_cmp_lg_u32 s%d, 0" % S_CNT)
                a("s_cbranch_scc1 %s" % lbl)
            it += n
        else:
            do_stats()
            if tail is not None and s == NIT:
                tail[0]()
            rem = max(0, min(NBUF - 2, NIT - 2 - it))
            if tail is not None and it == NIT - 1:
                tail[2]()
            else:
                a("s_waitcnt vmcnt(%d)" % (rem * LPS + (tail[1] if tail is not None else 0)))
            a("s_barrier")
            it += 1


V_AA = 4
V_AB = 8
V_BA = 12
V_BB = 14
V_F = 16
V_ACC = 128


def compute_addr_setup(a, c):
    a("v_and_b32 v2, 31, v1")
    if not c.big:
        a("s_lshl_b32 s%d, s%d, 5" % (S_T0, S_WAVE))
        a("v_add_u32 v2, s%d, v2" % S_T0)
    a("v_lshlrev_b32 v2, 7, v2")
    a("v_bfe_u32 v3, v1, 1, 3")
    a("v_lshrrev_b32 v16, 5, v1")
    a("v_xor_b32 v3, v3, v16")
    for kk in range(4):
        a("v_xor_b32 v17, %d, v3" % (2 * kk))
        a("v_lshl_add_u32 v%d, v17, 4, v2" % (V_AB + kk))
        a("v_mov_b32 v%d, v%d" % (V_AA + kk, V_AB + kk))
    a("v_bfe_u32 v2, v1, 2, 2")
    a("v_and_b32 v3, 3, v1")
    a("v_bfe_u32 v17, v1, 4, 1")
    a("v_lshlrev_b32 v17, 1, v17")
    a("v_lshrrev_b32 v18, 1, v3")
    a("v_add_u32 v17, v17, v18")
    a("v_lshl_add_u32 v18, v16, 3, v2")
    a("v_and_b32 v3, 1, v3")
    a("v_lshlrev_b32 v3, 3, v3")
    if c.big:
        a("s_lshl_b32 s%d, s%d, 3" % (S_T0, S_WAVE))
        a("v_add_u32 v17, s%d, v17" % S_T0)
        a("v_lshl_add_u32 v3, v18, 9, v3")
        a("v_lshlrev_b32 v2, 2, v2")
        for j in range(2):
            a("v_add_u32 v19, %d, v17" % (4 * j))
            a("v_xor_b32 v19, v19, v2")
            a("v_lshl_add_u32 v19, v19, 4, v3")
            a("v_add_u32 v%d, 16384, v19" % (V_BB + j))
            a("v_mov_b32 v%d, v%d" % (V_BA + j, V_BB + j))
    else:
        a("v_lshl_add_u32 v3, v18, 7, v3")
        a("v_lshrrev_b32 v2, 1, v2")
        a("v_lshlrev_b32 v2, 2, v2")
        for j in range(2):
            a("v_add_u32 v19, %d, v17" % (4 * j))
            a("v_xor_b32 v19, v19, v2")
            a("v_lshl_add_u32 v19, v19, 4, v3")
            a("v_add_u32 v%d, 16384, v19" % (V_BB + j))
            a("v_mov_b32 v%d, v%d" % (V_BA + j, V_BB + j))
    a("s_mov_b32 s%d, 0" % S_BUF)


def frag_regs(c, fset, kq):
    per_kk = (c.MI + c.NI) * 4
    base = V_F + fset * per_kk * c.KPS + kq * per_kk
    A = [base + 4 * i for i in range(c.MI)]
    B = [base + 4 * c.MI + 4 * j for j in range(c.NI)]
    return A, B


def frag_reads(c, fset, sub):
    out = []
    if "noread" in EXP:
        return out
    for kq in range(c.KPS):
        kk = sub * c.KPS + kq
        A, B = frag_regs(c, fset, kq)
        for j in range(c.NI):
            for q in range(2):
                off = kk * 8192 + q * 2048 if c.big else kk * 2048 + q * 512
                out.append("ds_read_b64_tr_b16 v[%d:%d], v%d offset:%d" % (B[j] + 2 * q, B[j] + 2 * q + 1, V_BA + j, off))
        for i in range(c.MI):
            out.append("ds_read_b128 v[%d:%d], v%d offset:%d" % (A[i], A[i] + 3, V_AA + kk, 4096 * i))
    return out


def mfma_list(c, fset, acc, swapped):
    out = []
    if "nomfma" in EXP:
        return ["s_nop 0"]
    for kq in range(c.KPS):
        A, B = frag_regs(c, fset, kq)
        for i in range(c.MI):
            for j in range(c.NI):
                d = acc + 16 * (i * c.NI + j)
                x, w = "v[%d:%d]" % (A[i], A[i] + 3), "v[%d:%d]" % (B[j], B[j] + 3)
                if swapped:
                    x, w = w, x
                if "mfma16" in EXP:
                    out.append("v_mfma_f32_16x16x32_bf16 v[%d:%d], %s, %s, v[%d:%d]" % (d, d + 3, x, w, d, d + 3))
                    out.append("v_mfma_f32_16x16x32_bf16 v[%d:%d], %s, %s, v[%d:%d]" % (d + 4, d + 7, w, x, d + 4, d + 7))
                else:
                    out.append("v_mfma_f32_32x32x16_bf16 v[%d:%d], %s, %s, v[%d:%d]" % (d, d + 15, x, w, d, d + 15))
    return out


def addr_update(c):
    out = []
    out.append("s_add_u32 s%d, s%d, %d" % (S_BUF, S_BUF, c.STAGE))
    out.append("s_cmp_eq_u32 s%d, %d" % (S_BUF, c.STAGE * c.NBUF))
    out.append("s_cselect_b32 s%d, 0, s%d" % (S_BUF, S_BUF))
    for kk in range(4):
        out.append("v_add_u32 v%d, s%d, v%d" % (V_AA + kk, S_BUF, V_AB + kk))
    for j in range(c.NI):
        out.append("v_add_u32 v%d, s%d, v%d" % (V_BA + j, S_BUF, V_BB + j))
    return out


def emit_interleaved(a, mfmas, others, per_gap, lead=0):
    oi = 0
    if "mfma16" in EXP:
        per_gap = 1
    for n, m in enumerate(mfmas):
        a(m)
        if n >= lead:
            for _ in range(per_gap):
                if oi < len(others):
                    a(others[oi])
                    oi += 1
    while oi < len(others):
        a(others[oi])
        oi += 1


def compute_iter(a, c, acc, swapped, fs0, pf=None):
    fs = fs0
    for sub in range(c.NSUB):
        last = sub == c.NSUB - 1
        m = mfma_list(c, fs, acc, swapped)
        a("s_waitcnt lgkmcnt(0)")
        if last:
            if c.NSUB == 1:
                upd = addr_update(c)
                for u in upd:
                    a(u)
                a("s_barrier")
                emit_interleaved(a, m, frag_reads(c, fs ^ 1, 0) + (pf_step(pf) if pf else []), 3)
            else:
                a(m[0])
                a("s_barrier")
                emit_interleaved(a, m[1:], frag_reads(c, fs ^ 1, 0), 3)
        else:
            others = frag_reads(c, fs ^ 1, sub + 1)
            if sub == c.NSUB - 2:
                others = others + addr_update(c)
            if sub == 0 and pf:
                others = others + pf_step(pf)
            emit_interleaved(a, m, others, 2)
        fs ^= 1
    return fs


def compute_loop(a, c, nit, acc, swapped, pf=None):
    unroll = 1 if c.NSUB % 2 == 0 else 2
    assert nit % unroll == 0
    lbl = a.newlabel("cl")
    a("s_mov_b32 s%d, %d" % (S_CNT, nit // unroll))
    a.label(lbl)
    fs = 0
    for u in range(unroll):
        fs = compute_iter(a, c, acc, swapped, fs, pf)
    assert fs == 0
    a("s_sub_u32 s%d, s%d, 1" % (S_CNT, S_CNT))
    a("s_cmp_lg_u32 s%d, 0" % S_CNT)
    a("s_cbranch_scc1 %s" % lbl)


V_PF, V_PFD = 126, 127


def prefetch_jobs(a, jobs, vpf=V_PF, vpfd=V_PFD):
    n = 0
    per_wave = [[] for _ in range(4)]
    for ptr, total in jobs:
        share = total // 256
        for off in range(0, share, 8192):
            per_wave[n % 4].append((ptr, total, share, off))
            n += 1
    done = a.newlabel("pfdone")
    for w in range(4):
        nxt = a.newlabel("pfw")
        a("s_cmp_lg_u32 s%d, %d" % (S_WAVE, w))
        a("s_cbranch_scc1 %s" % nxt)
        for ptr, total, share, off in per_wave[w]:
            make_srd(a, SRD_F, ptr, 0, total)
            a("s_mul_i32 s%d, s2, %d" % (S_T0, share))
            a("s_add_u32 s%d, s%d, %d" % (S_T0, S_T0, off))
            if share - off < 8192:
                a("s_add_u32 s%d, s%d, %d" % (SRD_F + 2, S_T0, share - off))
            a("buffer_load_dword v%d, v%d, s[%d:%d], s%d offen" % (vpfd, vpf, SRD_F, SRD_F + 3, S_T0))
        a("s_branch %s" % done)
        a.label(nxt)
    a.label(done)


S_PFO = 85


def pf_stream_setup(a, assign, nit):
    steps = []
    for ptr, total, part, nparts in assign:
        lines = total // 256 // 128
        per = -(-lines // nparts)
        steps.append(-(-per // nit))
    L = max(steps)
    done = a.newlabel("pfs")
    for w, (ptr, total, part, nparts) in enumerate(assign):
        nxt = a.newlabel("pfsw")
        a("s_cmp_lg_u32 s%d, %d" % (S_WAVE, w))
        a("s_cbranch_scc1 %s" % nxt)
        share = total // 256
        lines = share // 128
        per = -(-lines // nparts)
        beg = part * per * 128
        end = min(share, (part + 1) * per * 128)
        make_srd(a, SRD_F, ptr, 0, total)
        a("s_mul_i32 s%d, s2, %d" % (S_PFO, share))
        a("s_add_u32 s%d, s%d, %d" % (SRD_F + 2, S_PFO, end))
        a("s_add_u32 s%d, s%d, %d" % (S_PFO, S_PFO, beg))
        a("s_branch %s" % done)
        a.label(nxt)
    a.label(done)
    a("v_lshlrev_b32 v%d, 7, v1" % V_PF)
    a("v_mov_b32 v2, 0x40000000")
    a("v_cmp_gt_u32 vcc, %d, v1" % L)
    a("s_nop 1")
    a("v_cndmask_b32 v%d, v2, v%d, vcc" % (V_PF, V_PF))
    return L * 128


def pf_step(step):
    return ["buffer_load_dword v%d, v%d, s[%d:%d], s%d offen" % (V_PFD, V_PF, SRD_F, SRD_F + 3, S_PFO),
            "s_add_u32 s%d, s%d, %d" % (S_PFO, S_PFO, step)]


def code_prefetch(a, first, last):
    if "nocpf" in EXP:
        return
    here = a.newlabel("pc")
    a("s_getpc_b64 s[%d:%d]" % (SRD_F, SRD_F + 1))
    a.label(here)
    a("s_add_u32 s%d, s%d, %s-%s" % (SRD_F, SRD_F, first, here))
    a("s_addc_u32 s%d, s%d, -1" % (SRD_F + 1, SRD_F + 1) if False else "s_addc_u32 s%d, s%d, (%s-%s)>>32" % (SRD_F + 1, SRD_F + 1, first, here))
    a("s_mov_b32 s%d, %s-%s" % (SRD_F + 2, last, first))
    a("s_mov_b32 s%d, 0x20000" % (SRD_F + 3))
    a("v_lshlrev_b32 v2, 7, v1")
    a("s_lshl_b32 s%d, s%d, 13" % (S_T0, S_J))
    a("buffer_load_dword v%d, v2, s[%d:%d], s%d offen" % (V_PFD, SRD_F, SRD_F + 3, S_T0))


def zero_acc(a, acc, n):
    for r in range(acc, acc + n):
        a("v_mov_b32 v%d, 0" % r)


def compute_start(a, c):
    a("s_barrier")
    stamp(a, 1)
    for r in frag_reads(c, 0, 0):
        a(r)


def pack_swap_store(a, src, tmp, vaddr, srd, imm, flags=""):
    if "st_sc1" in EXP: flags = " sc1"
    if "st_sc01" in EXP: flags = " sc0 sc1"
    if "st_nt" in EXP: flags = " nt"
    if "st_ntsc1" in EXP: flags = " sc1 nt"
    for p in range(8):
        a("v_cvt_pk_bf16_f32 v%d, v%d, v%d" % (tmp + p, src + 2 * p, src + 2 * p + 1))
    a("s_nop 1")
    for gp in range(2):
        b = tmp + 4 * gp
        a("v_permlane32_swap_b32 v%d, v%d" % (b, b + 2))
        a("v_permlane32_swap_b32 v%d, v%d" % (b + 1, b + 3))
    for gp in range(2):
        b = tmp + 4 * gp
        a("buffer_store_dwordx4 v[%d:%d], v%d, s[%d:%d], 0 offen offset:%d%s" % (b, b + 3, vaddr, srd, srd + 3, imm + 32 * gp, flags))


def line_store_setup(a, ld, vst, VW, VR, s_row, s_colb, ldsbase=65536):
    a("s_lshl_b32 s%d, s%d, 13" % (S_T0, S_WAVE))
    a("s_add_u32 s%d, s%d, %d" % (S_T0, S_T0, ldsbase))
    a("v_and_b32 v2, 31, v1")
    a("v_lshrrev_b32 v3, 5, v1")
    a("v_and_b32 v%d, 7, v2" % VR)
    a("v_xor_b32 v3, v3, v%d" % VR)
    a("v_lshlrev_b32 v2, 7, v2")
    a("v_add_u32 v2, s%d, v2" % S_T0)
    for q in range(4):
        a("v_xor_b32 v%d, %d, v3" % (VW + q, 2 * q))
        a("v_lshl_add_u32 v%d, v%d, 4, v2" % (VW + q, VW + q))
    a("v_lshrrev_b32 v2, 3, v1")
    a("v_and_b32 v3, 7, v1")
    a("v_xor_b32 v%d, v3, v2" % VR)
    a("v_lshlrev_b32 v%d, 4, v%d" % (VR, VR))
    a("v_lshl_add_u32 v%d, v2, 7, v%d" % (VR, VR))
    a("v_add_u32 v%d, s%d, v%d" % (VR, S_T0, VR))
    a("v_add_u32 v2, s%d, v2" % s_row)
    a("s_mov_b32 s%d, %d" % (S_T1, ld))
    a("v_mul_lo_u32 v2, v2, s%d" % S_T1)
    a("v_lshl_add_u32 v2, v3, 4, v2")
    a("v_add_u32 v%d, s%d, v2" % (vst, s_colb))


def line_pack_write(a, src, tmp, VW, j, ldsoff):
    for p in range(8):
        a("v_cvt_pk_bf16_f32 v%d, v%d, v%d" % (tmp + p, src + 2 * p, src + 2 * p + 1))
    a("s_nop 1")
    for gp in range(2):
        b = tmp + 4 * gp
        a("v_permlane32_swap_b32 v%d, v%d" % (b, b + 2))
        a("v_permlane32_swap_b32 v%d, v%d" % (b + 1, b + 3))
    for gp in range(2):
        b = tmp + 4 * gp
        a("ds_write_b128 v%d, v[%d:%d] offset:%d" % (VW + 2 * j + gp, b, b + 3, ldsoff))


def line_read(a, dst, VR, ldsoff):
    for t in range(4):
        a("ds_read_b128 v[%d:%d], v%d offset:%d" % (dst + 4 * t, dst + 4 * t + 3, VR, ldsoff + 1024 * t))


def line_store(a, src, vst, vtmp, srd, ld, i, flags=" sc1", extra=0):
    for t in range(4):
        a("v_add_u32 v%d, 0x%x, v%d" % (vtmp + t, (32 * i + 8 * t) * ld + extra, vst))
    for t in range(4):
        a("buffer_store_dwordx4 v[%d:%d], v%d, s[%d:%d], 0 offen%s" % (src + 4 * t, src + 4 * t + 3, vtmp + t, srd, srd + 3, flags))


def epi_lines(a, c, srd, ld, shift_sgpr, mathfn, VP, VD, VW, VR, VST, VAT):
    if shift_sgpr is not None:
        a("s_add_u32 s%d, s%d, s%d" % (S_T2, S_ROW0, shift_sgpr))
    else:
        a("s_mov_b32 s%d, s%d" % (S_T2, S_ROW0))
    a("s_lshl_b32 s%d, s%d, 6" % (S_T3, S_WAVE))
    a("s_add_u32 s%d, s%d, s%d" % (S_T3, S_T3, S_COL0))
    a("s_lshl_b32 s%d, s%d, 1" % (S_T3, S_T3))
    line_store_setup(a, ld, VST, VW, VR, S_T2, S_T3)
    for i in range(4):
        off = 4096 * (i & 1)
        for j in range(2):
            acc = V_ACC + 16 * (i * 2 + j)
            mathfn(i, j, acc)
            if j == 0 and i > 0:
                a("s_waitcnt lgkmcnt(0)")
                line_store(a, VD, VST, VAT, srd, ld, i - 1)
            line_pack_write(a, acc, VP + 8 * j, VW, j, off)
        line_read(a, VD, VR, off)
    a("s_waitcnt lgkmcnt(0)")
    line_store(a, VD, VST, VAT, srd, ld, 3)


def phi_inplace(a, regs, tmp, vconst):
    n = len(regs)
    for p in range(n):
        a("v_pk_mul_f32 v[%d:%d], v[%d:%d], v[%d:%d] op_sel:[0,0] op_sel_hi:[1,0]" % (tmp + 2 * p, tmp + 2 * p + 1, regs[p], regs[p] + 1, vconst, vconst + 1))
    for p in range(n):
        a("v_exp_f32 v%d, v%d clamp" % (tmp + 2 * p, tmp + 2 * p))
        a("v_exp_f32 v%d, v%d clamp" % (tmp + 2 * p + 1, tmp + 2 * p + 1))
    for p in range(n):
        a("v_max_f32 v%d, 0, v%d" % (regs[p], regs[p]))
        a("v_max_f32 v%d, 0, v%d" % (regs[p] + 1, regs[p] + 1))
    for p in range(n):
        a("v_pk_add_f32 v[%d:%d], v[%d:%d], v[%d:%d] op_sel:[0,1] op_sel_hi:[1,1]" % (tmp + 2 * p, tmp + 2 * p + 1, tmp + 2 * p, tmp + 2 * p + 1, vconst, vconst + 1))
    for p in range(n):
        a("v_pk_add_f32 v[%d:%d], v[%d:%d], v[%d:%d]" % (regs[p], regs[p] + 1, regs[p], regs[p] + 1, tmp + 2 * p, tmp + 2 * p + 1))


def ln_gelu_inplace(a, regs, tmp, vstat, vcs, vconst):
    n = len(regs)
    P = lambda r: "v[%d:%d]" % (r, r + 1)
    for p in range(n):
        a("v_pk_mul_f32 %s, %s, %s op_sel:[0,0] op_sel_hi:[1,0]" % (P(regs[p]), P(regs[p]), P(vstat)))
    for p in range(n):
        a("v_pk_fma_f32 %s, %s, %s, %s op_sel:[0,1,0] op_sel_hi:[1,1,1]" % (P(regs[p]), P(vcs + 2 * p), P(vstat), P(regs[p])))
    for p in range(n):
        a("v_pk_mul_f32 %s, %s, %s" % (P(tmp + 2 * p), P(regs[p]), P(regs[p])))
    for p in range(n):
        a("v_pk_fma_f32 %s, %s, %s, %s op_sel:[0,0,1] op_sel_hi:[1,0,1]" % (P(tmp + 2 * p), P(tmp + 2 * p), P(vconst), P(vconst)))
    for p in range(n):
        a("v_pk_mul_f32 %s, %s, %s" % (P(tmp + 2 * p), P(tmp + 2 * p), P(regs[p])))
    for p in range(n):
        a("v_exp_f32 v%d, v%d" % (tmp + 2 * p, tmp + 2 * p))
        a("v_exp_f32 v%d, v%d" % (tmp + 2 * p + 1, tmp + 2 * p + 1))
    for p in range(n):
        a("v_pk_add_f32 %s, %s, 1.0 op_sel_hi:[1,0]" % (P(tmp + 2 * p), P(tmp + 2 * p)))
    for p in range(n):
        a("v_rcp_f32 v%d, v%d" % (tmp + 2 * p, tmp + 2 * p))
        a("v_rcp_f32 v%d, v%d" % (tmp + 2 * p + 1, tmp + 2 * p + 1))
    for p in range(n):
        a("v_pk_mul_f32 %s, %s, %s" % (P(regs[p]), P(regs[p]), P(tmp + 2 * p)))


def epi_store_addr(a, c, ld, vdst, n_i, shift_sgpr=None):
    a("v_and_b32 v2, 31, v1")
    a("v_add_u32 v2, s%d, v2" % S_ROW0)
    if shift_sgpr is not None:
        a("v_add_u32 v2, s%d, v2" % shift_sgpr)
    if c.big:
        a("s_lshl_b32 s%d, s%d, 6" % (S_T0, S_WAVE))
    else:
        a("s_lshr_b32 s%d, s%d, 1" % (S_T1, S_WAVE))
        a("s_lshl_b32 s%d, s%d, 6" % (S_T1, S_T1))
        a("v_add_u32 v2, s%d, v2" % S_T1)
        a("s_and_b32 s%d, s%d, 1" % (S_T0, S_WAVE))
        a("s_lshl_b32 s%d, s%d, 5" % (S_T0, S_T0))
    a("s_add_u32 s%d, s%d, s%d" % (S_T0, S_T0, S_COL0))
    a("s_lshl_b32 s%d, s%d, 1" % (S_T0, S_T0))
    a("s_mov_b32 s%d, %d" % (S_T1, ld))
    a("v_mul_lo_u32 v2, v2, s%d" % S_T1)
    a("v_lshrrev_b32 v3, 5, v1")
    a("v_lshl_add_u32 v2, v3, 4, v2")
    a("v_add_u32 v%d, s%d, v2" % (vdst, S_T0))
    for i in range(1, n_i):
        a("v_add_u32 v%d, 0x%x, v%d" % (vdst + i, 32 * ld * i, vdst))


S_STOFF = 86
NI_EPI = 4


def xfer_send(a):
    if NI_EPI == 4:
        a("s_mov_b32 s%d, 0" % S_STOFF)
        a("s_nop 15")
        return
    a("s_lshl_b32 s%d, s%d, 14" % (S_T0, S_WAVE))
    a("v_lshlrev_b32 v2, 4, v1")
    a("v_add_u32 v2, s%d, v2" % S_T0)
    a("s_mov_b32 s%d, 0" % S_STOFF)
    a("s_nop 15")
    for q in range(16):
        a("ds_write_b128 v2, v[%d:%d] offset:%d" % (V_ACC + 64 + 4 * q, V_ACC + 67 + 4 * q, 1024 * q))


def xfer_recv(a):
    a("s_lshl_b32 s%d, s%d, 14" % (S_T0, S_LW))
    a("v_lshlrev_b32 v2, 4, v1")
    a("v_add_u32 v2, s%d, v2" % S_T0)
    for q in range(16):
        a("ds_read_b128 v[%d:%d], v2 offset:%d" % (V_ACC + 4 * q, V_ACC + 3 + 4 * q, 1024 * q))
    a("s_mov_b32 s%d, s%d" % (S_WAVE, S_LW))
    a("s_add_u32 s%d, s%d, 64" % (S_ROW0, S_ROW0))
    a("s_mov_b32 s%d, 512" % S_STOFF)
    a("s_waitcnt lgkmcnt(0)")


def epi_ln_gelu(a, c, srd, ld, shift_sgpr):
    VST, VSTAT, VCS, VC, VT, VP = 4, 8, 16, 48, 64, 96
    epi_store_addr(a, c, ld, VST, NI_EPI, shift_sgpr)
    a("v_and_b32 v2, 31, v1")
    a("v_lshlrev_b32 v2, 3, v2")
    a("v_add_u32 v2, %d, v2" % c.LDS_STATS)
    a("v_add_u32 v2, s%d, v2" % S_STOFF)
    for i in range(NI_EPI):
        a("ds_read_b64 v[%d:%d], v2 offset:%d" % (VSTAT + 2 * i, VSTAT + 2 * i + 1, 256 * i))
    a("v_lshrrev_b32 v3, 5, v1")
    a("v_lshlrev_b32 v3, 4, v3")
    a("s_lshl_b32 s%d, s%d, 8" % (S_T0, S_WAVE))
    a("v_add_u32 v3, s%d, v3" % S_T0)
    a("v_add_u32 v3, %d, v3" % c.LDS_CS)
    for j in range(2):
        for g in range(4):
            a("ds_read_b128 v[%d:%d], v3 offset:%d" % (VCS + 16 * j + 4 * g, VCS + 16 * j + 4 * g + 3, 128 * j + 32 * g))
    a("v_mov_b32 v%d, %s" % (VC, f32(GC1)))
    a("v_mov_b32 v%d, %s" % (VC + 1, f32(GC0)))
    a("s_waitcnt lgkmcnt(0)")
    if "nolines" not in EXP:
        epi_lines(a, c, srd, ld, shift_sgpr,
                  lambda i, j, acc: ln_gelu_inplace(a, [acc + 2 * p for p in range(8)], VT, VSTAT + 2 * i, VCS + 16 * j, VC),
                  96, 80, 52, 56, 57, 58)
        return
    n = 0
    for i in range(NI_EPI):
        for j in range(2):
            acc = V_ACC + 16 * (i * 2 + j)
            ln_gelu_inplace(a, [acc + 2 * p for p in range(8)], VT, VSTAT + 2 * i, VCS + 16 * j, VC)
            pack_swap_store(a, acc, VP + 8 * (n & 1), VST + i, srd, 64 * j)
            n += 1


def epi_phi_q(a, c, srd, ld):
    VST, VC, VT, VP = 4, 48, 64, 96
    epi_store_addr(a, c, ld, VST, NI_EPI)
    a("v_mov_b32 v%d, %s" % (VC, f32(LOG2E)))
    a("v_mov_b32 v%d, %s" % (VC + 1, f32(1e-6)))
    if "nolines" not in EXP:
        epi_lines(a, c, srd, ld, None,
                  lambda i, j, acc: phi_inplace(a, [acc + 2 * p for p in range(8)], VT, VC),
                  96, 80, 52, 56, 57, 58)
        return
    n = 0
    for i in range(NI_EPI):
        for j in range(2):
            acc = V_ACC + 16 * (i * 2 + j)
            phi_inplace(a, [acc + 2 * p for p in range(8)], VT, VC)
            pack_swap_store(a, acc, VP + 8 * (n & 1), VST + i, srd, 64 * j)
            n += 1


def epi_kv(a, c):
    VC, VT, VPK, VV, VONE, VKV, VZ = 48, 64, 16, 24, 32, 80, 96
    a("v_mov_b32 v%d, %s" % (VC, f32(LOG2E)))
    a("v_mov_b32 v%d, %s" % (VC + 1, f32(1e-6)))
    for r in range(4):
        a("v_mov_b32 v%d, 0x3f803f80" % (VONE + r))
    zero_acc(a, VKV, 32)
    for i in range(4):
        kacc = V_ACC + 32 * i
        vacc = kacc + 16
        phi_inplace(a, [kacc + 2 * p for p in range(8)], VT, VC)
        for p in range(8):
            a("v_cvt_pk_bf16_f32 v%d, v%d, v%d" % (VPK + p, kacc + 2 * p, kacc + 2 * p + 1))
        for p in range(8):
            a("v_cvt_pk_bf16_f32 v%d, v%d, v%d" % (VV + p, vacc + 2 * p, vacc + 2 * p + 1))
        a("s_nop 1")
        for m in range(2):
            a("v_mfma_f32_32x32x16_bf16 v[%d:%d], v[%d:%d], v[%d:%d], v[%d:%d]" % (VKV, VKV + 15, VPK + 4 * m, VPK + 4 * m + 3, VV + 4 * m, VV + 4 * m + 3, VKV, VKV + 15))
            a("v_mfma_f32_32x32x16_bf16 v[%d:%d], v[%d:%d], v[%d:%d], v[%d:%d]" % (VZ, VZ + 15, VPK + 4 * m, VPK + 4 * m + 3, VONE, VONE + 3, VZ, VZ + 15))
    a("s_sub_u32 s%d, s%d, 4" % (S_T0, S_CT))
    a("s_lshl_b32 s%d, s%d, 2" % (S_T0, S_T0))
    a("s_add_u32 s%d, s%d, s%d" % (S_T0, S_T0, S_WAVE))
    a("s_lshl_b32 s%d, s%d, 5" % (S_T1, S_RB))
    a("s_add_u32 s%d, s%d, s%d" % (S_T0, S_T0, S_T1))
    a("s_lshl_b32 s%d, s%d, 12" % (S_T1, S_T0))
    a("s_lshl_b32 s%d, s%d, 7" % (S_T2, S_T0))
    a("v_and_b32 v2, 31, v1")
    a("v_lshrrev_b32 v3, 5, v1")
    a("v_lshlrev_b32 v3, 4, v3")
    a("v_lshl_add_u32 v4, v2, 7, v3")
    a("v_add_u32 v4, s%d, v4" % S_T1)
    a("v_add_u32 v5, s%d, v3" % S_T2)
    a("v_cmp_eq_u32 vcc, 0, v2")
    a("s_nop 15")
    for g in range(4):
        a("buffer_store_dwordx4 v[%d:%d], v4, s[%d:%d], 0 offen offset:%d" % (VKV + 4 * g, VKV + 4 * g + 3, SRD_D, SRD_D + 3, 32 * g))
    a("s_and_saveexec_b64 s[%d:%d], vcc" % (S_EXEC, S_EXEC + 1))
    for g in range(4):
        a("buffer_store_dwordx4 v[%d:%d], v5, s[%d:%d], 0 offen offset:%d" % (VZ + 4 * g, VZ + 4 * g + 3, SRD_E, SRD_E + 3, 32 * g))
    a("s_mov_b64 exec, s[%d:%d]" % (S_EXEC, S_EXEC + 1))


def gen_k1(a):
    name = "k1_kernel"
    c = Cfg(256, 3)
    kernel_header(a, name, 256)
    a("s_and_b32 s%d, s%d, 1" % (S_T0, S_XCD))
    a("s_lshl_b32 s%d, s%d, 3" % (S_T0, S_T0))
    a("s_and_b32 s%d, s%d, 7" % (S_T1, S_J))
    a("s_add_u32 s%d, s%d, s%d" % (S_RB, S_T0, S_T1))
    a("s_lshr_b32 s%d, s%d, 1" % (S_T0, S_XCD))
    a("s_lshl_b32 s%d, s%d, 2" % (S_T0, S_T0))
    a("s_lshr_b32 s%d, s%d, 3" % (S_T1, S_J))
    a("s_add_u32 s%d, s%d, s%d" % (S_CT, S_T0, S_T1))
    a("s_lshl_b32 s%d, s%d, 7" % (S_ROW0, S_RB))
    a("s_waitcnt lgkmcnt(0)")
    make_srd(a, SRD_A, P_X, 0, S * D * 2)
    make_srd(a, SRD_D, P_WS, WS_KVP, 2 * MB)
    make_srd(a, SRD_E, P_WS, WS_ZP, 65536)
    lq, lkv, lw1, ldone = "L_k1_tq", "L_k1_tkv", "L_k1_tw1", "L_k1_tdone"
    a("s_cmp_lt_u32 s%d, 4" % S_CT)
    a("s_cbranch_scc1 %s" % lq)
    a("s_cmp_lt_u32 s%d, 12" % S_CT)
    a("s_cbranch_scc1 %s" % lkv)
    a.label(lw1)
    a("s_mov_b32 s%d, 2" % S_TYPE)
    make_srd(a, SRD_B, P_W1, 0, D * D * 2)
    make_srd(a, SRD_C, P_WS, WS_HS, S * D * 2)
    a("s_mov_b32 s%d, 2048" % S_LDB)
    a("s_sub_u32 s%d, s%d, 12" % (S_T0, S_CT))
    a("s_lshl_b32 s%d, s%d, 8" % (S_COL0, S_T0))
    a("s_mov_b32 s%d, 32" % S_SA)
    a("s_mov_b32 s%d, 64" % S_SB)
    a("s_lshr_b32 s%d, s%d, 1" % (S_T1, S_T0))
    a("s_add_u32 s%d, s%d, 1" % (S_T1, S_T1))
    a("s_sub_u32 s%d, 0, s%d" % (S_T2, S_T1))
    a("s_and_b32 s%d, s%d, 1" % (S_T0, S_T0))
    a("s_cmp_eq_u32 s%d, 0" % S_T0)
    a("s_cselect_b32 s%d, s%d, s%d" % (S_SHIFT, S_T1, S_T2))
    a("s_branch %s" % ldone)
    a.label(lq)
    a("s_mov_b32 s%d, 0" % S_TYPE)
    make_srd(a, SRD_B, P_WQKV, 0, D * 3 * D * 2)
    make_srd(a, SRD_C, P_WS, WS_PQ, S * D * 2)
    a("s_mov_b32 s%d, 6144" % S_LDB)
    a("s_lshl_b32 s%d, s%d, 8" % (S_COL0, S_CT))
    a("s_mov_b32 s%d, 32" % S_SA)
    a("s_mov_b32 s%d, 64" % S_SB)
    a("s_mov_b32 s%d, 0" % S_SHIFT)
    a("s_branch %s" % ldone)
    a.label(lkv)
    a("s_mov_b32 s%d, 1" % S_TYPE)
    make_srd(a, SRD_B, P_WQKV, 0, D * 3 * D * 2)
    make_srd(a, SRD_C, P_WS, WS_PQ, S * D * 2)
    a("s_mov_b32 s%d, 6144" % S_LDB)
    a("s_sub_u32 s%d, s%d, 4" % (S_T0, S_CT))
    a("s_lshl_b32 s%d, s%d, 7" % (S_T0, S_T0))
    a("s_add_u32 s%d, s%d, 1024" % (S_COL0, S_T0))
    a("s_mov_b32 s%d, 1024" % S_SA)
    a("s_mov_b32 s%d, 32" % S_SB)
    a("s_mov_b32 s%d, 0" % S_SHIFT)
    a.label(ldone)
    a("s_cmp_ge_u32 s%d, 4" % S_WAVE)
    a("s_cbranch_scc1 L_k1_loader")
    a("s_or_b32 s%d, s2, s%d" % (S_T0, S_WAVE))
    a("s_cmp_lg_u32 s%d, 0" % S_T0)
    a("s_cbranch_scc1 L_k1_noclr")
    make_srd(a, SRD_F, P_WS, WS_FLAG, 8192)
    a("v_lshlrev_b32 v2, 4, v1")
    for r in range(4):
        a("v_mov_b32 v%d, 0" % (4 + r))
    for t in range(4):
        a("buffer_store_dwordx4 v[4:7], v2, s[%d:%d], 0 offen offset:%d" % (SRD_F, SRD_F + 3, 1024 * t))
    a("v_add_u32 v2, 4096, v2")
    for t in range(4):
        a("buffer_store_dwordx4 v[4:7], v2, s[%d:%d], 0 offen offset:%d" % (SRD_F, SRD_F + 3, 1024 * t))
    a("s_nop 1")
    a.label("L_k1_noclr")
    a("s_cmp_lg_u32 s%d, 1" % S_WAVE)
    a("s_cbranch_scc1 L_k1_nocpf")
    code_prefetch(a, "k1_kernel", "L_code_end")
    a.label("L_k1_nocpf")
    PF = "nopf" not in EXP
    if PF and "k1nox" not in EXP:
        a("v_lshlrev_b32 v%d, 7, v1" % V_PF)
        prefetch_jobs(a, [(P_X, S * D * 2)])
    compute_addr_setup(a, c)
    zero_acc(a, V_ACC, 128)
    pf = None
    PF0 = 0
    for e in EXP:
        if e.startswith("pf0_"): PF0 = int(e[4:])
    if PF and "k1nolate" not in EXP:
        pf = pf_stream_setup(a, [(P_W2, D * D * 2, 0, 1), (P_W3, D * F * 2, 0, 3), (P_W3, D * F * 2, 1, 3), (P_W3, D * F * 2, 2, 3)], 16 - PF0)
    compute_start(a, c)
    a("s_cmp_eq_u32 s%d, 1" % S_TYPE)
    a("s_cbranch_scc1 L_k1_kvloop")
    if PF0:
        compute_loop(a, c, PF0, V_ACC, True, None)
    compute_loop(a, c, 16 - PF0, V_ACC, True, pf)
    stamp(a, 2)
    a("s_waitcnt lgkmcnt(0)")
    xfer_send(a)
    a("s_waitcnt lgkmcnt(0)")
    a("s_barrier")
    a.label("L_k1_epi")
    a("s_cmp_eq_u32 s%d, 0" % S_TYPE)
    a("s_cbranch_scc1 L_k1_epq")
    epi_ln_gelu(a, c, SRD_C, 2048, S_SHIFT)
    a("s_branch L_%s_cdone" % name)
    a.label("L_k1_epq")
    epi_phi_q(a, c, SRD_C, 2048)
    a("s_branch L_%s_cdone" % name)
    a.label("L_k1_kvloop")
    if PF0:
        compute_loop(a, c, PF0, V_ACC, False, None)
    compute_loop(a, c, 16 - PF0, V_ACC, False, pf)
    stamp(a, 2)
    a("s_waitcnt lgkmcnt(0)")
    a("s_barrier")
    a("s_nop 15")
    epi_kv(a, c)
    a("s_branch L_%s_cdone" % name)
    a.label("L_k1_loader")
    a("s_sub_u32 s%d, s%d, 4" % (S_LW, S_WAVE))
    loader_a_offsets(a, V_LA, 2048)
    loader_b_offsets_big(a, V_LB)
    a("s_cmp_eq_u32 s%d, 2" % S_TYPE)
    a("s_cselect_b32 s%d, 1, 0" % S_C0)
    loader_loop(a, c, [(16, SRD_A, SRD_B, V_LA, V_LB, "s_lshl_b32 s%d, s%d, 6" % (S_KBSTEP, S_LDB))], S_C0)
    a("s_cmp_eq_u32 s%d, 0" % S_C0)
    a("s_cbranch_scc1 L_k1_nofin")
    stats_finish(a, c)
    a("s_cmp_lg_u32 s%d, 0" % S_LW)
    a("s_cbranch_scc1 L_k1_nofin")
    a("s_cmp_gt_i32 s%d, 0" % S_SHIFT)
    a("s_cselect_b32 s%d, 0, 15" % S_T0)
    a("s_cmp_lg_u32 s%d, s%d" % (S_T0, S_RB))
    a("s_cbranch_scc1 L_k1_nofin")
    a("s_cmp_gt_i32 s%d, 0" % S_SHIFT)
    a("s_cselect_b32 s%d, 0, 2046" % S_T0)
    a("s_cselect_b32 s%d, s%d, 0" % (S_T1, S_SHIFT))
    a("v_lshrrev_b32 v3, 5, v1")
    a("v_add_u32 v3, s%d, v3" % S_T0)
    a("v_and_b32 v4, 31, v1")
    a("v_lshlrev_b32 v4, 4, v4")
    a("v_lshl_add_u32 v4, v3, 11, v4")
    a("s_lshl_b32 s%d, s%d, 1" % (S_T2, S_COL0))
    a("v_add_u32 v4, s%d, v4" % S_T2)
    a("s_add_u32 s%d, s%d, 2048" % (S_T2, S_SHIFT))
    a("s_cmp_gt_i32 s%d, 0" % S_SHIFT)
    a("s_cselect_b32 s%d, 0, s%d" % (S_T2, S_T2))
    a("s_cselect_b32 s%d, s%d, 2048" % (S_T1, S_SHIFT))
    a("v_cmp_le_u32 vcc, s%d, v3" % S_T2)
    a("v_cmp_gt_u32 s[%d:%d], s%d, v3" % (S_C0 + 2, S_C0 + 3, S_T1))
    a("v_mov_b32 v8, 0")
    a("v_mov_b32 v9, 0")
    a("v_mov_b32 v10, 0")
    a("v_mov_b32 v11, 0")
    a("s_and_b64 vcc, vcc, s[%d:%d]" % (S_C0 + 2, S_C0 + 3))
    a("s_and_saveexec_b64 s[%d:%d], vcc" % (S_EXEC, S_EXEC + 1))
    a("buffer_store_dwordx4 v[8:11], v4, s[%d:%d], 0 offen" % (SRD_C, SRD_C + 3))
    a("s_mov_b64 exec, s[%d:%d]" % (S_EXEC, S_EXEC + 1))
    a.label("L_k1_nofin")
    a("s_barrier")
    if NI_EPI == 2:
        a("s_cmp_eq_u32 s%d, 1" % S_TYPE)
        a("s_cbranch_scc1 L_%s_ldone" % name)
        xfer_recv(a)
        a("s_branch L_k1_epi")
    kernel_footer(a, name)
    descriptor(a, name)
    return name, 256, c.LDS_TOTAL


def small_tile_decode(a):
    a("s_and_b32 s%d, s%d, 3" % (S_T0, S_XCD))
    a("s_lshl_b32 s%d, s%d, 2" % (S_T0, S_T0))
    a("s_and_b32 s%d, s%d, 3" % (S_T1, S_J))
    a("s_add_u32 s%d, s%d, s%d" % (S_RB, S_T0, S_T1))
    a("s_lshr_b32 s%d, s%d, 2" % (S_T0, S_XCD))
    a("s_lshl_b32 s%d, s%d, 3" % (S_T0, S_T0))
    a("s_lshr_b32 s%d, s%d, 2" % (S_T1, S_J))
    a("s_add_u32 s%d, s%d, s%d" % (S_CT, S_T0, S_T1))
    a("s_lshl_b32 s%d, s%d, 7" % (S_ROW0, S_RB))
    a("s_lshl_b32 s%d, s%d, 6" % (S_COL0, S_CT))


def load_resid(a, c, dst, vaddr, srd, fl=""):
    for g in range(4):
        a("buffer_load_dwordx2 v[%d:%d], v%d, s[%d:%d], 0 offen offset:%d%s" % (dst + 2 * g, dst + 2 * g + 1, vaddr, srd, srd + 3, 16 * g, fl))


def unpack_bf16(a, dst, src, n):
    for p in range(n):
        a("v_lshlrev_b32 v%d, 16, v%d" % (dst + 2 * p, src + p))
        a("v_and_b32 v%d, 0xffff0000, v%d" % (dst + 2 * p + 1, src + p))


def round_regs_bf16(a, regs, n, tmp):
    for p in range(n // 2):
        a("v_cvt_pk_bf16_f32 v%d, v%d, v%d" % (tmp + p, regs + 2 * p, regs + 2 * p + 1))
    unpack_bf16(a, regs, tmp, n // 2)


def kv_reduce(a):
    lz, ldone, lcs = "L_k2_zred", "L_k2_reddone", "L_k2_cs"
    a("s_cmp_eq_u32 s%d, 1" % S_WAVE)
    a("s_cbranch_scc1 %s" % lz)
    a("s_cmp_lg_u32 s%d, 0" % S_WAVE)
    a("s_cbranch_scc1 %s" % lcs)
    make_srd(a, SRD_E, P_WS, WS_KVP, 2 * MB)
    make_srd(a, SRD_F, P_WS, WS_KVB, 65536)
    a("v_and_b32 v2, 31, v1")
    a("v_lshrrev_b32 v3, 5, v1")
    a("v_lshlrev_b32 v3, 20, v3")
    a("v_lshl_add_u32 v3, v2, 4, v3")
    a("s_lshl_b32 s%d, s2, 9" % S_T0)
    a("v_add_u32 v3, s%d, v3" % S_T0)
    for r in range(8):
        a("s_mov_b32 s%d, 0x%x" % (S_T1, r * 131072))
        a("buffer_load_dwordx4 v[%d:%d], v3, s[%d:%d], s%d offen" % (16 + 4 * r, 19 + 4 * r, SRD_E, SRD_E + 3, S_T1))
    a("s_waitcnt vmcnt(0)")
    for r in range(1, 8):
        a("v_pk_add_f32 v[16:17], v[16:17], v[%d:%d]" % (16 + 4 * r, 17 + 4 * r))
        a("v_pk_add_f32 v[18:19], v[18:19], v[%d:%d]" % (18 + 4 * r, 19 + 4 * r))
    for r in range(4):
        a("v_mov_b32 v%d, v%d" % (20 + r, 16 + r))
    a("s_nop 1")
    for r in range(4):
        a("v_permlane32_swap_b32 v%d, v%d" % (16 + r, 20 + r))
    a("s_nop 1")
    a("v_pk_add_f32 v[16:17], v[16:17], v[20:21]")
    a("v_pk_add_f32 v[18:19], v[18:19], v[22:23]")
    a("v_cvt_pk_bf16_f32 v16, v16, v17")
    a("v_cvt_pk_bf16_f32 v17, v18, v19")
    a("s_lshl_b32 s%d, s2, 8" % S_T0)
    a("v_lshlrev_b32 v2, 3, v2")
    a("v_add_u32 v2, s%d, v2" % S_T0)
    a("s_mov_b32 exec_hi, 0")
    a("buffer_store_dwordx2 v[16:17], v2, s[%d:%d], 0 offen%s" % (SRD_F, SRD_F + 3, HO))
    a("s_mov_b64 exec, -1")
    a("s_branch %s" % ldone)
    a.label(lz)
    a("s_and_b32 s%d, s2, 7" % S_T0)
    a("s_cmp_lg_u32 s%d, 0" % S_T0)
    a("s_cbranch_scc1 %s" % ldone)
    make_srd(a, SRD_E, P_WS, WS_ZP, 65536)
    make_srd(a, SRD_F, P_WS, WS_ZB, 2048)
    a("v_and_b32 v2, 7, v1")
    a("v_lshrrev_b32 v3, 3, v1")
    a("v_lshlrev_b32 v3, 12, v3")
    a("v_lshl_add_u32 v3, v2, 4, v3")
    a("s_lshl_b32 s%d, s2, 4" % S_T0)
    a("v_add_u32 v3, s%d, v3" % S_T0)
    a("s_mov_b32 s%d, 0x8000" % S_T1)
    a("buffer_load_dwordx4 v[16:19], v3, s[%d:%d], 0 offen" % (SRD_E, SRD_E + 3))
    a("buffer_load_dwordx4 v[20:23], v3, s[%d:%d], s%d offen" % (SRD_E, SRD_E + 3, S_T1))
    a("s_waitcnt vmcnt(0)")
    a("v_pk_add_f32 v[16:17], v[16:17], v[20:21]")
    a("v_pk_add_f32 v[18:19], v[18:19], v[22:23]")
    for pat in (0x201F, 0x401F):
        for r in range(4):
            a("ds_swizzle_b32 v%d, v%d offset:0x%x" % (20 + r, 16 + r, pat))
        a("s_waitcnt lgkmcnt(0)")
        a("v_pk_add_f32 v[16:17], v[16:17], v[20:21]")
        a("v_pk_add_f32 v[18:19], v[18:19], v[22:23]")
    for r in range(4):
        a("v_mov_b32 v%d, v%d" % (20 + r, 16 + r))
    a("s_nop 1")
    for r in range(4):
        a("v_permlane32_swap_b32 v%d, v%d" % (16 + r, 20 + r))
    a("s_nop 1")
    a("v_pk_add_f32 v[16:17], v[16:17], v[20:21]")
    a("v_pk_add_f32 v[18:19], v[18:19], v[22:23]")
    a("v_cvt_pk_bf16_f32 v16, v16, v17")
    a("v_cvt_pk_bf16_f32 v17, v18, v19")
    a("s_lshl_b32 s%d, s2, 3" % S_T0)
    a("v_lshlrev_b32 v2, 3, v2")
    a("v_add_u32 v2, s%d, v2" % S_T0)
    a("s_mov_b64 exec, 0xff")
    a("buffer_store_dwordx2 v[16:17], v2, s[%d:%d], 0 offen%s" % (SRD_F, SRD_F + 3, HO))
    a("s_mov_b64 exec, -1")
    a("s_branch %s" % ldone)
    a.label(lcs)
    a("s_cmp_ge_u32 s2, 224")
    a("s_cbranch_scc1 %s" % ldone)
    make_srd(a, SRD_E, P_W3, 0, D * F * 2)
    make_srd(a, SRD_F, P_WS, WS_CSP, 8 * F * 4)
    a("s_lshl_b32 s%d, s2, 1" % S_T0)
    a("s_add_u32 s%d, s%d, s%d" % (S_T0, S_T0, S_WAVE))
    a("s_sub_u32 s%d, s%d, 2" % (S_T0, S_T0))
    a("s_mul_i32 s%d, s%d, 1171" % (S_T1, S_T0))
    a("s_lshr_b32 s%d, s%d, 16" % (S_T1, S_T1))
    a("s_mul_i32 s%d, s%d, 56" % (S_T2, S_T1))
    a("s_sub_u32 s%d, s%d, s%d" % (S_T2, S_T0, S_T2))
    a("v_lshrrev_b32 v3, 3, v1")
    a("s_lshl_b32 s%d, s%d, 7" % (S_T0, S_T1))
    a("v_add_u32 v3, s%d, v3" % S_T0)
    a("s_mov_b32 s%d, %d" % (S_T0, F * 2))
    a("v_mul_lo_u32 v3, v3, s%d" % S_T0)
    a("v_and_b32 v2, 7, v1")
    a("v_lshl_add_u32 v3, v2, 4, v3")
    a("s_lshl_b32 s%d, s%d, 7" % (S_T0, S_T2))
    a("v_add_u32 v3, s%d, v3" % S_T0)
    for t in range(16):
        a("s_mov_b32 s%d, %d" % (S_T0, t * 8 * F * 2))
        a("buffer_load_dwordx4 v[%d:%d], v3, s[%d:%d], s%d offen" % (32 + 4 * t, 35 + 4 * t, SRD_E, SRD_E + 3, S_T0))
    for r in range(8):
        a("v_mov_b32 v%d, 0" % (16 + r))
    for t in range(16):
        a("s_waitcnt vmcnt(%d)" % (15 - t))
        unpack_bf16(a, 24, 32 + 4 * t, 4)
        for q in range(4):
            a("v_pk_add_f32 v[%d:%d], v[%d:%d], v[%d:%d]" % (16 + 2 * q, 17 + 2 * q, 16 + 2 * q, 17 + 2 * q, 24 + 2 * q, 25 + 2 * q))
    for pat in (0x201F, 0x401F):
        for r in range(8):
            a("ds_swizzle_b32 v%d, v%d offset:0x%x" % (24 + r, 16 + r, pat))
        a("s_waitcnt lgkmcnt(0)")
        for q in range(4):
            a("v_pk_add_f32 v[%d:%d], v[%d:%d], v[%d:%d]" % (16 + 2 * q, 17 + 2 * q, 16 + 2 * q, 17 + 2 * q, 24 + 2 * q, 25 + 2 * q))
    for r in range(8):
        a("v_mov_b32 v%d, v%d" % (24 + r, 16 + r))
    a("s_nop 1")
    for r in range(8):
        a("v_permlane32_swap_b32 v%d, v%d" % (16 + r, 24 + r))
    a("s_nop 1")
    for q in range(4):
        a("v_pk_add_f32 v[%d:%d], v[%d:%d], v[%d:%d]" % (16 + 2 * q, 17 + 2 * q, 16 + 2 * q, 17 + 2 * q, 24 + 2 * q, 25 + 2 * q))
    a("s_mul_i32 s%d, s%d, %d" % (S_T0, S_T1, F * 4))
    a("s_lshl_b32 s%d, s%d, 8" % (S_T2, S_T2))
    a("s_add_u32 s%d, s%d, s%d" % (S_T0, S_T0, S_T2))
    a("v_lshlrev_b32 v2, 5, v2")
    a("v_add_u32 v2, s%d, v2" % S_T0)
    a("s_mov_b64 exec, 0xff")
    a("buffer_store_dwordx4 v[16:19], v2, s[%d:%d], 0 offen%s" % (SRD_F, SRD_F + 3, HO))
    a("buffer_store_dwordx4 v[20:23], v2, s[%d:%d], 0 offen offset:16%s" % (SRD_F, SRD_F + 3, HO))
    a("s_mov_b64 exec, -1")
    a("s_nop 1")
    a.label(ldone)


def gen_k2(a):
    name = "k2_kernel"
    c = Cfg(64, 6)
    kernel_header(a, name, 256)
    small_tile_decode(a)
    a("s_waitcnt lgkmcnt(0)")
    make_srd(a, SRD_A, P_WS, WS_HS, S * D * 2)
    make_srd(a, SRD_B, P_W2, 0, D * D * 2)
    make_srd(a, SRD_C, P_WS, WS_X1, S * D * 2)
    make_srd(a, SRD_D, P_X, 0, S * D * 2)
    a("s_cmp_ge_u32 s%d, 4" % S_WAVE)
    a("s_cbranch_scc1 L_k2_loader")
    kv_reduce(a)
    VST, VLD, VX = 200, 204, 208
    epi_store_addr(a, c, 2048, VST, 2)
    a("v_lshrrev_b32 v3, 5, v1")
    a("v_lshlrev_b32 v3, 3, v3")
    for i in range(2):
        a("v_sub_u32 v%d, v%d, v3" % (VLD + i, VST + i))
    for i in range(2):
        load_resid(a, c, VX + 8 * i, VLD + i, SRD_D)
    compute_addr_setup(a, c)
    zero_acc(a, V_ACC, 32)
    pf = None
    if "nopf" not in EXP:
        pf = pf_stream_setup(a, [(P_WO, D * D * 2, w, 4) for w in range(4)], 16)
    compute_start(a, c)
    compute_loop(a, c, 16, V_ACC, True, pf)
    stamp(a, 2)
    a("s_waitcnt vmcnt(0) lgkmcnt(0)")
    a("s_nop 15")
    for i in range(2):
        acc = V_ACC + 16 * i
        round_regs_bf16(a, acc, 16, 16)
        unpack_bf16(a, 32, VX + 8 * i, 8)
        for p in range(8):
            a("v_pk_add_f32 v[%d:%d], v[%d:%d], v[%d:%d]" % (acc + 2 * p, acc + 2 * p + 1, acc + 2 * p, acc + 2 * p + 1, 32 + 2 * p, 33 + 2 * p))
        pack_swap_store(a, acc, 48 + 8 * i, VST + i, SRD_C, 0)
    make_srd(a, SRD_E, P_WS, WS_XS, S * 256)
    a("v_mov_b32 v64, 0x3f803f80")
    for i in range(2):
        for r in range(4):
            a("v_mov_b32 v%d, 0" % (68 + 4 * i + r))
    for p in range(8):
        for i in range(2):
            b = 68 + 4 * i + 2 * (p & 1)
            a("v_dot2_f32_bf16 v%d, v%d, v64, v%d" % (b, 48 + 8 * i + p, b))
            a("v_dot2_f32_bf16 v%d, v%d, v%d, v%d" % (b + 1, 48 + 8 * i + p, 48 + 8 * i + p, b + 1))
    a("s_lshl_b32 s%d, s%d, 1" % (S_T0, S_CT))
    a("s_and_b32 s%d, s%d, 1" % (S_T1, S_WAVE))
    a("s_add_u32 s%d, s%d, s%d" % (S_T0, S_T0, S_T1))
    a("s_lshl_b32 s%d, s%d, 3" % (S_T0, S_T0))
    a("s_nop 1")
    for i in range(2):
        b = 68 + 4 * i
        a("v_pk_add_f32 v[%d:%d], v[%d:%d], v[%d:%d]" % (b, b + 1, b, b + 1, b + 2, b + 3))
        a("v_mov_b32 v%d, v%d" % (b + 2, b))
        a("v_mov_b32 v%d, v%d" % (b + 3, b + 1))
        a("s_nop 1")
        a("v_permlane32_swap_b32 v%d, v%d" % (b, b + 2))
        a("v_permlane32_swap_b32 v%d, v%d" % (b + 1, b + 3))
        a("s_nop 1")
        a("v_pk_add_f32 v[%d:%d], v[%d:%d], v[%d:%d]" % (b, b + 1, b, b + 1, b + 2, b + 3))
        a("v_lshrrev_b32 v3, 11, v%d" % (VST + i))
        a("v_lshlrev_b32 v3, 8, v3")
        a("v_add_u32 v3, s%d, v3" % S_T0)
        a("buffer_store_dwordx2 v[%d:%d], v3, s[%d:%d], 0 offen" % (b, b + 1, SRD_E, SRD_E + 3))
    a("s_branch L_%s_cdone" % name)
    a.label("L_k2_loader")
    a("s_sub_u32 s%d, s%d, 4" % (S_LW, S_WAVE))
    loader_a_offsets(a, V_LA, 2048)
    loader_b_offsets_small(a, V_LB, 2048)
    loader_loop(a, c, [(16, SRD_A, SRD_B, V_LA, V_LB, 64 * 2048)], None)
    kernel_footer(a, name, 1)
    descriptor(a, name)
    return name, 256, c.LDS_TOTAL


def k3_stats_from_partials(a, c):
    k3_stats_issue(a, c, S_WAVE)
    k3_stats_fin(a, c, S_WAVE)


def k3_stats_issue(a, c, S_WAVE):
    make_srd(a, SRD_D, P_WS, WS_XS, 256 * 1024)
    make_srd(a, SRD_E, P_WS, WS_CSP, 8 * F * 4)
    a("v_and_b32 v2, 31, v1")
    a("s_lshl_b32 s%d, s%d, 8" % (S_T0, S_WAVE))
    a("s_lshl_b32 s%d, s%d, 14" % (S_T1, S_RB))
    a("s_add_u32 s%d, s%d, s%d" % (S_T0, S_T0, S_T1))
    a("v_lshlrev_b32 v2, 3, v2")
    a("v_add_u32 v2, s%d, v2" % S_T0)
    a("v_lshrrev_b32 v3, 5, v1")
    a("v_lshl_add_u32 v2, v3, 13, v2")
    a("v_add_u32 v4, 4096, v2")
    for t in range(8):
        a("buffer_load_dwordx2 v[%d:%d], v%d, s[%d:%d], 0 offen offset:%d%s" % (64 + 2 * t, 65 + 2 * t, 2 if t < 4 else 4, SRD_D, SRD_D + 3, 1024 * (t & 3), HO))
    a("s_lshl_b32 s%d, s%d, 6" % (S_T0, S_WAVE))
    a("s_add_u32 s%d, s%d, s%d" % (S_T0, S_T0, S_COL0))
    a("v_add_u32 v3, s%d, v1" % S_T0)
    a("v_lshlrev_b32 v3, 2, v3")
    for t in range(8):
        a("s_mov_b32 s%d, %d" % (S_T1, t * F * 4))
        a("buffer_load_dword v%d, v3, s[%d:%d], s%d offen%s" % (96 + t, SRD_E, SRD_E + 3, S_T1, HO))


def k3_stats_fin(a, c, S_WAVE):
    a("s_waitcnt vmcnt(0)")
    for t in range(1, 8):
        a("v_pk_add_f32 v[64:65], v[64:65], v[%d:%d]" % (64 + 2 * t, 65 + 2 * t))
    for t in range(1, 8):
        a("v_add_f32 v96, v96, v%d" % (96 + t))
    a("v_mov_b32 v%d, v64" % V_SUM)
    a("v_mov_b32 v%d, v65" % V_SQ)
    a("v_mov_b32 v%d, v96" % V_CS0)
    for r in (V_SUM2, V_SQ2, V_CS1):
        a("v_mov_b32 v%d, 0" % r)
    stats_finish(a, c, S_WAVE)


def gen_k3(a):
    name = "k3_kernel"
    c = Cfg(256, 3)
    kernel_header(a, name, 256)
    a("s_cmp_ge_u32 s%d, 28" % S_J)
    a("s_cbranch_scc1 L_k3_owg")
    a("s_and_b32 s%d, s%d, 3" % (S_T0, S_XCD))
    a("s_lshl_b32 s%d, s%d, 2" % (S_T0, S_T0))
    a("s_and_b32 s%d, s%d, 3" % (S_T1, S_J))
    a("s_add_u32 s%d, s%d, s%d" % (S_RB, S_T0, S_T1))
    a("s_lshr_b32 s%d, s%d, 2" % (S_T0, S_XCD))
    a("s_mul_i32 s%d, s%d, 7" % (S_T0, S_T0))
    a("s_lshr_b32 s%d, s%d, 2" % (S_T1, S_J))
    a("s_add_u32 s%d, s%d, s%d" % (S_CT, S_T0, S_T1))
    a("s_lshl_b32 s%d, s%d, 7" % (S_ROW0, S_RB))
    a("s_lshl_b32 s%d, s%d, 8" % (S_COL0, S_CT))
    a("s_waitcnt lgkmcnt(0)")
    make_srd(a, SRD_A, P_WS, WS_X1, S * D * 2)
    make_srd(a, SRD_B, P_W3, 0, D * F * 2)
    make_srd(a, SRD_C, P_WS, WS_ACT, S * F * 2)
    a("s_mov_b32 s%d, %d" % (S_LDB, F * 2))
    a("s_mov_b32 s%d, 32" % S_SA)
    a("s_mov_b32 s%d, 64" % S_SB)
    a("s_cmp_ge_u32 s%d, 4" % S_WAVE)
    a("s_cbranch_scc1 L_k3_loader")
    k3_stats_from_partials(a, c)
    compute_addr_setup(a, c)
    zero_acc(a, V_ACC, 128)
    pf = None
    if "nopf" not in EXP:
        pf = pf_stream_setup(a, [(P_W4, D * F * 2, w, 4) for w in range(4)], 16)
    compute_start(a, c)
    compute_loop(a, c, 16, V_ACC, True, pf)
    stamp(a, 2)
    a("s_waitcnt lgkmcnt(0)")
    xfer_send(a)
    a("s_waitcnt lgkmcnt(0)")
    a("s_barrier")
    a.label("L_k3_epi")
    epi_ln_gelu(a, c, SRD_C, F * 2, None)
    a("s_branch L_%s_cdone" % name)
    a.label("L_k3_loader")
    a("s_sub_u32 s%d, s%d, 4" % (S_LW, S_WAVE))
    loader_a_offsets(a, V_LA, 2048)
    loader_b_offsets_big(a, V_LB)
    loader_loop(a, c, [(16, SRD_A, SRD_B, V_LA, V_LB, 64 * F * 2)], None)
    a("s_barrier")
    if NI_EPI == 2:
        xfer_recv(a)
        a("s_branch L_k3_epi")
    else:
        a("s_branch L_%s_ldone" % name)
    a.label("L_k3_owg")
    gen_owg(a)
    a("s_branch L_%s_cdone" % name)
    kernel_footer(a, name, 2)
    descriptor(a, name)
    return name, 256, c.LDS_TOTAL


def gen_owg(a):
    S_HEAD = S_CT
    a("s_sub_u32 s%d, s%d, 28" % (S_T0, S_J))
    a("s_lshl_b32 s%d, s%d, 2" % (S_T1, S_XCD))
    a("s_add_u32 s%d, s%d, s%d" % (S_HEAD, S_T0, S_T1))
    a("s_waitcnt lgkmcnt(0)")
    make_srd(a, SRD_A, P_WS, WS_KVB, 65536)
    make_srd(a, SRD_B, P_WS, WS_ZB, 2048)
    make_srd(a, SRD_C, P_WS, WS_PQ, S * D * 2)
    make_srd(a, SRD_D, P_WS, WS_O, S * D * 2)
    make_srd(a, SRD_E, P_X, 0, S * D * 2)
    make_srd(a, SRD_A2, P_WS, WS_G, 8192)
    a("v_and_b32 v2, 31, v1")
    a("v_lshrrev_b32 v3, 5, v1")
    a("v_lshlrev_b32 v3, 4, v3")
    a("v_lshl_add_u32 v4, v2, 6, v3")
    a("s_lshl_b32 s%d, s%d, 13" % (S_T0, S_WAVE))
    a("v_add_u32 v4, s%d, v4" % S_T0)
    a("s_lshl_b32 s%d, s%d, 8" % (S_T0, S_WAVE))
    a("v_add_u32 v5, s%d, v3" % S_T0)
    a("s_lshl_b32 s%d, s%d, 6" % (S_T1, S_HEAD))
    a("v_add_u32 v6, s%d, v2" % S_T1)
    a("v_lshlrev_b32 v6, 11, v6")
    a("v_add3_u32 v6, v6, v3, s%d" % S_T0)
    a("v_add_u32 v7, 0x10000, v6")
    KVB, ZB, PQ = 16, 48, 80
    for h in range(4):
        for m in range(2):
            a("buffer_load_dwordx4 v[%d:%d], v%d, s[%d:%d], 0 offen offset:%d%s" % (KVB + 8 * h + 4 * m, KVB + 8 * h + 4 * m + 3, 4 if h < 2 else 8, SRD_A, SRD_A + 3, 2048 * (h & 1) + 32 * m, HO))
        if h == 1:
            a("v_add_u32 v8, 4096, v4")
    for h in range(4):
        for m in range(2):
            a("buffer_load_dwordx4 v[%d:%d], v5, s[%d:%d], 0 offen offset:%d%s" % (ZB + 8 * h + 4 * m, ZB + 8 * h + 4 * m + 3, SRD_B, SRD_B + 3, 64 * h + 32 * m, HO))
    for rb in range(2):
        for h in range(4):
            for m in range(2):
                b = PQ + 32 * rb + 8 * h + 4 * m
                a("buffer_load_dwordx4 v[%d:%d], v%d, s[%d:%d], 0 offen offset:%d" % (b, b + 3, 6 + rb, SRD_C, SRD_C + 3, 64 * h + 32 * m))
    a("s_waitcnt vmcnt(0)")
    if "nopf" not in EXP:
        a("v_lshlrev_b32 v%d, 7, v1" % 14)
        prefetch_jobs(a, [(P_W4, D * F * 2)], 14, 15)
    NUM = 144
    t = 0
    OVST, OVW, OVR, OVAT, OVD = 9, 240, 10, 244, 16
    a("s_lshl_b32 s%d, s%d, 6" % (S_T2, S_HEAD))
    a("s_lshl_b32 s%d, s%d, 8" % (S_T3, S_WAVE))
    line_store_setup(a, 2048, OVST, OVW, OVR, S_T2, S_T3, 65536)
    for rb in range(2):
        for h in range(4):
            nb = NUM + 48 * (t & 1)
            db = nb + 16
            tp = nb + 32
            for m in range(2):
                cin_n = "0" if m == 0 else "v[%d:%d]" % (nb, nb + 15)
                cin_d = "0" if m == 0 else "v[%d:%d]" % (db, db + 15)
                b = PQ + 32 * rb + 8 * h + 4 * m
                a("v_mfma_f32_32x32x16_bf16 v[%d:%d], v[%d:%d], v[%d:%d], %s" % (nb, nb + 15, KVB + 8 * h + 4 * m, KVB + 8 * h + 4 * m + 3, b, b + 3, cin_n))
                a("v_mfma_f32_32x32x16_bf16 v[%d:%d], v[%d:%d], v[%d:%d], %s" % (db, db + 15, ZB + 8 * h + 4 * m, ZB + 8 * h + 4 * m + 3, b, b + 3, cin_d))
            a("s_nop 15")
            a("s_nop 3")
            bf16_round(a, db, db)
            a("v_add_f32 v%d, %s, v%d" % (db, f32(1e-6), db))
            bf16_round(a, db, db)
            a("v_rcp_f32 v%d, v%d" % (db, db))
            round_regs_bf16(a, nb, 16, tp)
            for p in range(8):
                a("v_pk_mul_f32 v[%d:%d], v[%d:%d], v[%d:%d] op_sel:[0,0] op_sel_hi:[1,0]" % (nb + 2 * p, nb + 2 * p + 1, nb + 2 * p, nb + 2 * p + 1, db, db + 1))
            off = 4096 * ((t >> 1) & 1)
            line_pack_write(a, nb, tp + 8, OVW, h & 1, off)
            if h & 1:
                vd = PQ + 32 * rb + 16 * (h >> 1)
                line_read(a, vd, OVR, off)
                a("s_waitcnt lgkmcnt(0)")
                line_store(a, vd, OVST, OVAT, SRD_D, 2048, rb, HO, 128 * (h >> 1))
            t += 1
    a("s_waitcnt vmcnt(0)")
    make_srd(a, SRD_F, P_GATE, 0, 2048)
    a("v_lshlrev_b32 v8, 4, v1")
    a("buffer_load_dwordx4 v[16:19], v8, s[%d:%d], 0 offen" % (SRD_F, SRD_F + 3))
    a("buffer_load_dwordx4 v[20:23], v8, s[%d:%d], 0 offen offset:1024" % (SRD_F, SRD_F + 3))
    a("s_lshl_b32 s%d, s%d, 6" % (S_T0, S_HEAD))
    a("s_lshl_b32 s%d, s%d, 3" % (S_T1, S_WAVE))
    a("s_add_u32 s%d, s%d, s%d" % (S_T2, S_T0, S_T1))
    a("s_lshl_b32 s%d, s%d, 11" % (S_T0, S_T2))
    for t in range(8):
        a("buffer_load_dwordx4 v[%d:%d], v8, s[%d:%d], s%d offen" % (64 + 8 * t, 67 + 8 * t, SRD_E, SRD_E + 3, S_T0))
        a("buffer_load_dwordx4 v[%d:%d], v8, s[%d:%d], s%d offen offset:1024" % (68 + 8 * t, 71 + 8 * t, SRD_E, SRD_E + 3, S_T0))
        a("s_add_u32 s%d, s%d, 2048" % (S_T0, S_T0))
    for t in range(8):
        a("v_mov_b32 v%d, 0" % (32 + t))
    a("s_waitcnt vmcnt(0)")
    for r in range(8):
        for t in range(8):
            a("v_dot2_f32_bf16 v%d, v%d, v%d, v%d" % (32 + t, 64 + 8 * t + r, 16 + r, 32 + t))
    a("s_nop 3")
    for pat in (0x041F, 0x081F, 0x101F, 0x201F, 0x401F):
        for t in range(8):
            a("ds_swizzle_b32 v%d, v%d offset:0x%x" % (40 + t, 32 + t, pat))
        a("s_waitcnt lgkmcnt(0)")
        for t in range(8):
            a("v_add_f32 v%d, v%d, v%d" % (32 + t, 32 + t, 40 + t))
    for t in range(8):
        a("v_mov_b32 v%d, v%d" % (40 + t, 32 + t))
    a("s_nop 1")
    for t in range(8):
        a("v_permlane32_swap_b32 v%d, v%d" % (32 + t, 40 + t))
    a("s_nop 1")
    for t in range(8):
        a("v_add_f32 v%d, v%d, v%d" % (32 + t, 32 + t, 40 + t))
    a("v_mov_b32 v48, v32")
    for t in range(1, 8):
        a("v_cmp_eq_u32 vcc, %d, v1" % t)
        a("s_nop 1")
        a("v_cndmask_b32 v48, v48, v%d, vcc" % (32 + t))
    bf16_round(a, 48, 48)
    a("v_mul_f32 v48, %s, v48" % f32(-LOG2E))
    a("v_exp_f32 v48, v48")
    a("s_nop 0")
    a("v_add_f32 v48, 1.0, v48")
    a("v_rcp_f32 v48, v48")
    a("s_nop 0")
    bf16_round(a, 48, 48)
    a("v_add_u32 v9, s%d, v1" % S_T2)
    a("v_lshlrev_b32 v9, 2, v9")
    a("v_cmp_gt_u32 vcc, 8, v1")
    a("s_and_saveexec_b64 s[%d:%d], vcc" % (S_EXEC, S_EXEC + 1))
    a("buffer_store_dword v48, v9, s[%d:%d], 0 offen%s" % (SRD_A2, SRD_A2 + 3, HO))
    a("s_mov_b64 exec, s[%d:%d]" % (S_EXEC, S_EXEC + 1))


def gen_k4(a):
    name = "k4_kernel"
    c = Cfg(64, 6)
    kernel_header(a, name, 256)
    small_tile_decode(a)
    a("s_waitcnt lgkmcnt(0)")
    make_srd(a, SRD_A, P_WS, WS_O, S * D * 2)
    make_srd(a, SRD_B, P_WO, 0, D * D * 2)
    make_srd(a, SRD_A2, P_WS, WS_ACT, S * F * 2)
    make_srd(a, SRD_B2, P_W4, 0, F * D * 2)
    make_srd(a, SRD_C, P_OUT, 0, S * D * 2)
    make_srd(a, SRD_D, P_WS, WS_X1, S * D * 2)
    make_srd(a, SRD_E, P_WS, WS_G, 8192)
    a("s_cmp_ge_u32 s%d, 4" % S_WAVE)
    a("s_cbranch_scc1 L_k4_loader")
    VST, VLD, VX, VG = 200, 204, 208, 224
    epi_store_addr(a, c, 2048, VST, 2)
    a("v_lshrrev_b32 v3, 5, v1")
    a("v_lshlrev_b32 v3, 3, v3")
    for i in range(2):
        a("v_sub_u32 v%d, v%d, v3" % (VLD + i, VST + i))
    for i in range(2):
        load_resid(a, c, VX + 8 * i, VLD + i, SRD_D)
    for i in range(2):
        a("v_lshrrev_b32 v3, 11, v%d" % (VST + i))
        a("v_lshlrev_b32 v3, 2, v3")
        a("buffer_load_dword v%d, v3, s[%d:%d], 0 offen" % (VG + 2 * i, SRD_E, SRD_E + 3))
    compute_addr_setup(a, c)
    zero_acc(a, V_ACC, 64)
    compute_start(a, c)
    compute_loop(a, c, 16, V_ACC, True)
    compute_loop(a, c, 56, V_ACC + 32, True)
    stamp(a, 2)
    a("s_waitcnt vmcnt(0) lgkmcnt(0)")
    a("s_nop 15")
    for i in range(2):
        aa = V_ACC + 16 * i
        bb = V_ACC + 32 + 16 * i
        g = VG + 2 * i
        a("v_sub_f32 v%d, 1.0, v%d" % (g + 1, g))
        bf16_round(a, g + 1, g + 1)
        round_regs_bf16(a, aa, 16, 16)
        round_regs_bf16(a, bb, 16, 24)
        unpack_bf16(a, 32, VX + 8 * i, 8)
        for p in range(8):
            a("v_pk_add_f32 v[%d:%d], v[%d:%d], v[%d:%d]" % (bb + 2 * p, bb + 2 * p + 1, bb + 2 * p, bb + 2 * p + 1, 32 + 2 * p, 33 + 2 * p))
        round_regs_bf16(a, bb, 16, 24)
        for p in range(8):
            a("v_pk_mul_f32 v[%d:%d], v[%d:%d], v[%d:%d] op_sel:[0,0] op_sel_hi:[1,0]" % (aa + 2 * p, aa + 2 * p + 1, aa + 2 * p, aa + 2 * p + 1, g, g + 1))
        for p in range(8):
            a("v_pk_mul_f32 v[%d:%d], v[%d:%d], v[%d:%d] op_sel:[0,1] op_sel_hi:[1,1]" % (bb + 2 * p, bb + 2 * p + 1, bb + 2 * p, bb + 2 * p + 1, g, g + 1))
        round_regs_bf16(a, aa, 16, 16)
        round_regs_bf16(a, bb, 16, 24)
        for p in range(8):
            a("v_pk_add_f32 v[%d:%d], v[%d:%d], v[%d:%d]" % (aa + 2 * p, aa + 2 * p + 1, aa + 2 * p, aa + 2 * p + 1, bb + 2 * p, bb + 2 * p + 1))
        pack_swap_store(a, aa, 48 + 8 * i, VST + i, SRD_C, 0)
    a("s_branch L_%s_cdone" % name)
    a.label("L_k4_loader")
    a("s_sub_u32 s%d, s%d, 4" % (S_LW, S_WAVE))
    loader_a_offsets(a, V_LA, 2048)
    loader_b_offsets_small(a, V_LB, 2048)
    loader_a_offsets(a, V_LA2, F * 2)
    loader_loop(a, c, [(16, SRD_A, SRD_B, V_LA, V_LB, 64 * 2048), (56, SRD_A2, SRD_B2, V_LA2, V_LB, 64 * 2048)], None)
    kernel_footer(a, name, 3)
    descriptor(a, name)
    return name, 256, c.LDS_TOTAL


SRD_FL = SRD_B2


def flag_srd(a):
    make_srd(a, SRD_FL, P_WS, WS_FLAG, 8192)


def flag_signal(a, base, idx_sgpr):
    flag_srd(a)
    if idx_sgpr is None:
        a("v_mov_b32 v2, %d" % base)
    else:
        a("s_lshl_b32 s%d, s%d, 7" % (S_T0, idx_sgpr))
        a("s_add_u32 s%d, s%d, %d" % (S_T0, S_T0, base))
        a("v_mov_b32 v2, s%d" % S_T0)
    a("v_mov_b32 v3, 1")
    a("s_mov_b64 exec, 1")
    a("buffer_atomic_add v3, v2, s[%d:%d], 0 offen sc1" % (SRD_FL, SRD_FL + 3))
    a("s_mov_b64 exec, -1")


def flag_poll(a, base, idx_sgpr, target):
    flag_srd(a)
    if idx_sgpr is None:
        a("v_mov_b32 v2, %d" % base)
    else:
        a("s_lshl_b32 s%d, s%d, 7" % (S_T0, idx_sgpr))
        a("s_add_u32 s%d, s%d, %d" % (S_T0, S_T0, base))
        a("v_mov_b32 v2, s%d" % S_T0)
    lp, ld = a.newlabel("poll"), a.newlabel("polld")
    a("s_mov_b32 s%d, 0x400000" % S_T1)
    a.label(lp)
    a("buffer_load_dword v3, v2, s[%d:%d], 0 offen sc1" % (SRD_FL, SRD_FL + 3))
    a("s_waitcnt vmcnt(0)")
    a("v_readfirstlane_b32 s%d, v3" % S_T0)
    a("s_sub_u32 s%d, s%d, 1" % (S_T1, S_T1))
    a("s_cmp_eq_u32 s%d, 0" % S_T1)
    a("s_cbranch_scc1 %s" % ld)
    a("s_cmp_ge_u32 s%d, %d" % (S_T0, target))
    a("s_cbranch_scc1 %s" % ld)
    a("s_sleep 1")
    a("s_branch %s" % lp)
    a.label(ld)


def wave0(a, fn):
    l = a.newlabel("w0")
    a("s_cmp_lg_u32 s%d, 0" % S_WAVE)
    a("s_cbranch_scc1 %s" % l)
    fn()
    a.label(l)


def p3_decode(a):
    a("s_lshr_b32 s%d, s%d, 2" % (S_T0, S_XCD))
    a("s_mul_i32 s%d, s%d, 7" % (S_T0, S_T0))
    a("s_lshr_b32 s%d, s%d, 2" % (S_T1, S_J))
    a("s_add_u32 s%d, s%d, s%d" % (S_CT, S_T0, S_T1))
    a("s_lshl_b32 s%d, s%d, 8" % (S_COL0, S_CT))
    make_srd(a, SRD_A, P_WS, WS_X1, S * D * 2)
    make_srd(a, SRD_B, P_W3, 0, D * F * 2)
    make_srd(a, SRD_C, P_WS, WS_ACT, S * F * 2)
    a("s_mov_b32 s%d, %d" % (S_LDB, F * 2))
    a("s_mov_b32 s%d, 32" % S_SA)
    a("s_mov_b32 s%d, 64" % S_SB)


def p4_decode(a):
    a("s_lshr_b32 s%d, s2, 3" % S_J)
    a("s_bfe_u32 s%d, s%d, 0x20002" % (S_T0, S_J))
    a("s_xor_b32 s%d, s%d, 16" % (S_T1, S_J))
    a("s_cmp_eq_u32 s%d, 3" % S_T0)
    a("s_cselect_b32 s%d, s%d, s%d" % (S_J, S_T1, S_J))
    small_tile_decode(a)
    make_srd(a, SRD_A, P_WS, WS_O, S * D * 2)
    make_srd(a, SRD_B, P_WO, 0, D * D * 2)
    make_srd(a, SRD_A2, P_WS, WS_ACT, S * F * 2)
    make_srd(a, SRD_C, P_OUT, 0, S * D * 2)
    make_srd(a, SRD_D, P_WS, WS_X1, S * D * 2)
    make_srd(a, SRD_E, P_WS, WS_G, 8192)


def small_epi_setup(a, VLD, VST, VW, VR):
    a("s_lshl_b32 s%d, s%d, 5" % (S_T2, S_WAVE))
    a("s_add_u32 s%d, s%d, s%d" % (S_T2, S_T2, S_ROW0))
    a("s_lshl_b32 s%d, s%d, 1" % (S_T3, S_COL0))
    line_store_setup(a, 2048, VST, VW, VR, S_T2, S_T3, 98304)
    a("v_and_b32 v2, 31, v1")
    a("v_add_u32 v2, s%d, v2" % S_T2)
    a("v_lshrrev_b32 v3, 5, v1")
    a("v_lshlrev_b32 v3, 3, v3")
    a("v_lshl_add_u32 v2, v2, 11, v3")
    a("v_add_u32 v%d, s%d, v2" % (VLD, S_T3))


def load_resid2(a, dst, vaddr, srd, fl=""):
    for j in range(2):
        for g in range(4):
            a("buffer_load_dwordx2 v[%d:%d], v%d, s[%d:%d], 0 offen offset:%d%s" % (dst + 8 * j + 2 * g, dst + 8 * j + 2 * g + 1, vaddr, srd, srd + 3, 64 * j + 16 * g, fl))


def mstamp(a, name):
    sets = {"st0": ["E2", "G3", "E3", "G4"], "stA": ["P2", "L2", "E2", "G3"], "stB": ["G3", "P3", "L3", "E3"], "stC": ["G4", "P4", "M4", "L4"]}
    cur = "st0"
    for k in sets:
        if k in EXP:
            cur = k
    if name in sets[cur]:
        stamp(a, 1 + sets[cur].index(name))


def gen_k234(a):
    global INSTR
    name = "k234_kernel"
    cs2 = Cfg(64, 6)
    cb = Cfg(256, 3)
    cb.aflag = HO
    cs4 = Cfg(64, 6)
    cs4.aflag = HO
    kernel_header(a, name, 256)
    small_tile_decode(a)
    a("s_waitcnt lgkmcnt(0)")
    make_srd(a, SRD_A, P_WS, WS_HS, S * D * 2)
    make_srd(a, SRD_B, P_W2, 0, D * D * 2)
    make_srd(a, SRD_C, P_WS, WS_X1, S * D * 2)
    make_srd(a, SRD_D, P_X, 0, S * D * 2)
    a("s_cmp_ge_u32 s%d, 4" % S_WAVE)
    a("s_cbranch_scc1 L_m_loader2")
    c = cs2
    a("s_cmp_lg_u32 s%d, 1" % S_WAVE)
    a("s_cbranch_scc1 L_m_nocpf")
    code_prefetch(a, "k234_kernel", "L_code_end")
    a.label("L_m_nocpf")
    kv_reduce(a)
    a("s_waitcnt vmcnt(0)")
    VST, VLD, VW, VR, VX, VAT = 200, 201, 204, 202, 208, 228
    small_epi_setup(a, VLD, VST, VW, VR)
    load_resid2(a, VX, VLD, SRD_D)
    compute_addr_setup(a, c)
    zero_acc(a, V_ACC, 32)
    pf = pf_stream_setup(a, [(P_WO, D * D * 2, w, 4) for w in range(4)], 16)
    a("s_barrier")
    mstamp(a, "P2")
    for r in frag_reads(c, 0, 0):
        a(r)
    wave0(a, lambda: flag_signal(a, FL_RED, None))
    compute_loop(a, c, 16, V_ACC, True, pf)
    mstamp(a, "L2")
    a("s_waitcnt vmcnt(0) lgkmcnt(0)")
    a("s_nop 15")
    for j in range(2):
        acc = V_ACC + 16 * j
        round_regs_bf16(a, acc, 16, 16)
        unpack_bf16(a, 32, VX + 8 * j, 8)
        for p in range(8):
            a("v_pk_add_f32 v[%d:%d], v[%d:%d], v[%d:%d]" % (acc + 2 * p, acc + 2 * p + 1, acc + 2 * p, acc + 2 * p + 1, 32 + 2 * p, 33 + 2 * p))
        line_pack_write(a, acc, 48 + 8 * j, VW, j, 0)
    line_read(a, 80, VR, 0)
    make_srd(a, SRD_E, P_WS, WS_XS, 256 * 1024)
    a("v_mov_b32 v64, 0x3f803f80")
    for r in range(4):
        a("v_mov_b32 v%d, 0" % (68 + r))
    for p in range(16):
        b = 68 + 2 * (p & 1)
        a("v_dot2_f32_bf16 v%d, v%d, v64, v%d" % (b, 48 + p, b))
        a("v_dot2_f32_bf16 v%d, v%d, v%d, v%d" % (b + 1, 48 + p, 48 + p, b + 1))
    a("s_waitcnt lgkmcnt(0)")
    line_store(a, 80, VST, VAT, SRD_C, 2048, 0, HO)
    a("s_lshl_b32 s%d, s%d, 4" % (S_T0, S_RB))
    a("s_add_u32 s%d, s%d, s%d" % (S_T0, S_T0, S_CT))
    a("s_lshl_b32 s%d, s%d, 10" % (S_T0, S_T0))
    a("s_lshl_b32 s%d, s%d, 8" % (S_T1, S_WAVE))
    a("s_add_u32 s%d, s%d, s%d" % (S_T0, S_T0, S_T1))
    a("v_pk_add_f32 v[68:69], v[68:69], v[70:71]")
    a("v_mov_b32 v70, v68")
    a("v_mov_b32 v71, v69")
    a("s_nop 1")
    a("v_permlane32_swap_b32 v68, v70")
    a("v_permlane32_swap_b32 v69, v71")
    a("s_nop 1")
    a("v_pk_add_f32 v[68:69], v[68:69], v[70:71]")
    a("v_lshlrev_b32 v3, 3, v1")
    a("v_add_u32 v3, s%d, v3" % S_T0)
    a("s_mov_b32 exec_hi, 0")
    a("buffer_store_dwordx2 v[68:69], v3, s[%d:%d], 0 offen%s" % (SRD_E, SRD_E + 3, HO))
    a("s_mov_b64 exec, -1")
    a("s_waitcnt vmcnt(0)")
    mstamp(a, "E2")
    a("s_barrier")

    def sig2():
        l, l2, l3 = a.newlabel("slow"), a.newlabel("sigd"), a.newlabel("isowg")
        a("s_and_b32 s%d, s%d, 7" % (S_T2, S_CT))
        a("s_cmp_eq_u32 s%d, 3" % S_T2)
        a("s_cbranch_scc1 %s" % l)
        flag_signal(a, FL_X1, S_RB)
        a("s_branch %s" % l2)
        a.label(l)
        flag_signal(a, FL_X1S, S_RB)
        a.label(l2)
        a("s_cmp_ge_u32 s%d, 28" % S_J)
        a("s_cbranch_scc1 %s" % l3)
        flag_poll(a, FL_X1, S_RB, 14)
        a("s_branch %s_d" % l3)
        a.label(l3)
        flag_poll(a, FL_RED, None, 256)
        a.label(l3 + "_d")
    wave0(a, sig2)
    a("s_barrier")
    mstamp(a, "G3")
    a("s_cmp_ge_u32 s%d, 28" % S_J)
    a("s_cbranch_scc1 L_m_owg")
    c = cb
    p3_decode(a)
    compute_addr_setup(a, c)
    zero_acc(a, V_ACC, 128)
    pf = pf_stream_setup(a, [(P_W4, D * F * 2, w, 4) for w in range(4)], 16)
    a("s_barrier")
    mstamp(a, "P3")
    for r in frag_reads(c, 0, 0):
        a(r)
    compute_loop(a, c, 11, V_ACC, True, pf)

    def poll3():
        flag_poll(a, FL_X1S, S_RB, 2)
        flag_poll(a, FL_RED, None, 256)
    wave0(a, poll3)
    compute_loop(a, c, 5, V_ACC, True, pf)
    mstamp(a, "L3")
    a("s_waitcnt lgkmcnt(0)")
    a("s_mov_b32 s%d, 0" % S_STOFF)
    a("s_nop 15")
    epi_ln_gelu(a, c, SRD_C, F * 2, None)
    a("s_waitcnt vmcnt(0)")
    mstamp(a, "E3")
    a("s_barrier")
    wave0(a, lambda: flag_signal(a, FL_ACT, S_RB))
    a.label("L_m_c4")
    def poll4():
        flag_poll(a, FL_O, S_RB, 2)
        flag_poll(a, FL_X1, S_RB, 14)
        flag_poll(a, FL_X1S, S_RB, 2)
    wave0(a, poll4)
    a("s_barrier")
    mstamp(a, "G4")
    c = cs4
    p4_decode(a)
    VST, VLD, VW, VR, VX, VAT, VG = 200, 201, 204, 202, 208, 228, 224
    small_epi_setup(a, VLD, VST, VW, VR)
    load_resid2(a, VX, VLD, SRD_D, HO)
    a("v_lshrrev_b32 v3, 11, v%d" % VLD)
    a("v_lshlrev_b32 v3, 2, v3")
    a("buffer_load_dword v%d, v3, s[%d:%d], 0 offen%s" % (VG, SRD_E, SRD_E + 3, HO))
    compute_addr_setup(a, c)
    zero_acc(a, V_ACC, 64)
    a("s_barrier")
    mstamp(a, "P4")
    for r in frag_reads(c, 0, 0):
        a(r)
    compute_loop(a, c, 10, V_ACC, True)
    wave0(a, lambda: flag_poll(a, FL_ACT, S_RB, 14))
    compute_loop(a, c, 6, V_ACC, True)
    mstamp(a, "M4")
    compute_loop(a, c, 56, V_ACC + 32, True)
    mstamp(a, "L4")
    a("s_waitcnt vmcnt(0) lgkmcnt(0)")
    a("s_nop 15")
    g = VG
    a("v_sub_f32 v%d, 1.0, v%d" % (g + 1, g))
    bf16_round(a, g + 1, g + 1)
    for j in range(2):
        aa = V_ACC + 16 * j
        bb = V_ACC + 32 + 16 * j
        round_regs_bf16(a, aa, 16, 16)
        round_regs_bf16(a, bb, 16, 24)
        unpack_bf16(a, 32, VX + 8 * j, 8)
        for p in range(8):
            a("v_pk_add_f32 v[%d:%d], v[%d:%d], v[%d:%d]" % (bb + 2 * p, bb + 2 * p + 1, bb + 2 * p, bb + 2 * p + 1, 32 + 2 * p, 33 + 2 * p))
        round_regs_bf16(a, bb, 16, 24)
        for p in range(8):
            a("v_pk_mul_f32 v[%d:%d], v[%d:%d], v[%d:%d] op_sel:[0,0] op_sel_hi:[1,0]" % (aa + 2 * p, aa + 2 * p + 1, aa + 2 * p, aa + 2 * p + 1, g, g + 1))
        for p in range(8):
            a("v_pk_mul_f32 v[%d:%d], v[%d:%d], v[%d:%d] op_sel:[0,1] op_sel_hi:[1,1]" % (bb + 2 * p, bb + 2 * p + 1, bb + 2 * p, bb + 2 * p + 1, g, g + 1))
        round_regs_bf16(a, aa, 16, 16)
        round_regs_bf16(a, bb, 16, 24)
        for p in range(8):
            a("v_pk_add_f32 v[%d:%d], v[%d:%d], v[%d:%d]" % (aa + 2 * p, aa + 2 * p + 1, aa + 2 * p, aa + 2 * p + 1, bb + 2 * p, bb + 2 * p + 1))
        line_pack_write(a, aa, 48 + 8 * j, VW, j, 0)
    line_read(a, 80, VR, 0)
    a("s_waitcnt lgkmcnt(0)")
    line_store(a, 80, VST, VAT, SRD_C, 2048, 0, "")
    if INSTR:
        a("s_waitcnt vmcnt(0)")
        stamp_flush(a, 1, 5)
    a("s_branch L_%s_end" % name)
    a.label("L_m_owg")
    gen_owg(a)
    a("s_waitcnt vmcnt(0)")
    mstamp(a, "E3")
    a("s_barrier")
    a("s_cmp_ge_u32 s%d, 4" % S_WAVE)
    a("s_cbranch_scc1 L_m_loader4o")

    def sigo():
        a("s_lshr_b32 s%d, s%d, 1" % (S_T2, S_CT))
        flag_signal(a, FL_O, S_T2)
    wave0(a, sigo)
    a("s_branch L_m_c4")
    a.label("L_m_loader2")
    keep = INSTR
    INSTR = False
    a("s_sub_u32 s%d, s%d, 4" % (S_LW, S_WAVE))
    loader_a_offsets(a, V_LA, 2048)
    loader_b_offsets_small(a, V_LB, 2048)
    loader_loop(a, cs2, [(16, SRD_A, SRD_B, V_LA, V_LB, 64 * 2048)], None)
    a("s_cmp_lt_u32 s%d, 28" % S_J)
    a("s_cbranch_scc1 L_m_loader3")
    a("s_barrier")
    a("s_barrier")
    a("s_branch L_m_owg")
    a.label("L_m_loader3")
    p3_decode(a)
    loader_b_offsets_big(a, V_LB)

    def gate3():
        a("s_barrier")
        a("s_barrier")
    kb3 = 64 * F * 2
    loader_loop(a, cb, [(n, SRD_A, SRD_B, V_LA, V_LB, kb3, c0) for n, c0 in ((3, 0), (7, 4), (4, 12), (1, 3), (1, 11))], None, gate3,
                (lambda: k3_stats_issue(a, cb, S_LW), 16, lambda: k3_stats_fin(a, cb, S_LW)))
    p4_decode(a)
    make_srd(a, SRD_B2, P_W4, 0, F * D * 2)
    loader_b_offsets_small(a, V_LB, 2048)
    loader_a_offsets(a, V_LA2, F * 2)
    a("s_mov_b32 s%d, 1" % S_C0)
    a("s_branch L_m_loader4")
    a.label("L_m_loader4o")
    p4_decode(a)
    make_srd(a, SRD_B2, P_W4, 0, F * D * 2)
    loader_a_offsets(a, V_LA, 2048)
    loader_b_offsets_small(a, V_LB, 2048)
    loader_a_offsets(a, V_LA2, F * 2)
    a("s_mov_b32 s%d, 0" % S_C0)
    a.label("L_m_loader4")

    def gate4():
        l = a.newlabel("noe3")
        a("s_cmp_eq_u32 s%d, 0" % S_C0)
        a("s_cbranch_scc1 %s" % l)
        a("s_barrier")
        a.label(l)
        a("s_barrier")
    loader_loop(a, cs4, [(16, SRD_A, SRD_B, V_LA, V_LB, 64 * 2048), (56, SRD_A2, SRD_B2, V_LA2, V_LB, 64 * 2048)], None, gate4)
    INSTR = keep
    a.label("L_%s_end" % name)
    a("s_endpgm")
    a.label("L_code_end")
    descriptor(a, name)
    return name, 256, cb.LDS_TOTAL


def main():
    global INSTR
    if "--instr" in sys.argv:
        INSTR = True
        sys.argv.remove("--instr")
    for x in list(sys.argv):
        if x.startswith("--exp="):
            EXP.update(x[6:].split(","))
            sys.argv.remove(x)
    body = Asm()
    launches = []
    for g in (gen_k1, gen_k234):
        launches.append(g(body))
    hdr = []
    for name, nwg, lds in launches:
        hdr.append("; @launch kernel=%s grid=(%d,1,1) block=(512,1,1) lds=%d" % (name, nwg, lds))
    hdr.append('.amdgcn_target "amdgcn-amd-amdhsa--gfx950"')
    hdr.append(".text")
    out = "\n".join(hdr + body.lines) + "\n"
    path = sys.argv[1] if len(sys.argv) > 1 else "gated_mix__linear_attn_block__mixer_s_mlp__prompt.s"
    open(path, "w").write(out)
    print("wrote", path, len(out), "bytes")


if __name__ == "__main__":
    main()
```

```python
import struct, sys

MB = 1 << 20
WS_PQ = 0 * MB
WS_HS = 4 * MB
WS_X1 = 8 * MB
WS_O = 12 * MB
WS_ACT = 16 * MB
WS_KVP = 32 * MB
WS_ZP = 34 * MB
WS_G = 35 * MB
WS_XS = 37 * MB
WS_FLAG = 39 * MB
FL_X1, FL_ACT, FL_O, FL_RED, FL_X1S = 0, 2048, 4096, 6144, 64
MERGED = True
HO = " sc1"
WS_CSP = 38 * MB
WS_KVB = 36 * MB
WS_ZB = 36 * MB + 65536

S, D, F = 2048, 1024, 3584


def f32(x):
    return "0x%08x" % struct.unpack("<I", struct.pack("<f", x))[0]


LOG2E = 1.4426950408889634
GC0 = -2.0 * 0.7978845608028654 * LOG2E
GC1 = GC0 * 0.044715


class Asm:
    def __init__(self):
        self.lines = []
        self.uid = 0

    def __call__(self, s):
        for ln in s.strip("\n").split("\n"):
            self.lines.append("    " + ln.strip())

    def label(self, l):
        self.lines.append(l + ":")

    def newlabel(self, base):
        self.uid += 1
        return "L_%s_%d" % (base, self.uid)

    def raw(self, s):
        self.lines.append(s)


def vr(a, n=1):
    return "v%d" % a if n == 1 else "v[%d:%d]" % (a, a + n - 1)


def sr(a, n=1):
    return "s%d" % a if n == 1 else "s[%d:%d]" % (a, a + n - 1)


P_X, P_WQKV, P_WO, P_W1, P_W2, P_W3, P_W4, P_GATE, P_OUT, P_DBG, P_WS = 4, 6, 8, 12, 14, 16, 18, 20, 22, 24, 26
SRD_A, SRD_B, SRD_C, SRD_D, SRD_A2, SRD_B2, SRD_E, SRD_F = 28, 32, 36, 40, 44, 48, 52, 56
S_WAVE, S_ROW0, S_COL0, S_TYPE, S_LDB, S_SA, S_SB, S_CNT = 60, 61, 62, 63, 64, 65, 66, 67
S_KA, S_KB, S_BUF, S_T0, S_T1, S_T2, S_T3, S_LW = 68, 69, 70, 71, 72, 73, 74, 75
S_SHIFT, S_RB, S_CT, S_XCD, S_J, S_KBSTEP = 76, 77, 78, 79, 80, 81
S_EXEC = 82
S_C0 = 84


def make_srd(a, srd, ptr, off, nbytes):
    if off:
        a("s_add_u32 s%d, s%d, 0x%x" % (srd, ptr, off))
        a("s_addc_u32 s%d, s%d, 0" % (srd + 1, ptr + 1))
    else:
        a("s_mov_b32 s%d, s%d" % (srd, ptr))
        a("s_mov_b32 s%d, s%d" % (srd + 1, ptr + 1))
    a("s_mov_b32 s%d, 0x%x" % (srd + 2, nbytes))
    a("s_mov_b32 s%d, 0x20000" % (srd + 3))


def kernel_header(a, name, nwg):
    a.raw(".globl %s" % name)
    a.raw(".p2align 8")
    a.raw(".type %s,@function" % name)
    a.label(name)
    a("s_cmp_ge_u32 s2, %d" % nwg)
    a("s_cbranch_scc1 L_%s_end" % name)
    if INSTR:
        a("s_memrealtime s[%d:%d]" % (S_TS + 12, S_TS + 13))
    stamp(a, 0)
    a("s_load_dwordx16 s[4:19], s[0:1], 0")
    a("s_load_dwordx8 s[20:27], s[0:1], 64")
    a("v_lshrrev_b32 v2, 6, v0")
    a("v_and_b32 v1, 63, v0")
    a("s_and_b32 s%d, s2, 7" % S_XCD)
    a("v_readfirstlane_b32 s%d, v2" % S_WAVE)
    a("s_lshr_b32 s%d, s2, 3" % S_J)
    if INSTR:
        a("s_nop 3")
        a("s_mov_b32 s3, s%d" % S_WAVE)


def kernel_footer(a, name, kidx=0):
    a.label("L_%s_ldone" % name)
    if INSTR:
        stamp(a, 4)
        stamp_flush(a, kidx, 5)
    a("s_branch L_%s_end" % name)
    a.label("L_%s_cdone" % name)
    if "dbg" in EXP:
        a("s_waitcnt vmcnt(0)")
    dbgstamp(a, 2, False)
    stamp(a, 3)
    if INSTR:
        a("s_waitcnt vmcnt(0)")
    stamp(a, 4)
    stamp_flush(a, kidx, 5)
    a.label("L_%s_end" % name)
    a("s_endpgm")


def descriptor(a, name, vgprs=256):
    a.raw(".section .rodata,\"a\"")
    a.raw(".p2align 6")
    a.raw(".amdhsa_kernel %s" % name)
    a.raw("  .amdhsa_next_free_vgpr %d" % vgprs)
    a.raw("  .amdhsa_next_free_sgpr 102")
    a.raw("  .amdhsa_accum_offset %d" % vgprs)
    a.raw("  .amdhsa_group_segment_fixed_size 0")
    a.raw("  .amdhsa_kernarg_size 96")
    a.raw("  .amdhsa_user_sgpr_count 2")
    a.raw("  .amdhsa_user_sgpr_kernarg_segment_ptr 1")
    a.raw("  .amdhsa_system_sgpr_workgroup_id_x 1")
    a.raw(".end_amdhsa_kernel")
    a.raw(".text")


INSTR = False
EXP = set()
WS_DBGT = 40 * MB
S_TS = 88


def stamp(a, n):
    if not INSTR:
        return
    a("s_memtime s[%d:%d]" % (S_TS + 2 * n, S_TS + 2 * n + 1))
    a("s_waitcnt lgkmcnt(0)")


def stamp_flush(a, kidx, nst):
    if not INSTR:
        return
    a("s_memrealtime s[%d:%d]" % (S_TS + 2 * nst, S_TS + 2 * nst + 1))
    a("s_waitcnt lgkmcnt(0)")
    make_srd(a, SRD_F, P_WS, WS_DBGT + kidx * 65536, 65536)
    a("s_lshl_b32 s%d, s2, 8" % S_T0)
    a("s_lshl_b32 s%d, s3, 5" % (S_T1,))
    a("s_add_u32 s%d, s%d, s%d" % (S_T0, S_T0, S_T1))
    a("v_mov_b32 v2, s%d" % S_T0)
    for n in range(nst + 2):
        a("v_mov_b32 v3, s%d" % (S_TS + 2 * n))
        a("buffer_store_dword v3, v2, s[%d:%d], 0 offen offset:%d" % (SRD_F, SRD_F + 3, 4 * n))
        a("s_nop 1")


class Cfg:
    def __init__(self, BN, NBUF):
        self.BN = BN
        self.NBUF = NBUF
        self.STAGE = 16384 + BN * 128
        self.big = BN == 256
        self.MI = 4 if self.big else 1
        self.NI = 2
        self.LA = 4
        self.LB = BN // 32
        self.LPS = self.LA + self.LB
        self.NSUB = 4 if self.big else 1
        self.KPS = 4 // self.NSUB
        self.INIT = 2
        self.aflag = ""
        self.RAMP = 1 if self.big else 2
        for e in EXP:
            if e.startswith("initb") and self.big: self.INIT = int(e[5:])
            if e.startswith("inits") and not self.big: self.INIT = int(e[5:])
            if e.startswith("rampb") and self.big: self.RAMP = int(e[5:])
            if e.startswith("ramps") and not self.big: self.RAMP = int(e[5:])
        self.LDS_STATS = self.NBUF * self.STAGE
        self.LDS_CS = self.LDS_STATS + 1024
        self.LDS_TOTAL = self.LDS_CS + 1024


V_LA = 16
V_LB = 20
V_LA2 = 28
V_LB2 = 32
V_SA = 40
V_SAB = 44
V_SB = 48
V_SBB = 49
V_SUM, V_SQ, V_CS0, V_CS1, V_ONES = 50, 51, 52, 53, 54
V_SUM2, V_SQ2 = 55, 56
V_SD = 64


def loader_a_offsets(a, vdst, lda):
    a("v_lshrrev_b32 v3, 3, v1")
    a("v_and_b32 v4, 7, v1")
    a("v_lshrrev_b32 v5, 4, v1")
    a("v_xor_b32 v4, v4, v5")
    a("s_lshl_b32 s%d, s%d, 5" % (S_T0, S_LW))
    a("s_add_u32 s%d, s%d, s%d" % (S_T0, S_T0, S_ROW0))
    a("v_add_u32 v3, s%d, v3" % S_T0)
    a("s_mov_b32 s%d, %d" % (S_T1, lda))
    a("v_mul_lo_u32 v3, v3, s%d" % S_T1)
    for j in range(4):
        if j & 1:
            a("v_xor_b32 v5, 4, v4")
        else:
            a("v_mov_b32 v5, v4")
        a("v_lshl_add_u32 v5, v5, 4, v3")
        a("v_add_u32 v%d, 0x%x, v5" % (vdst + j, 8 * j * lda - 1024 * j))


def loader_b_offsets_big(a, vdst):
    a("v_lshrrev_b32 v3, 5, v1")
    a("v_and_b32 v4, 31, v1")
    a("s_lshl_b32 s%d, s%d, 4" % (S_T0, S_LW))
    a("v_add_u32 v6, s%d, v3" % S_T0)
    a("v_mul_lo_u32 v6, v6, s%d" % S_LDB)
    for par in range(2):
        a("v_or_b32 v5, %d, v3" % (par << 1))
        a("v_lshlrev_b32 v5, 2, v5")
        a("v_xor_b32 v5, v5, v4")
        a("v_bfe_u32 v7, v5, 2, 1")
        a("v_mul_lo_u32 v7, v7, s%d" % S_SA)
        a("v_lshrrev_b32 v8, 3, v5")
        a("v_mul_lo_u32 v8, v8, s%d" % S_SB)
        a("v_and_b32 v9, 3, v5")
        a("v_lshlrev_b32 v9, 3, v9")
        a("v_add3_u32 v7, v7, v8, v9")
        a("v_add_u32 v7, s%d, v7" % S_COL0)
        a("v_lshl_add_u32 v%d, v7, 1, v6" % (10 + par))
    for j in range(8):
        a("s_mul_i32 s%d, s%d, %d" % (S_T0, S_LDB, 2 * j))
        a("s_sub_u32 s%d, s%d, %d" % (S_T0, S_T0, 1024 * (j & 3)))
        a("v_add_u32 v%d, s%d, v%d" % (vdst + j, S_T0, 10 + (j & 1)))


def loader_b_offsets_small(a, vdst, ldb):
    a("v_lshrrev_b32 v3, 3, v1")
    a("s_lshl_b32 s%d, s%d, 4" % (S_T0, S_LW))
    a("v_add_u32 v3, s%d, v3" % S_T0)
    a("s_mov_b32 s%d, %d" % (S_T1, ldb))
    a("v_mul_lo_u32 v3, v3, s%d" % S_T1)
    a("v_and_b32 v4, 7, v1")
    a("v_bfe_u32 v5, v1, 4, 1")
    a("v_lshlrev_b32 v5, 2, v5")
    a("v_xor_b32 v4, v4, v5")
    a("v_lshl_add_u32 v3, v4, 4, v3")
    a("s_lshl_b32 s%d, s%d, 1" % (S_T0, S_COL0))
    a("v_add_u32 v3, s%d, v3" % S_T0)
    for j in range(2):
        a("v_add_u32 v%d, 0x%x, v3" % (vdst + j, 8 * j * ldb - 1024 * j))


def loader_issue(a, c, srda, srdb, vla, vlb, part="AB"):
    if "nodma" in EXP:
        return
    if "A" in part:
        a("s_lshl_b32 s%d, s%d, 12" % (S_T0, S_LW))
        a("s_add_u32 m0, s%d, s%d" % (S_BUF, S_T0))
        a("s_nop 0")
        for j in range(4):
            a("buffer_load_dwordx4 v%d, s[%d:%d], s%d offen offset:%d%s lds" % (vla + j, srda, srda + 3, S_KA, 1024 * j, c.aflag))
    if "B" not in part:
        pass
    elif c.big:
        a("s_lshl_b32 s%d, s%d, 13" % (S_T0, S_LW))
        a("s_add_u32 s%d, s%d, s%d" % (S_T0, S_T0, S_BUF))
        a("s_add_u32 m0, s%d, 16384" % S_T0)
        a("s_nop 0")
        for j in range(4):
            a("buffer_load_dwordx4 v%d, s[%d:%d], s%d offen offset:%d lds" % (vlb + j, srdb, srdb + 3, S_KB, 1024 * j))
        a("s_add_u32 m0, s%d, %d" % (S_T0, 16384 + 4096))
        a("s_nop 0")
        for j in range(4, 8):
            a("buffer_load_dwordx4 v%d, s[%d:%d], s%d offen offset:%d lds" % (vlb + j, srdb, srdb + 3, S_KB, 1024 * (j & 3)))
    else:
        a("s_lshl_b32 s%d, s%d, 11" % (S_T0, S_LW))
        a("s_add_u32 s%d, s%d, s%d" % (S_T0, S_T0, S_BUF))
        a("s_add_u32 m0, s%d, 16384" % S_T0)
        a("s_nop 0")
        for j in range(2):
            a("buffer_load_dwordx4 v%d, s[%d:%d], s%d offen offset:%d lds" % (vlb + j, srdb, srdb + 3, S_KB, 1024 * j))
    if "A" in part:
        a("s_add_u32 s%d, s%d, 128" % (S_KA, S_KA))
    if "B" in part:
        a("s_add_u32 s%d, s%d, s%d" % (S_KB, S_KB, S_KBSTEP))
    a("s_add_u32 s%d, s%d, %d" % (S_BUF, S_BUF, c.STAGE))
    a("s_cmp_eq_u32 s%d, %d" % (S_BUF, c.STAGE * c.NBUF))
    a("s_cselect_b32 s%d, 0, s%d" % (S_BUF, S_BUF))


def stats_setup(a, c):
    a("v_and_b32 v3, 31, v1")
    a("s_lshl_b32 s%d, s%d, 5" % (S_T0, S_LW))
    a("v_add_u32 v3, s%d, v3" % S_T0)
    a("v_lshlrev_b32 v3, 7, v3")
    a("v_bfe_u32 v4, v1, 1, 3")
    a("v_lshrrev_b32 v5, 5, v1")
    a("v_lshlrev_b32 v5, 2, v5")
    a("v_xor_b32 v4, v4, v5")
    for t in range(4):
        a("v_xor_b32 v5, %d, v4" % t)
        a("v_lshl_add_u32 v%d, v5, 4, v3" % (V_SAB + t))
        a("v_mov_b32 v%d, v%d" % (V_SA + t, V_SAB + t))
    a("v_bfe_u32 v3, v1, 2, 2")
    a("v_and_b32 v4, 3, v1")
    a("v_lshrrev_b32 v5, 4, v1")
    a("v_lshlrev_b32 v5, 1, v5")
    a("v_lshrrev_b32 v6, 1, v4")
    a("v_add_u32 v5, v5, v6")
    a("s_lshl_b32 s%d, s%d, 3" % (S_T0, S_LW))
    a("v_add_u32 v5, s%d, v5" % S_T0)
    a("v_lshlrev_b32 v6, 2, v3")
    a("v_xor_b32 v5, v5, v6")
    a("v_lshlrev_b32 v5, 4, v5")
    a("v_lshl_add_u32 v5, v3, 9, v5")
    a("v_and_b32 v4, 1, v4")
    a("v_lshl_add_u32 v5, v4, 3, v5")
    a("v_add_u32 v%d, 16384, v5" % V_SBB)
    a("v_mov_b32 v%d, v%d" % (V_SB, V_SBB))
    for r in (V_SUM, V_SQ, V_CS0, V_CS1, V_SUM2, V_SQ2):
        a("v_mov_b32 v%d, 0" % r)
    a("v_mov_b32 v%d, 0x3f803f80" % V_ONES)
    a("s_mov_b32 s%d, 0" % S_T3)


def stats_step(a, c):
    for t in range(4):
        a("ds_read_b128 v[%d:%d], v%d" % (V_SD + 4 * t, V_SD + 4 * t + 3, V_SA + t))
    for m in range(16):
        a("ds_read_b64_tr_b16 v[%d:%d], v%d offset:%d" % (V_SD + 16 + 2 * m, V_SD + 17 + 2 * m, V_SB, 2048 * m))
    a("s_add_u32 s%d, s%d, %d" % (S_T3, S_T3, c.STAGE))
    a("s_cmp_eq_u32 s%d, %d" % (S_T3, c.STAGE * c.NBUF))
    a("s_cselect_b32 s%d, 0, s%d" % (S_T3, S_T3))
    a("s_waitcnt lgkmcnt(15)")
    for t in range(16):
        s, q = (V_SUM, V_SQ) if t & 1 else (V_SUM2, V_SQ2)
        a("v_dot2_f32_bf16 v%d, v%d, v%d, v%d" % (s, V_SD + t, V_ONES, s))
        a("v_dot2_f32_bf16 v%d, v%d, v%d, v%d" % (q, V_SD + t, V_SD + t, q))
    a("s_waitcnt lgkmcnt(0)")
    for t in range(4):
        a("v_add_u32 v%d, s%d, v%d" % (V_SA + t, S_T3, V_SAB + t))
    a("v_add_u32 v%d, s%d, v%d" % (V_SB, S_T3, V_SBB))
    for m in range(32):
        cs = V_CS0 if m & 1 else V_CS1
        a("v_dot2_f32_bf16 v%d, v%d, v%d, v%d" % (cs, V_SD + 16 + m, V_ONES, cs))


def bf16_round(a, dst, src):
    a("v_cvt_pk_bf16_f32 v%d, v%d, v%d" % (dst, src, src))
    a("v_lshlrev_b32 v%d, 16, v%d" % (dst, dst))


def stats_finish(a, c, S_LW=S_LW):
    a("s_nop 3")
    a("v_add_f32 v%d, v%d, v%d" % (V_SUM, V_SUM, V_SUM2))
    a("v_add_f32 v%d, v%d, v%d" % (V_SQ, V_SQ, V_SQ2))
    a("v_add_f32 v%d, v%d, v%d" % (V_CS0, V_CS0, V_CS1))
    a("v_mov_b32 v3, v%d" % V_SUM)
    a("v_mov_b32 v4, v%d" % V_SUM)
    a("v_mov_b32 v5, v%d" % V_SQ)
    a("v_mov_b32 v6, v%d" % V_SQ)
    a("s_nop 1")
    a("v_permlane32_swap_b32 v3, v4")
    a("v_permlane32_swap_b32 v5, v6")
    a("s_nop 1")
    a("v_add_f32 v3, v3, v4")
    a("v_add_f32 v5, v5, v6")
    a("v_mul_f32 v3, %s, v3" % f32(1.0 / 1024))
    a("v_mul_f32 v5, %s, v5" % f32(1.0 / 1024))
    a("v_fma_f32 v5, -v3, v3, v5")
    a("v_max_f32 v5, 0, v5")
    bf16_round(a, 3, 3)
    bf16_round(a, 5, 5)
    a("v_add_f32 v5, %s, v5" % f32(1e-5))
    bf16_round(a, 5, 5)
    a("v_sqrt_f32 v5, v5")
    a("s_nop 0")
    bf16_round(a, 5, 5)
    a("v_rcp_f32 v6, v5")
    a("s_nop 0")
    a("v_mul_f32 v7, v3, v6")
    a("v_sub_f32 v7, 0, v7")
    a("v_and_b32 v3, 31, v1")
    a("s_lshl_b32 s%d, s%d, 5" % (S_T0, S_LW))
    a("v_add_u32 v3, s%d, v3" % S_T0)
    a("v_lshlrev_b32 v3, 3, v3")
    a("v_add_u32 v3, %d, v3" % c.LDS_STATS)
    a("ds_write_b64 v3, v[6:7]")
    a("s_lshl_b32 s%d, s%d, 6" % (S_T0, S_LW))
    a("v_add_u32 v3, s%d, v1" % S_T0)
    a("v_lshlrev_b32 v3, 2, v3")
    a("v_add_u32 v3, %d, v3" % c.LDS_CS)
    a("ds_write_b32 v3, v%d" % V_CS0)
    a("s_waitcnt lgkmcnt(0)")


def loader_loop(a, c, phases, stats, gate=None, tail=None):
    NIT = sum(p[0] for p in phases)
    NBUF, LPS = c.NBUF, c.LPS
    starts = []
    t = 0
    for p in phases:
        starts.append(t)
        t += p[0]

    def phase_of(s):
        k = 0
        for i, st in enumerate(starts):
            if s >= st:
                k = i
        return k

    def set_phase(k):
        c0 = phases[k][6] if len(phases[k]) > 6 else 0
        a("s_mov_b32 s%d, %d" % (S_KA, c0 * 128))
        a("s_mov_b32 s%d, %d" % (S_KB, c0 * phases[k][5] if c0 else 0))
        kb = phases[k][5]
        if isinstance(kb, int):
            a("s_mov_b32 s%d, %d" % (S_KBSTEP, kb))
        else:
            a(kb)

    def issue(s):
        k = phase_of(s)
        if s == starts[k]:
            set_phase(k)
        p = phases[k]
        loader_issue(a, c, p[1], p[2], p[3], p[4])

    def do_stats():
        if stats is None:
            return
        if stats == 'always':
            stats_step(a, c)
        else:
            l = a.newlabel("nostat")
            a("s_cmp_eq_u32 s%d, 0" % stats)
            a("s_cbranch_scc1 %s" % l)
            stats_step(a, c)
            a.label(l)

    a("s_mov_b32 s%d, 0" % S_BUF)
    stamp(a, 1)
    init = c.INIT
    issued = 0
    if gate is None:
        for s in range(init):
            issue(s)
            issued += 1
    else:
        set_phase(0)
        p = phases[0]
        for s in range(init):
            loader_issue(a, c, p[1], p[2], p[3], p[4], "B")
        gate()
        a("s_mov_b32 s%d, 0" % S_BUF)
        for s in range(init):
            loader_issue(a, c, p[1], p[2], p[3], p[4], "A")
            issued += 1
    stamp(a, 2)
    if stats is not None:
        stats_setup(a, c)
    a("s_waitcnt vmcnt(%d)" % ((issued - 1) * (LPS if gate is None else c.LA)))
    stamp(a, 3)
    a("s_barrier")
    it = 0
    b = -1
    while True:
        n = 0
        while issued <= b + NBUF and issued < NIT and n < c.RAMP:
            issue(issued)
            issued += 1
            n += 1
        if issued == b + NBUF + 1 or issued == NIT:
            break
        do_stats()
        a("s_waitcnt vmcnt(%d)" % ((issued - (it + 2)) * LPS))
        a("s_barrier")
        b = it
        it += 1
    while it < NIT:
        s = it + NBUF
        if s < NIT:
            k = phase_of(s)
            end_s = starts[k] + phases[k][0]
            n = end_s - s
            if s == starts[k]:
                set_phase(k)
            p = phases[k]
            lbl = a.newlabel("ld")
            if n > 1:
                a("s_mov_b32 s%d, %d" % (S_CNT, n))
                a.label(lbl)
            do_stats()
            a("s_waitcnt vmcnt(%d)" % ((NBUF - 2) * LPS))
            a("s_barrier")
            loader_issue(a, c, p[1], p[2], p[3], p[4])
            if n > 1:
                a("s_sub_u32 s%d, s%d, 1" % (S_CNT, S_CNT))
                a("s_cmp_lg_u32 s%d, 0" % S_CNT)
                a("s_cbranch_scc1 %s" % lbl)
            it += n
        else:
            do_stats()
            if tail is not None and s == NIT:
                tail[0]()
            rem = max(0, min(NBUF - 2, NIT - 2 - it))
            if tail is not None and it == NIT - 1:
                tail[2]()
            else:
                a("s_waitcnt vmcnt(%d)" % (rem * LPS + (tail[1] if tail is not None else 0)))
            a("s_barrier")
            it += 1


V_AA = 4
V_AB = 8
V_BA = 12
V_BB = 14
V_F = 16
V_ACC = 128


def compute_addr_setup(a, c):
    a("v_and_b32 v2, 31, v1")
    if not c.big:
        a("s_lshl_b32 s%d, s%d, 5" % (S_T0, S_WAVE))
        a("v_add_u32 v2, s%d, v2" % S_T0)
    a("v_lshlrev_b32 v2, 7, v2")
    a("v_bfe_u32 v3, v1, 1, 3")
    a("v_lshrrev_b32 v16, 5, v1")
    a("v_xor_b32 v3, v3, v16")
    for kk in range(4):
        a("v_xor_b32 v17, %d, v3" % (2 * kk))
        a("v_lshl_add_u32 v%d, v17, 4, v2" % (V_AB + kk))
        a("v_mov_b32 v%d, v%d" % (V_AA + kk, V_AB + kk))
    a("v_bfe_u32 v2, v1, 2, 2")
    a("v_and_b32 v3, 3, v1")
    a("v_bfe_u32 v17, v1, 4, 1")
    a("v_lshlrev_b32 v17, 1, v17")
    a("v_lshrrev_b32 v18, 1, v3")
    a("v_add_u32 v17, v17, v18")
    a("v_lshl_add_u32 v18, v16, 3, v2")
    a("v_and_b32 v3, 1, v3")
    a("v_lshlrev_b32 v3, 3, v3")
    if c.big:
        a("s_lshl_b32 s%d, s%d, 3" % (S_T0, S_WAVE))
        a("v_add_u32 v17, s%d, v17" % S_T0)
        a("v_lshl_add_u32 v3, v18, 9, v3")
        a("v_lshlrev_b32 v2, 2, v2")
        for j in range(2):
            a("v_add_u32 v19, %d, v17" % (4 * j))
            a("v_xor_b32 v19, v19, v2")
            a("v_lshl_add_u32 v19, v19, 4, v3")
            a("v_add_u32 v%d, 16384, v19" % (V_BB + j))
            a("v_mov_b32 v%d, v%d" % (V_BA + j, V_BB + j))
    else:
        a("v_lshl_add_u32 v3, v18, 7, v3")
        a("v_lshrrev_b32 v2, 1, v2")
        a("v_lshlrev_b32 v2, 2, v2")
        for j in range(2):
            a("v_add_u32 v19, %d, v17" % (4 * j))
            a("v_xor_b32 v19, v19, v2")
            a("v_lshl_add_u32 v19, v19, 4, v3")
            a("v_add_u32 v%d, 16384, v19" % (V_BB + j))
            a("v_mov_b32 v%d, v%d" % (V_BA + j, V_BB + j))
    a("s_mov_b32 s%d, 0" % S_BUF)


def frag_regs(c, fset, kq):
    per_kk = (c.MI + c.NI) * 4
    base = V_F + fset * per_kk * c.KPS + kq * per_kk
    A = [base + 4 * i for i in range(c.MI)]
    B = [base + 4 * c.MI + 4 * j for j in range(c.NI)]
    return A, B


def frag_reads(c, fset, sub):
    out = []
    if "noread" in EXP:
        return out
    for kq in range(c.KPS):
        kk = sub * c.KPS + kq
        A, B = frag_regs(c, fset, kq)
        for j in range(c.NI):
            for q in range(2):
                off = kk * 8192 + q * 2048 if c.big else kk * 2048 + q * 512
                out.append("ds_read_b64_tr_b16 v[%d:%d], v%d offset:%d" % (B[j] + 2 * q, B[j] + 2 * q + 1, V_BA + j, off))
        for i in range(c.MI):
            out.append("ds_read_b128 v[%d:%d], v%d offset:%d" % (A[i], A[i] + 3, V_AA + kk, 4096 * i))
    return out


def mfma_list(c, fset, acc, swapped):
    out = []
    if "nomfma" in EXP:
        return ["s_nop 0"]
    for kq in range(c.KPS):
        A, B = frag_regs(c, fset, kq)
        for i in range(c.MI):
            for j in range(c.NI):
                d = acc + 16 * (i * c.NI + j)
                x, w = "v[%d:%d]" % (A[i], A[i] + 3), "v[%d:%d]" % (B[j], B[j] + 3)
                if swapped:
                    x, w = w, x
                if "mfma16" in EXP:
                    out.append("v_mfma_f32_16x16x32_bf16 v[%d:%d], %s, %s, v[%d:%d]" % (d, d + 3, x, w, d, d + 3))
                    out.append("v_mfma_f32_16x16x32_bf16 v[%d:%d], %s, %s, v[%d:%d]" % (d + 4, d + 7, w, x, d + 4, d + 7))
                else:
                    out.append("v_mfma_f32_32x32x16_bf16 v[%d:%d], %s, %s, v[%d:%d]" % (d, d + 15, x, w, d, d + 15))
    return out


def addr_update(c):
    out = []
    out.append("s_add_u32 s%d, s%d, %d" % (S_BUF, S_BUF, c.STAGE))
    out.append("s_cmp_eq_u32 s%d, %d" % (S_BUF, c.STAGE * c.NBUF))
    out.append("s_cselect_b32 s%d, 0, s%d" % (S_BUF, S_BUF))
    for kk in range(4):
        out.append("v_add_u32 v%d, s%d, v%d" % (V_AA + kk, S_BUF, V_AB + kk))
    for j in range(c.NI):
        out.append("v_add_u32 v%d, s%d, v%d" % (V_BA + j, S_BUF, V_BB + j))
    return out


def emit_interleaved(a, mfmas, others, per_gap, lead=0):
    oi = 0
    if "mfma16" in EXP:
        per_gap = 1
    for n, m in enumerate(mfmas):
        a(m)
        if n >= lead:
            for _ in range(per_gap):
                if oi < len(others):
                    a(others[oi])
                    oi += 1
    while oi < len(others):
        a(others[oi])
        oi += 1


def compute_iter(a, c, acc, swapped, fs0, pf=None):
    fs = fs0
    for sub in range(c.NSUB):
        last = sub == c.NSUB - 1
        m = mfma_list(c, fs, acc, swapped)
        a("s_waitcnt lgkmcnt(0)")
        if last:
            if c.NSUB == 1:
                upd = addr_update(c)
                for u in upd:
                    a(u)
                a("s_barrier")
                emit_interleaved(a, m, frag_reads(c, fs ^ 1, 0) + (pf_step(pf) if pf else []), 3)
            else:
                a(m[0])
                a("s_barrier")
                emit_interleaved(a, m[1:], frag_reads(c, fs ^ 1, 0), 3)
        else:
            others = frag_reads(c, fs ^ 1, sub + 1)
            if sub == c.NSUB - 2:
                others = others + addr_update(c)
            if sub == 0 and pf:
                others = others + pf_step(pf)
            emit_interleaved(a, m, others, 2)
        fs ^= 1
    return fs


def compute_loop(a, c, nit, acc, swapped, pf=None):
    unroll = 1 if c.NSUB % 2 == 0 else 2
    assert nit % unroll == 0
    lbl = a.newlabel("cl")
    a("s_mov_b32 s%d, %d" % (S_CNT, nit // unroll))
    a.label(lbl)
    fs = 0
    for u in range(unroll):
        fs = compute_iter(a, c, acc, swapped, fs, pf)
    assert fs == 0
    a("s_sub_u32 s%d, s%d, 1" % (S_CNT, S_CNT))
    a("s_cmp_lg_u32 s%d, 0" % S_CNT)
    a("s_cbranch_scc1 %s" % lbl)


V_PF, V_PFD = 126, 127


def prefetch_jobs(a, jobs, vpf=V_PF, vpfd=V_PFD):
    n = 0
    per_wave = [[] for _ in range(4)]
    for ptr, total in jobs:
        share = total // 256
        for off in range(0, share, 8192):
            per_wave[n % 4].append((ptr, total, share, off))
            n += 1
    done = a.newlabel("pfdone")
    for w in range(4):
        nxt = a.newlabel("pfw")
        a("s_cmp_lg_u32 s%d, %d" % (S_WAVE, w))
        a("s_cbranch_scc1 %s" % nxt)
        for ptr, total, share, off in per_wave[w]:
            make_srd(a, SRD_F, ptr, 0, total)
            a("s_mul_i32 s%d, s2, %d" % (S_T0, share))
            a("s_add_u32 s%d, s%d, %d" % (S_T0, S_T0, off))
            if share - off < 8192:
                a("s_add_u32 s%d, s%d, %d" % (SRD_F + 2, S_T0, share - off))
            a("buffer_load_dword v%d, v%d, s[%d:%d], s%d offen" % (vpfd, vpf, SRD_F, SRD_F + 3, S_T0))
        a("s_branch %s" % done)
        a.label(nxt)
    a.label(done)


S_PFO = 85


def pf_stream_setup(a, assign, nit):
    steps = []
    for ptr, total, part, nparts in assign:
        lines = total // 256 // 128
        per = -(-lines // nparts)
        steps.append(-(-per // nit))
    L = max(steps)
    done = a.newlabel("pfs")
    for w, (ptr, total, part, nparts) in enumerate(assign):
        nxt = a.newlabel("pfsw")
        a("s_cmp_lg_u32 s%d, %d" % (S_WAVE, w))
        a("s_cbranch_scc1 %s" % nxt)
        share = total // 256
        lines = share // 128
        per = -(-lines // nparts)
        beg = part * per * 128
        end = min(share, (part + 1) * per * 128)
        make_srd(a, SRD_F, ptr, 0, total)
        a("s_mul_i32 s%d, s2, %d" % (S_PFO, share))
        a("s_add_u32 s%d, s%d, %d" % (SRD_F + 2, S_PFO, end))
        a("s_add_u32 s%d, s%d, %d" % (S_PFO, S_PFO, beg))
        a("s_branch %s" % done)
        a.label(nxt)
    a.label(done)
    a("v_lshlrev_b32 v%d, 7, v1" % V_PF)
    a("v_mov_b32 v2, 0x40000000")
    a("v_cmp_gt_u32 vcc, %d, v1" % L)
    a("s_nop 1")
    a("v_cndmask_b32 v%d, v2, v%d, vcc" % (V_PF, V_PF))
    return L * 128


def pf_step(step):
    return ["buffer_load_dword v%d, v%d, s[%d:%d], s%d offen" % (V_PFD, V_PF, SRD_F, SRD_F + 3, S_PFO),
            "s_add_u32 s%d, s%d, %d" % (S_PFO, S_PFO, step)]


def code_prefetch(a, first, last):
    if "nocpf" in EXP:
        return
    here = a.newlabel("pc")
    a("s_getpc_b64 s[%d:%d]" % (SRD_F, SRD_F + 1))
    a.label(here)
    a("s_add_u32 s%d, s%d, %s-%s" % (SRD_F, SRD_F, first, here))
    a("s_addc_u32 s%d, s%d, -1" % (SRD_F + 1, SRD_F + 1) if False else "s_addc_u32 s%d, s%d, (%s-%s)>>32" % (SRD_F + 1, SRD_F + 1, first, here))
    a("s_mov_b32 s%d, %s-%s" % (SRD_F + 2, last, first))
    a("s_mov_b32 s%d, 0x20000" % (SRD_F + 3))
    a("v_lshlrev_b32 v2, 7, v1")
    a("s_lshl_b32 s%d, s%d, 13" % (S_T0, S_J))
    a("buffer_load_dword v%d, v2, s[%d:%d], s%d offen" % (V_PFD, SRD_F, SRD_F + 3, S_T0))


def zero_acc(a, acc, n):
    for r in range(acc, acc + n):
        a("v_mov_b32 v%d, 0" % r)


def compute_start(a, c):
    a("s_barrier")
    stamp(a, 1)
    dbgstamp(a, 1, False)
    for r in frag_reads(c, 0, 0):
        a(r)


def pack_swap_store(a, src, tmp, vaddr, srd, imm, flags=""):
    if "st_sc1" in EXP: flags = " sc1"
    if "st_sc01" in EXP: flags = " sc0 sc1"
    if "st_nt" in EXP: flags = " nt"
    if "st_ntsc1" in EXP: flags = " sc1 nt"
    for p in range(8):
        a("v_cvt_pk_bf16_f32 v%d, v%d, v%d" % (tmp + p, src + 2 * p, src + 2 * p + 1))
    a("s_nop 1")
    for gp in range(2):
        b = tmp + 4 * gp
        a("v_permlane32_swap_b32 v%d, v%d" % (b, b + 2))
        a("v_permlane32_swap_b32 v%d, v%d" % (b + 1, b + 3))
    for gp in range(2):
        b = tmp + 4 * gp
        a("buffer_store_dwordx4 v[%d:%d], v%d, s[%d:%d], 0 offen offset:%d%s" % (b, b + 3, vaddr, srd, srd + 3, imm + 32 * gp, flags))


def line_store_setup(a, ld, vst, VW, VR, s_row, s_colb, ldsbase=65536):
    a("s_lshl_b32 s%d, s%d, 13" % (S_T0, S_WAVE))
    a("s_add_u32 s%d, s%d, %d" % (S_T0, S_T0, ldsbase))
    a("v_and_b32 v2, 31, v1")
    a("v_lshrrev_b32 v3, 5, v1")
    a("v_and_b32 v%d, 7, v2" % VR)
    a("v_xor_b32 v3, v3, v%d" % VR)
    a("v_lshlrev_b32 v2, 7, v2")
    a("v_add_u32 v2, s%d, v2" % S_T0)
    for q in range(4):
        a("v_xor_b32 v%d, %d, v3" % (VW + q, 2 * q))
        a("v_lshl_add_u32 v%d, v%d, 4, v2" % (VW + q, VW + q))
    a("v_lshrrev_b32 v2, 3, v1")
    a("v_and_b32 v3, 7, v1")
    a("v_xor_b32 v%d, v3, v2" % VR)
    a("v_lshlrev_b32 v%d, 4, v%d" % (VR, VR))
    a("v_lshl_add_u32 v%d, v2, 7, v%d" % (VR, VR))
    a("v_add_u32 v%d, s%d, v%d" % (VR, S_T0, VR))
    a("v_add_u32 v2, s%d, v2" % s_row)
    a("s_mov_b32 s%d, %d" % (S_T1, ld))
    a("v_mul_lo_u32 v2, v2, s%d" % S_T1)
    a("v_lshl_add_u32 v2, v3, 4, v2")
    a("v_add_u32 v%d, s%d, v2" % (vst, s_colb))


def line_pack_write(a, src, tmp, VW, j, ldsoff):
    for p in range(8):
        a("v_cvt_pk_bf16_f32 v%d, v%d, v%d" % (tmp + p, src + 2 * p, src + 2 * p + 1))
    a("s_nop 1")
    for gp in range(2):
        b = tmp + 4 * gp
        a("v_permlane32_swap_b32 v%d, v%d" % (b, b + 2))
        a("v_permlane32_swap_b32 v%d, v%d" % (b + 1, b + 3))
    for gp in range(2):
        b = tmp + 4 * gp
        a("ds_write_b128 v%d, v[%d:%d] offset:%d" % (VW + 2 * j + gp, b, b + 3, ldsoff))


def line_read(a, dst, VR, ldsoff):
    for t in range(4):
        a("ds_read_b128 v[%d:%d], v%d offset:%d" % (dst + 4 * t, dst + 4 * t + 3, VR, ldsoff + 1024 * t))


def line_store(a, src, vst, vtmp, srd, ld, i, flags=" sc1", extra=0):
    for t in range(4):
        a("v_add_u32 v%d, 0x%x, v%d" % (vtmp + t, (32 * i + 8 * t) * ld + extra, vst))
    for t in range(4):
        a("buffer_store_dwordx4 v[%d:%d], v%d, s[%d:%d], 0 offen%s" % (src + 4 * t, src + 4 * t + 3, vtmp + t, srd, srd + 3, flags))


def epi_lines(a, c, srd, ld, shift_sgpr, mathfn, VP, VD, VW, VR, VST, VAT):
    if shift_sgpr is not None:
        a("s_add_u32 s%d, s%d, s%d" % (S_T2, S_ROW0, shift_sgpr))
    else:
        a("s_mov_b32 s%d, s%d" % (S_T2, S_ROW0))
    a("s_lshl_b32 s%d, s%d, 6" % (S_T3, S_WAVE))
    a("s_add_u32 s%d, s%d, s%d" % (S_T3, S_T3, S_COL0))
    a("s_lshl_b32 s%d, s%d, 1" % (S_T3, S_T3))
    line_store_setup(a, ld, VST, VW, VR, S_T2, S_T3)
    for i in range(4):
        off = 4096 * (i & 1)
        for j in range(2):
            acc = V_ACC + 16 * (i * 2 + j)
            mathfn(i, j, acc)
            if j == 0 and i > 0:
                a("s_waitcnt lgkmcnt(0)")
                line_store(a, VD, VST, VAT, srd, ld, i - 1)
            line_pack_write(a, acc, VP + 8 * j, VW, j, off)
        line_read(a, VD, VR, off)
    a("s_waitcnt lgkmcnt(0)")
    line_store(a, VD, VST, VAT, srd, ld, 3)


def phi_inplace(a, regs, tmp, vconst):
    n = len(regs)
    for p in range(n):
        a("v_pk_mul_f32 v[%d:%d], v[%d:%d], v[%d:%d] op_sel:[0,0] op_sel_hi:[1,0]" % (tmp + 2 * p, tmp + 2 * p + 1, regs[p], regs[p] + 1, vconst, vconst + 1))
    for p in range(n):
        a("v_exp_f32 v%d, v%d clamp" % (tmp + 2 * p, tmp + 2 * p))
        a("v_exp_f32 v%d, v%d clamp" % (tmp + 2 * p + 1, tmp + 2 * p + 1))
    for p in range(n):
        a("v_max_f32 v%d, 0, v%d" % (regs[p], regs[p]))
        a("v_max_f32 v%d, 0, v%d" % (regs[p] + 1, regs[p] + 1))
    for p in range(n):
        a("v_pk_add_f32 v[%d:%d], v[%d:%d], v[%d:%d] op_sel:[0,1] op_sel_hi:[1,1]" % (tmp + 2 * p, tmp + 2 * p + 1, tmp + 2 * p, tmp + 2 * p + 1, vconst, vconst + 1))
    for p in range(n):
        a("v_pk_add_f32 v[%d:%d], v[%d:%d], v[%d:%d]" % (regs[p], regs[p] + 1, regs[p], regs[p] + 1, tmp + 2 * p, tmp + 2 * p + 1))


def ln_gelu_inplace(a, regs, tmp, vstat, vcs, vconst):
    n = len(regs)
    P = lambda r: "v[%d:%d]" % (r, r + 1)
    for p in range(n):
        a("v_pk_mul_f32 %s, %s, %s op_sel:[0,0] op_sel_hi:[1,0]" % (P(regs[p]), P(regs[p]), P(vstat)))
    for p in range(n):
        a("v_pk_fma_f32 %s, %s, %s, %s op_sel:[0,1,0] op_sel_hi:[1,1,1]" % (P(regs[p]), P(vcs + 2 * p), P(vstat), P(regs[p])))
    for p in range(n):
        a("v_pk_mul_f32 %s, %s, %s" % (P(tmp + 2 * p), P(regs[p]), P(regs[p])))
    for p in range(n):
        a("v_pk_fma_f32 %s, %s, %s, %s op_sel:[0,0,1] op_sel_hi:[1,0,1]" % (P(tmp + 2 * p), P(tmp + 2 * p), P(vconst), P(vconst)))
    for p in range(n):
        a("v_pk_mul_f32 %s, %s, %s" % (P(tmp + 2 * p), P(tmp + 2 * p), P(regs[p])))
    for p in range(n):
        a("v_exp_f32 v%d, v%d" % (tmp + 2 * p, tmp + 2 * p))
        a("v_exp_f32 v%d, v%d" % (tmp + 2 * p + 1, tmp + 2 * p + 1))
    for p in range(n):
        a("v_pk_add_f32 %s, %s, 1.0 op_sel_hi:[1,0]" % (P(tmp + 2 * p), P(tmp + 2 * p)))
    for p in range(n):
        a("v_rcp_f32 v%d, v%d" % (tmp + 2 * p, tmp + 2 * p))
        a("v_rcp_f32 v%d, v%d" % (tmp + 2 * p + 1, tmp + 2 * p + 1))
    for p in range(n):
        a("v_pk_mul_f32 %s, %s, %s" % (P(regs[p]), P(regs[p]), P(tmp + 2 * p)))


def epi_store_addr(a, c, ld, vdst, n_i, shift_sgpr=None):
    a("v_and_b32 v2, 31, v1")
    a("v_add_u32 v2, s%d, v2" % S_ROW0)
    if shift_sgpr is not None:
        a("v_add_u32 v2, s%d, v2" % shift_sgpr)
    if c.big:
        a("s_lshl_b32 s%d, s%d, 6" % (S_T0, S_WAVE))
    else:
        a("s_lshr_b32 s%d, s%d, 1" % (S_T1, S_WAVE))
        a("s_lshl_b32 s%d, s%d, 6" % (S_T1, S_T1))
        a("v_add_u32 v2, s%d, v2" % S_T1)
        a("s_and_b32 s%d, s%d, 1" % (S_T0, S_WAVE))
        a("s_lshl_b32 s%d, s%d, 5" % (S_T0, S_T0))
    a("s_add_u32 s%d, s%d, s%d" % (S_T0, S_T0, S_COL0))
    a("s_lshl_b32 s%d, s%d, 1" % (S_T0, S_T0))
    a("s_mov_b32 s%d, %d" % (S_T1, ld))
    a("v_mul_lo_u32 v2, v2, s%d" % S_T1)
    a("v_lshrrev_b32 v3, 5, v1")
    a("v_lshl_add_u32 v2, v3, 4, v2")
    a("v_add_u32 v%d, s%d, v2" % (vdst, S_T0))
    for i in range(1, n_i):
        a("v_add_u32 v%d, 0x%x, v%d" % (vdst + i, 32 * ld * i, vdst))


S_STOFF = 86
NI_EPI = 4


def xfer_send(a):
    if NI_EPI == 4:
        a("s_mov_b32 s%d, 0" % S_STOFF)
        a("s_nop 15")
        return
    a("s_lshl_b32 s%d, s%d, 14" % (S_T0, S_WAVE))
    a("v_lshlrev_b32 v2, 4, v1")
    a("v_add_u32 v2, s%d, v2" % S_T0)
    a("s_mov_b32 s%d, 0" % S_STOFF)
    a("s_nop 15")
    for q in range(16):
        a("ds_write_b128 v2, v[%d:%d] offset:%d" % (V_ACC + 64 + 4 * q, V_ACC + 67 + 4 * q, 1024 * q))


def xfer_recv(a):
    a("s_lshl_b32 s%d, s%d, 14" % (S_T0, S_LW))
    a("v_lshlrev_b32 v2, 4, v1")
    a("v_add_u32 v2, s%d, v2" % S_T0)
    for q in range(16):
        a("ds_read_b128 v[%d:%d], v2 offset:%d" % (V_ACC + 4 * q, V_ACC + 3 + 4 * q, 1024 * q))
    a("s_mov_b32 s%d, s%d" % (S_WAVE, S_LW))
    a("s_add_u32 s%d, s%d, 64" % (S_ROW0, S_ROW0))
    a("s_mov_b32 s%d, 512" % S_STOFF)
    a("s_waitcnt lgkmcnt(0)")


def epi_ln_gelu(a, c, srd, ld, shift_sgpr):
    VST, VSTAT, VCS, VC, VT, VP = 4, 8, 16, 48, 64, 96
    epi_store_addr(a, c, ld, VST, NI_EPI, shift_sgpr)
    a("v_and_b32 v2, 31, v1")
    a("v_lshlrev_b32 v2, 3, v2")
    a("v_add_u32 v2, %d, v2" % c.LDS_STATS)
    a("v_add_u32 v2, s%d, v2" % S_STOFF)
    for i in range(NI_EPI):
        a("ds_read_b64 v[%d:%d], v2 offset:%d" % (VSTAT + 2 * i, VSTAT + 2 * i + 1, 256 * i))
    a("v_lshrrev_b32 v3, 5, v1")
    a("v_lshlrev_b32 v3, 4, v3")
    a("s_lshl_b32 s%d, s%d, 8" % (S_T0, S_WAVE))
    a("v_add_u32 v3, s%d, v3" % S_T0)
    a("v_add_u32 v3, %d, v3" % c.LDS_CS)
    for j in range(2):
        for g in range(4):
            a("ds_read_b128 v[%d:%d], v3 offset:%d" % (VCS + 16 * j + 4 * g, VCS + 16 * j + 4 * g + 3, 128 * j + 32 * g))
    a("v_mov_b32 v%d, %s" % (VC, f32(GC1)))
    a("v_mov_b32 v%d, %s" % (VC + 1, f32(GC0)))
    a("s_waitcnt lgkmcnt(0)")
    if "nolines" not in EXP:
        epi_lines(a, c, srd, ld, shift_sgpr,
                  lambda i, j, acc: ln_gelu_inplace(a, [acc + 2 * p for p in range(8)], VT, VSTAT + 2 * i, VCS + 16 * j, VC),
                  96, 80, 52, 56, 57, 58)
        return
    n = 0
    for i in range(NI_EPI):
        for j in range(2):
            acc = V_ACC + 16 * (i * 2 + j)
            ln_gelu_inplace(a, [acc + 2 * p for p in range(8)], VT, VSTAT + 2 * i, VCS + 16 * j, VC)
            pack_swap_store(a, acc, VP + 8 * (n & 1), VST + i, srd, 64 * j)
            n += 1


def epi_phi_q(a, c, srd, ld):
    VST, VC, VT, VP = 4, 48, 64, 96
    epi_store_addr(a, c, ld, VST, NI_EPI)
    a("v_mov_b32 v%d, %s" % (VC, f32(LOG2E)))
    a("v_mov_b32 v%d, %s" % (VC + 1, f32(1e-6)))
    if "nolines" not in EXP:
        epi_lines(a, c, srd, ld, None,
                  lambda i, j, acc: phi_inplace(a, [acc + 2 * p for p in range(8)], VT, VC),
                  96, 80, 52, 56, 57, 58)
        return
    n = 0
    for i in range(NI_EPI):
        for j in range(2):
            acc = V_ACC + 16 * (i * 2 + j)
            phi_inplace(a, [acc + 2 * p for p in range(8)], VT, VC)
            pack_swap_store(a, acc, VP + 8 * (n & 1), VST + i, srd, 64 * j)
            n += 1


def epi_kv(a, c):
    VC, VT, VPK, VV, VONE, VKV, VZ = 48, 64, 16, 24, 32, 80, 96
    a("v_mov_b32 v%d, %s" % (VC, f32(LOG2E)))
    a("v_mov_b32 v%d, %s" % (VC + 1, f32(1e-6)))
    for r in range(4):
        a("v_mov_b32 v%d, 0x3f803f80" % (VONE + r))
    zero_acc(a, VKV, 32)
    for i in range(4):
        kacc = V_ACC + 32 * i
        vacc = kacc + 16
        phi_inplace(a, [kacc + 2 * p for p in range(8)], VT, VC)
        for p in range(8):
            a("v_cvt_pk_bf16_f32 v%d, v%d, v%d" % (VPK + p, kacc + 2 * p, kacc + 2 * p + 1))
        for p in range(8):
            a("v_cvt_pk_bf16_f32 v%d, v%d, v%d" % (VV + p, vacc + 2 * p, vacc + 2 * p + 1))
        a("s_nop 1")
        for m in range(2):
            a("v_mfma_f32_32x32x16_bf16 v[%d:%d], v[%d:%d], v[%d:%d], v[%d:%d]" % (VKV, VKV + 15, VPK + 4 * m, VPK + 4 * m + 3, VV + 4 * m, VV + 4 * m + 3, VKV, VKV + 15))
            a("v_mfma_f32_32x32x16_bf16 v[%d:%d], v[%d:%d], v[%d:%d], v[%d:%d]" % (VZ, VZ + 15, VPK + 4 * m, VPK + 4 * m + 3, VONE, VONE + 3, VZ, VZ + 15))
    a("s_sub_u32 s%d, s%d, 4" % (S_T0, S_CT))
    a("s_lshl_b32 s%d, s%d, 2" % (S_T0, S_T0))
    a("s_add_u32 s%d, s%d, s%d" % (S_T0, S_T0, S_WAVE))
    a("s_lshl_b32 s%d, s%d, 5" % (S_T1, S_RB))
    a("s_add_u32 s%d, s%d, s%d" % (S_T0, S_T0, S_T1))
    a("s_lshl_b32 s%d, s%d, 12" % (S_T1, S_T0))
    a("s_lshl_b32 s%d, s%d, 7" % (S_T2, S_T0))
    a("v_and_b32 v2, 31, v1")
    a("v_lshrrev_b32 v3, 5, v1")
    a("v_lshlrev_b32 v3, 4, v3")
    a("v_lshl_add_u32 v4, v2, 7, v3")
    a("v_add_u32 v4, s%d, v4" % S_T1)
    a("v_add_u32 v5, s%d, v3" % S_T2)
    a("v_cmp_eq_u32 vcc, 0, v2")
    a("s_nop 15")
    for g in range(4):
        a("buffer_store_dwordx4 v[%d:%d], v4, s[%d:%d], 0 offen offset:%d" % (VKV + 4 * g, VKV + 4 * g + 3, SRD_D, SRD_D + 3, 32 * g))
    a("s_and_saveexec_b64 s[%d:%d], vcc" % (S_EXEC, S_EXEC + 1))
    for g in range(4):
        a("buffer_store_dwordx4 v[%d:%d], v5, s[%d:%d], 0 offen offset:%d" % (VZ + 4 * g, VZ + 4 * g + 3, SRD_E, SRD_E + 3, 32 * g))
    a("s_mov_b64 exec, s[%d:%d]" % (S_EXEC, S_EXEC + 1))


def gen_k1(a):
    name = "k1_kernel"
    c = Cfg(256, 3)
    kernel_header(a, name, 256)
    a("s_and_b32 s%d, s%d, 1" % (S_T0, S_XCD))
    a("s_lshl_b32 s%d, s%d, 3" % (S_T0, S_T0))
    a("s_and_b32 s%d, s%d, 7" % (S_T1, S_J))
    a("s_add_u32 s%d, s%d, s%d" % (S_RB, S_T0, S_T1))
    a("s_lshr_b32 s%d, s%d, 1" % (S_T0, S_XCD))
    a("s_lshl_b32 s%d, s%d, 2" % (S_T0, S_T0))
    a("s_lshr_b32 s%d, s%d, 3" % (S_T1, S_J))
    a("s_add_u32 s%d, s%d, s%d" % (S_CT, S_T0, S_T1))
    a("s_lshl_b32 s%d, s%d, 7" % (S_ROW0, S_RB))
    a("s_waitcnt lgkmcnt(0)")
    make_srd(a, SRD_A, P_X, 0, S * D * 2)
    make_srd(a, SRD_D, P_WS, WS_KVP, 2 * MB)
    make_srd(a, SRD_E, P_WS, WS_ZP, 65536)
    lq, lkv, lw1, ldone = "L_k1_tq", "L_k1_tkv", "L_k1_tw1", "L_k1_tdone"
    a("s_cmp_lt_u32 s%d, 4" % S_CT)
    a("s_cbranch_scc1 %s" % lq)
    a("s_cmp_lt_u32 s%d, 12" % S_CT)
    a("s_cbranch_scc1 %s" % lkv)
    a.label(lw1)
    a("s_mov_b32 s%d, 2" % S_TYPE)
    make_srd(a, SRD_B, P_W1, 0, D * D * 2)
    make_srd(a, SRD_C, P_WS, WS_HS, S * D * 2)
    a("s_mov_b32 s%d, 2048" % S_LDB)
    a("s_sub_u32 s%d, s%d, 12" % (S_T0, S_CT))
    a("s_lshl_b32 s%d, s%d, 8" % (S_COL0, S_T0))
    a("s_mov_b32 s%d, 32" % S_SA)
    a("s_mov_b32 s%d, 64" % S_SB)
    a("s_lshr_b32 s%d, s%d, 1" % (S_T1, S_T0))
    a("s_add_u32 s%d, s%d, 1" % (S_T1, S_T1))
    a("s_sub_u32 s%d, 0, s%d" % (S_T2, S_T1))
    a("s_and_b32 s%d, s%d, 1" % (S_T0, S_T0))
    a("s_cmp_eq_u32 s%d, 0" % S_T0)
    a("s_cselect_b32 s%d, s%d, s%d" % (S_SHIFT, S_T1, S_T2))
    a("s_branch %s" % ldone)
    a.label(lq)
    a("s_mov_b32 s%d, 0" % S_TYPE)
    make_srd(a, SRD_B, P_WQKV, 0, D * 3 * D * 2)
    make_srd(a, SRD_C, P_WS, WS_PQ, S * D * 2)
    a("s_mov_b32 s%d, 6144" % S_LDB)
    a("s_lshl_b32 s%d, s%d, 8" % (S_COL0, S_CT))
    a("s_mov_b32 s%d, 32" % S_SA)
    a("s_mov_b32 s%d, 64" % S_SB)
    a("s_mov_b32 s%d, 0" % S_SHIFT)
    a("s_branch %s" % ldone)
    a.label(lkv)
    a("s_mov_b32 s%d, 1" % S_TYPE)
    make_srd(a, SRD_B, P_WQKV, 0, D * 3 * D * 2)
    make_srd(a, SRD_C, P_WS, WS_PQ, S * D * 2)
    a("s_mov_b32 s%d, 6144" % S_LDB)
    a("s_sub_u32 s%d, s%d, 4" % (S_T0, S_CT))
    a("s_lshl_b32 s%d, s%d, 7" % (S_T0, S_T0))
    a("s_add_u32 s%d, s%d, 1024" % (S_COL0, S_T0))
    a("s_mov_b32 s%d, 1024" % S_SA)
    a("s_mov_b32 s%d, 32" % S_SB)
    a("s_mov_b32 s%d, 0" % S_SHIFT)
    a.label(ldone)
    a("s_cmp_ge_u32 s%d, 4" % S_WAVE)
    a("s_cbranch_scc1 L_k1_loader")
    a("s_or_b32 s%d, s2, s%d" % (S_T0, S_WAVE))
    a("s_cmp_lg_u32 s%d, 0" % S_T0)
    a("s_cbranch_scc1 L_k1_noclr")
    make_srd(a, SRD_F, P_WS, WS_FLAG, 8192)
    a("v_lshlrev_b32 v2, 4, v1")
    for r in range(4):
        a("v_mov_b32 v%d, 0" % (4 + r))
    for t in range(4):
        a("buffer_store_dwordx4 v[4:7], v2, s[%d:%d], 0 offen offset:%d" % (SRD_F, SRD_F + 3, 1024 * t))
    a("v_add_u32 v2, 4096, v2")
    for t in range(4):
        a("buffer_store_dwordx4 v[4:7], v2, s[%d:%d], 0 offen offset:%d" % (SRD_F, SRD_F + 3, 1024 * t))
    a("s_nop 1")
    a.label("L_k1_noclr")
    dbgstamp(a, 0, False)
    a("s_cmp_lg_u32 s%d, 1" % S_WAVE)
    a("s_cbranch_scc1 L_k1_nocpf")
    code_prefetch(a, "k1_kernel", "L_code_end")
    a.label("L_k1_nocpf")
    PF = "nopf" not in EXP
    if PF and "k1nox" not in EXP:
        a("v_lshlrev_b32 v%d, 7, v1" % V_PF)
        prefetch_jobs(a, [(P_X, S * D * 2)])
    compute_addr_setup(a, c)
    zero_acc(a, V_ACC, 128)
    pf = None
    PF0 = 0
    for e in EXP:
        if e.startswith("pf0_"): PF0 = int(e[4:])
    if PF and "k1nolate" not in EXP:
        pf = pf_stream_setup(a, [(P_W2, D * D * 2, 0, 1), (P_W3, D * F * 2, 0, 3), (P_W3, D * F * 2, 1, 3), (P_W3, D * F * 2, 2, 3)], 16 - PF0)
    compute_start(a, c)
    a("s_cmp_eq_u32 s%d, 1" % S_TYPE)
    a("s_cbranch_scc1 L_k1_kvloop")
    if PF0:
        compute_loop(a, c, PF0, V_ACC, True, None)
    compute_loop(a, c, 16 - PF0, V_ACC, True, pf)
    stamp(a, 2)
    a("s_waitcnt lgkmcnt(0)")
    xfer_send(a)
    a("s_waitcnt lgkmcnt(0)")
    a("s_barrier")
    a.label("L_k1_epi")
    a("s_cmp_eq_u32 s%d, 0" % S_TYPE)
    a("s_cbranch_scc1 L_k1_epq")
    epi_ln_gelu(a, c, SRD_C, 2048, S_SHIFT)
    a("s_branch L_%s_cdone" % name)
    a.label("L_k1_epq")
    epi_phi_q(a, c, SRD_C, 2048)
    a("s_branch L_%s_cdone" % name)
    a.label("L_k1_kvloop")
    if PF0:
        compute_loop(a, c, PF0, V_ACC, False, None)
    compute_loop(a, c, 16 - PF0, V_ACC, False, pf)
    stamp(a, 2)
    a("s_waitcnt lgkmcnt(0)")
    a("s_barrier")
    a("s_nop 15")
    epi_kv(a, c)
    a("s_branch L_%s_cdone" % name)
    a.label("L_k1_loader")
    a("s_sub_u32 s%d, s%d, 4" % (S_LW, S_WAVE))
    loader_a_offsets(a, V_LA, 2048)
    loader_b_offsets_big(a, V_LB)
    a("s_cmp_eq_u32 s%d, 2" % S_TYPE)
    a("s_cselect_b32 s%d, 1, 0" % S_C0)
    loader_loop(a, c, [(16, SRD_A, SRD_B, V_LA, V_LB, "s_lshl_b32 s%d, s%d, 6" % (S_KBSTEP, S_LDB))], S_C0)
    a("s_cmp_eq_u32 s%d, 0" % S_C0)
    a("s_cbranch_scc1 L_k1_nofin")
    stats_finish(a, c)
    a("s_cmp_lg_u32 s%d, 0" % S_LW)
    a("s_cbranch_scc1 L_k1_nofin")
    a("s_cmp_gt_i32 s%d, 0" % S_SHIFT)
    a("s_cselect_b32 s%d, 0, 15" % S_T0)
    a("s_cmp_lg_u32 s%d, s%d" % (S_T0, S_RB))
    a("s_cbranch_scc1 L_k1_nofin")
    a("s_cmp_gt_i32 s%d, 0" % S_SHIFT)
    a("s_cselect_b32 s%d, 0, 2046" % S_T0)
    a("s_cselect_b32 s%d, s%d, 0" % (S_T1, S_SHIFT))
    a("v_lshrrev_b32 v3, 5, v1")
    a("v_add_u32 v3, s%d, v3" % S_T0)
    a("v_and_b32 v4, 31, v1")
    a("v_lshlrev_b32 v4, 4, v4")
    a("v_lshl_add_u32 v4, v3, 11, v4")
    a("s_lshl_b32 s%d, s%d, 1" % (S_T2, S_COL0))
    a("v_add_u32 v4, s%d, v4" % S_T2)
    a("s_add_u32 s%d, s%d, 2048" % (S_T2, S_SHIFT))
    a("s_cmp_gt_i32 s%d, 0" % S_SHIFT)
    a("s_cselect_b32 s%d, 0, s%d" % (S_T2, S_T2))
    a("s_cselect_b32 s%d, s%d, 2048" % (S_T1, S_SHIFT))
    a("v_cmp_le_u32 vcc, s%d, v3" % S_T2)
    a("v_cmp_gt_u32 s[%d:%d], s%d, v3" % (S_C0 + 2, S_C0 + 3, S_T1))
    a("v_mov_b32 v8, 0")
    a("v_mov_b32 v9, 0")
    a("v_mov_b32 v10, 0")
    a("v_mov_b32 v11, 0")
    a("s_and_b64 vcc, vcc, s[%d:%d]" % (S_C0 + 2, S_C0 + 3))
    a("s_and_saveexec_b64 s[%d:%d], vcc" % (S_EXEC, S_EXEC + 1))
    a("buffer_store_dwordx4 v[8:11], v4, s[%d:%d], 0 offen" % (SRD_C, SRD_C + 3))
    a("s_mov_b64 exec, s[%d:%d]" % (S_EXEC, S_EXEC + 1))
    a.label("L_k1_nofin")
    a("s_barrier")
    if NI_EPI == 2:
        a("s_cmp_eq_u32 s%d, 1" % S_TYPE)
        a("s_cbranch_scc1 L_%s_ldone" % name)
        xfer_recv(a)
        a("s_branch L_k1_epi")
    kernel_footer(a, name)
    descriptor(a, name)
    return name, 256, c.LDS_TOTAL


def small_tile_decode(a):
    a("s_and_b32 s%d, s%d, 3" % (S_T0, S_XCD))
    a("s_lshl_b32 s%d, s%d, 2" % (S_T0, S_T0))
    a("s_and_b32 s%d, s%d, 3" % (S_T1, S_J))
    a("s_add_u32 s%d, s%d, s%d" % (S_RB, S_T0, S_T1))
    a("s_lshr_b32 s%d, s%d, 2" % (S_T0, S_XCD))
    a("s_lshl_b32 s%d, s%d, 3" % (S_T0, S_T0))
    a("s_lshr_b32 s%d, s%d, 2" % (S_T1, S_J))
    a("s_add_u32 s%d, s%d, s%d" % (S_CT, S_T0, S_T1))
    a("s_lshl_b32 s%d, s%d, 7" % (S_ROW0, S_RB))
    a("s_lshl_b32 s%d, s%d, 6" % (S_COL0, S_CT))


def load_resid(a, c, dst, vaddr, srd, fl=""):
    for g in range(4):
        a("buffer_load_dwordx2 v[%d:%d], v%d, s[%d:%d], 0 offen offset:%d%s" % (dst + 2 * g, dst + 2 * g + 1, vaddr, srd, srd + 3, 16 * g, fl))


def unpack_bf16(a, dst, src, n):
    for p in range(n):
        a("v_lshlrev_b32 v%d, 16, v%d" % (dst + 2 * p, src + p))
        a("v_and_b32 v%d, 0xffff0000, v%d" % (dst + 2 * p + 1, src + p))


def round_regs_bf16(a, regs, n, tmp):
    for p in range(n // 2):
        a("v_cvt_pk_bf16_f32 v%d, v%d, v%d" % (tmp + p, regs + 2 * p, regs + 2 * p + 1))
    unpack_bf16(a, regs, tmp, n // 2)


def kv_reduce(a):
    lz, ldone, lcs = "L_k2_zred", "L_k2_reddone", "L_k2_cs"
    a("s_cmp_eq_u32 s%d, 1" % S_WAVE)
    a("s_cbranch_scc1 %s" % lz)
    a("s_cmp_lg_u32 s%d, 0" % S_WAVE)
    a("s_cbranch_scc1 %s" % lcs)
    make_srd(a, SRD_E, P_WS, WS_KVP, 2 * MB)
    make_srd(a, SRD_F, P_WS, WS_KVB, 65536)
    a("v_and_b32 v2, 31, v1")
    a("v_lshrrev_b32 v3, 5, v1")
    a("v_lshlrev_b32 v3, 20, v3")
    a("v_lshl_add_u32 v3, v2, 4, v3")
    a("s_lshl_b32 s%d, s2, 9" % S_T0)
    a("v_add_u32 v3, s%d, v3" % S_T0)
    for r in range(8):
        a("s_mov_b32 s%d, 0x%x" % (S_T1, r * 131072))
        a("buffer_load_dwordx4 v[%d:%d], v3, s[%d:%d], s%d offen" % (16 + 4 * r, 19 + 4 * r, SRD_E, SRD_E + 3, S_T1))
    a("s_waitcnt vmcnt(0)")
    for r in range(1, 8):
        a("v_pk_add_f32 v[16:17], v[16:17], v[%d:%d]" % (16 + 4 * r, 17 + 4 * r))
        a("v_pk_add_f32 v[18:19], v[18:19], v[%d:%d]" % (18 + 4 * r, 19 + 4 * r))
    for r in range(4):
        a("v_mov_b32 v%d, v%d" % (20 + r, 16 + r))
    a("s_nop 1")
    for r in range(4):
        a("v_permlane32_swap_b32 v%d, v%d" % (16 + r, 20 + r))
    a("s_nop 1")
    a("v_pk_add_f32 v[16:17], v[16:17], v[20:21]")
    a("v_pk_add_f32 v[18:19], v[18:19], v[22:23]")
    a("v_cvt_pk_bf16_f32 v16, v16, v17")
    a("v_cvt_pk_bf16_f32 v17, v18, v19")
    a("s_lshl_b32 s%d, s2, 8" % S_T0)
    a("v_lshlrev_b32 v2, 3, v2")
    a("v_add_u32 v2, s%d, v2" % S_T0)
    a("s_mov_b32 exec_hi, 0")
    a("buffer_store_dwordx2 v[16:17], v2, s[%d:%d], 0 offen%s" % (SRD_F, SRD_F + 3, HO))
    a("s_mov_b64 exec, -1")
    a("s_branch %s" % ldone)
    a.label(lz)
    a("s_and_b32 s%d, s2, 7" % S_T0)
    a("s_cmp_lg_u32 s%d, 0" % S_T0)
    a("s_cbranch_scc1 %s" % ldone)
    make_srd(a, SRD_E, P_WS, WS_ZP, 65536)
    make_srd(a, SRD_F, P_WS, WS_ZB, 2048)
    a("v_and_b32 v2, 7, v1")
    a("v_lshrrev_b32 v3, 3, v1")
    a("v_lshlrev_b32 v3, 12, v3")
    a("v_lshl_add_u32 v3, v2, 4, v3")
    a("s_lshl_b32 s%d, s2, 4" % S_T0)
    a("v_add_u32 v3, s%d, v3" % S_T0)
    a("s_mov_b32 s%d, 0x8000" % S_T1)
    a("buffer_load_dwordx4 v[16:19], v3, s[%d:%d], 0 offen" % (SRD_E, SRD_E + 3))
    a("buffer_load_dwordx4 v[20:23], v3, s[%d:%d], s%d offen" % (SRD_E, SRD_E + 3, S_T1))
    a("s_waitcnt vmcnt(0)")
    a("v_pk_add_f32 v[16:17], v[16:17], v[20:21]")
    a("v_pk_add_f32 v[18:19], v[18:19], v[22:23]")
    for pat in (0x201F, 0x401F):
        for r in range(4):
            a("ds_swizzle_b32 v%d, v%d offset:0x%x" % (20 + r, 16 + r, pat))
        a("s_waitcnt lgkmcnt(0)")
        a("v_pk_add_f32 v[16:17], v[16:17], v[20:21]")
        a("v_pk_add_f32 v[18:19], v[18:19], v[22:23]")
    for r in range(4):
        a("v_mov_b32 v%d, v%d" % (20 + r, 16 + r))
    a("s_nop 1")
    for r in range(4):
        a("v_permlane32_swap_b32 v%d, v%d" % (16 + r, 20 + r))
    a("s_nop 1")
    a("v_pk_add_f32 v[16:17], v[16:17], v[20:21]")
    a("v_pk_add_f32 v[18:19], v[18:19], v[22:23]")
    a("v_cvt_pk_bf16_f32 v16, v16, v17")
    a("v_cvt_pk_bf16_f32 v17, v18, v19")
    a("s_lshl_b32 s%d, s2, 3" % S_T0)
    a("v_lshlrev_b32 v2, 3, v2")
    a("v_add_u32 v2, s%d, v2" % S_T0)
    a("s_mov_b64 exec, 0xff")
    a("buffer_store_dwordx2 v[16:17], v2, s[%d:%d], 0 offen%s" % (SRD_F, SRD_F + 3, HO))
    a("s_mov_b64 exec, -1")
    a("s_branch %s" % ldone)
    a.label(lcs)
    a("s_cmp_ge_u32 s2, 224")
    a("s_cbranch_scc1 %s" % ldone)
    make_srd(a, SRD_E, P_W3, 0, D * F * 2)
    make_srd(a, SRD_F, P_WS, WS_CSP, 8 * F * 4)
    a("s_lshl_b32 s%d, s2, 1" % S_T0)
    a("s_add_u32 s%d, s%d, s%d" % (S_T0, S_T0, S_WAVE))
    a("s_sub_u32 s%d, s%d, 2" % (S_T0, S_T0))
    a("s_mul_i32 s%d, s%d, 1171" % (S_T1, S_T0))
    a("s_lshr_b32 s%d, s%d, 16" % (S_T1, S_T1))
    a("s_mul_i32 s%d, s%d, 56" % (S_T2, S_T1))
    a("s_sub_u32 s%d, s%d, s%d" % (S_T2, S_T0, S_T2))
    a("v_lshrrev_b32 v3, 3, v1")
    a("s_lshl_b32 s%d, s%d, 7" % (S_T0, S_T1))
    a("v_add_u32 v3, s%d, v3" % S_T0)
    a("s_mov_b32 s%d, %d" % (S_T0, F * 2))
    a("v_mul_lo_u32 v3, v3, s%d" % S_T0)
    a("v_and_b32 v2, 7, v1")
    a("v_lshl_add_u32 v3, v2, 4, v3")
    a("s_lshl_b32 s%d, s%d, 7" % (S_T0, S_T2))
    a("v_add_u32 v3, s%d, v3" % S_T0)
    for t in range(16):
        a("s_mov_b32 s%d, %d" % (S_T0, t * 8 * F * 2))
        a("buffer_load_dwordx4 v[%d:%d], v3, s[%d:%d], s%d offen" % (32 + 4 * t, 35 + 4 * t, SRD_E, SRD_E + 3, S_T0))
    for r in range(8):
        a("v_mov_b32 v%d, 0" % (16 + r))
    for t in range(16):
        a("s_waitcnt vmcnt(%d)" % (15 - t))
        unpack_bf16(a, 24, 32 + 4 * t, 4)
        for q in range(4):
            a("v_pk_add_f32 v[%d:%d], v[%d:%d], v[%d:%d]" % (16 + 2 * q, 17 + 2 * q, 16 + 2 * q, 17 + 2 * q, 24 + 2 * q, 25 + 2 * q))
    for pat in (0x201F, 0x401F):
        for r in range(8):
            a("ds_swizzle_b32 v%d, v%d offset:0x%x" % (24 + r, 16 + r, pat))
        a("s_waitcnt lgkmcnt(0)")
        for q in range(4):
            a("v_pk_add_f32 v[%d:%d], v[%d:%d], v[%d:%d]" % (16 + 2 * q, 17 + 2 * q, 16 + 2 * q, 17 + 2 * q, 24 + 2 * q, 25 + 2 * q))
    for r in range(8):
        a("v_mov_b32 v%d, v%d" % (24 + r, 16 + r))
    a("s_nop 1")
    for r in range(8):
        a("v_permlane32_swap_b32 v%d, v%d" % (16 + r, 24 + r))
    a("s_nop 1")
    for q in range(4):
        a("v_pk_add_f32 v[%d:%d], v[%d:%d], v[%d:%d]" % (16 + 2 * q, 17 + 2 * q, 16 + 2 * q, 17 + 2 * q, 24 + 2 * q, 25 + 2 * q))
    a("s_mul_i32 s%d, s%d, %d" % (S_T0, S_T1, F * 4))
    a("s_lshl_b32 s%d, s%d, 8" % (S_T2, S_T2))
    a("s_add_u32 s%d, s%d, s%d" % (S_T0, S_T0, S_T2))
    a("v_lshlrev_b32 v2, 5, v2")
    a("v_add_u32 v2, s%d, v2" % S_T0)
    a("s_mov_b64 exec, 0xff")
    a("buffer_store_dwordx4 v[16:19], v2, s[%d:%d], 0 offen%s" % (SRD_F, SRD_F + 3, HO))
    a("buffer_store_dwordx4 v[20:23], v2, s[%d:%d], 0 offen offset:16%s" % (SRD_F, SRD_F + 3, HO))
    a("s_mov_b64 exec, -1")
    a("s_nop 1")
    a.label(ldone)


def gen_k2(a):
    name = "k2_kernel"
    c = Cfg(64, 6)
    kernel_header(a, name, 256)
    small_tile_decode(a)
    a("s_waitcnt lgkmcnt(0)")
    make_srd(a, SRD_A, P_WS, WS_HS, S * D * 2)
    make_srd(a, SRD_B, P_W2, 0, D * D * 2)
    make_srd(a, SRD_C, P_WS, WS_X1, S * D * 2)
    make_srd(a, SRD_D, P_X, 0, S * D * 2)
    a("s_cmp_ge_u32 s%d, 4" % S_WAVE)
    a("s_cbranch_scc1 L_k2_loader")
    kv_reduce(a)
    VST, VLD, VX = 200, 204, 208
    epi_store_addr(a, c, 2048, VST, 2)
    a("v_lshrrev_b32 v3, 5, v1")
    a("v_lshlrev_b32 v3, 3, v3")
    for i in range(2):
        a("v_sub_u32 v%d, v%d, v3" % (VLD + i, VST + i))
    for i in range(2):
        load_resid(a, c, VX + 8 * i, VLD + i, SRD_D)
    compute_addr_setup(a, c)
    zero_acc(a, V_ACC, 32)
    pf = None
    if "nopf" not in EXP:
        pf = pf_stream_setup(a, [(P_WO, D * D * 2, w, 4) for w in range(4)], 16)
    compute_start(a, c)
    compute_loop(a, c, 16, V_ACC, True, pf)
    stamp(a, 2)
    a("s_waitcnt vmcnt(0) lgkmcnt(0)")
    a("s_nop 15")
    for i in range(2):
        acc = V_ACC + 16 * i
        round_regs_bf16(a, acc, 16, 16)
        unpack_bf16(a, 32, VX + 8 * i, 8)
        for p in range(8):
            a("v_pk_add_f32 v[%d:%d], v[%d:%d], v[%d:%d]" % (acc + 2 * p, acc + 2 * p + 1, acc + 2 * p, acc + 2 * p + 1, 32 + 2 * p, 33 + 2 * p))
        pack_swap_store(a, acc, 48 + 8 * i, VST + i, SRD_C, 0)
    make_srd(a, SRD_E, P_WS, WS_XS, S * 256)
    a("v_mov_b32 v64, 0x3f803f80")
    for i in range(2):
        for r in range(4):
            a("v_mov_b32 v%d, 0" % (68 + 4 * i + r))
    for p in range(8):
        for i in range(2):
            b = 68 + 4 * i + 2 * (p & 1)
            a("v_dot2_f32_bf16 v%d, v%d, v64, v%d" % (b, 48 + 8 * i + p, b))
            a("v_dot2_f32_bf16 v%d, v%d, v%d, v%d" % (b + 1, 48 + 8 * i + p, 48 + 8 * i + p, b + 1))
    a("s_lshl_b32 s%d, s%d, 1" % (S_T0, S_CT))
    a("s_and_b32 s%d, s%d, 1" % (S_T1, S_WAVE))
    a("s_add_u32 s%d, s%d, s%d" % (S_T0, S_T0, S_T1))
    a("s_lshl_b32 s%d, s%d, 3" % (S_T0, S_T0))
    a("s_nop 1")
    for i in range(2):
        b = 68 + 4 * i
        a("v_pk_add_f32 v[%d:%d], v[%d:%d], v[%d:%d]" % (b, b + 1, b, b + 1, b + 2, b + 3))
        a("v_mov_b32 v%d, v%d" % (b + 2, b))
        a("v_mov_b32 v%d, v%d" % (b + 3, b + 1))
        a("s_nop 1")
        a("v_permlane32_swap_b32 v%d, v%d" % (b, b + 2))
        a("v_permlane32_swap_b32 v%d, v%d" % (b + 1, b + 3))
        a("s_nop 1")
        a("v_pk_add_f32 v[%d:%d], v[%d:%d], v[%d:%d]" % (b, b + 1, b, b + 1, b + 2, b + 3))
        a("v_lshrrev_b32 v3, 11, v%d" % (VST + i))
        a("v_lshlrev_b32 v3, 8, v3")
        a("v_add_u32 v3, s%d, v3" % S_T0)
        a("buffer_store_dwordx2 v[%d:%d], v3, s[%d:%d], 0 offen" % (b, b + 1, SRD_E, SRD_E + 3))
    a("s_branch L_%s_cdone" % name)
    a.label("L_k2_loader")
    a("s_sub_u32 s%d, s%d, 4" % (S_LW, S_WAVE))
    loader_a_offsets(a, V_LA, 2048)
    loader_b_offsets_small(a, V_LB, 2048)
    loader_loop(a, c, [(16, SRD_A, SRD_B, V_LA, V_LB, 64 * 2048)], None)
    kernel_footer(a, name, 1)
    descriptor(a, name)
    return name, 256, c.LDS_TOTAL


def k3_stats_from_partials(a, c):
    k3_stats_issue(a, c, S_WAVE)
    k3_stats_fin(a, c, S_WAVE)


def k3_stats_issue(a, c, S_WAVE):
    make_srd(a, SRD_D, P_WS, WS_XS, 256 * 1024)
    make_srd(a, SRD_E, P_WS, WS_CSP, 8 * F * 4)
    a("v_and_b32 v2, 31, v1")
    a("s_lshl_b32 s%d, s%d, 8" % (S_T0, S_WAVE))
    a("s_lshl_b32 s%d, s%d, 14" % (S_T1, S_RB))
    a("s_add_u32 s%d, s%d, s%d" % (S_T0, S_T0, S_T1))
    a("v_lshlrev_b32 v2, 3, v2")
    a("v_add_u32 v2, s%d, v2" % S_T0)
    a("v_lshrrev_b32 v3, 5, v1")
    a("v_lshl_add_u32 v2, v3, 13, v2")
    a("v_add_u32 v4, 4096, v2")
    for t in range(8):
        a("buffer_load_dwordx2 v[%d:%d], v%d, s[%d:%d], 0 offen offset:%d%s" % (64 + 2 * t, 65 + 2 * t, 2 if t < 4 else 4, SRD_D, SRD_D + 3, 1024 * (t & 3), HO))
    a("s_lshl_b32 s%d, s%d, 6" % (S_T0, S_WAVE))
    a("s_add_u32 s%d, s%d, s%d" % (S_T0, S_T0, S_COL0))
    a("v_add_u32 v3, s%d, v1" % S_T0)
    a("v_lshlrev_b32 v3, 2, v3")
    for t in range(8):
        a("s_mov_b32 s%d, %d" % (S_T1, t * F * 4))
        a("buffer_load_dword v%d, v3, s[%d:%d], s%d offen%s" % (96 + t, SRD_E, SRD_E + 3, S_T1, HO))


def k3_stats_fin(a, c, S_WAVE):
    a("s_waitcnt vmcnt(0)")
    for t in range(1, 8):
        a("v_pk_add_f32 v[64:65], v[64:65], v[%d:%d]" % (64 + 2 * t, 65 + 2 * t))
    for t in range(1, 8):
        a("v_add_f32 v96, v96, v%d" % (96 + t))
    a("v_mov_b32 v%d, v64" % V_SUM)
    a("v_mov_b32 v%d, v65" % V_SQ)
    a("v_mov_b32 v%d, v96" % V_CS0)
    for r in (V_SUM2, V_SQ2, V_CS1):
        a("v_mov_b32 v%d, 0" % r)
    stats_finish(a, c, S_WAVE)


def gen_k3(a):
    name = "k3_kernel"
    c = Cfg(256, 3)
    kernel_header(a, name, 256)
    a("s_cmp_ge_u32 s%d, 28" % S_J)
    a("s_cbranch_scc1 L_k3_owg")
    a("s_and_b32 s%d, s%d, 3" % (S_T0, S_XCD))
    a("s_lshl_b32 s%d, s%d, 2" % (S_T0, S_T0))
    a("s_and_b32 s%d, s%d, 3" % (S_T1, S_J))
    a("s_add_u32 s%d, s%d, s%d" % (S_RB, S_T0, S_T1))
    a("s_lshr_b32 s%d, s%d, 2" % (S_T0, S_XCD))
    a("s_mul_i32 s%d, s%d, 7" % (S_T0, S_T0))
    a("s_lshr_b32 s%d, s%d, 2" % (S_T1, S_J))
    a("s_add_u32 s%d, s%d, s%d" % (S_CT, S_T0, S_T1))
    a("s_lshl_b32 s%d, s%d, 7" % (S_ROW0, S_RB))
    a("s_lshl_b32 s%d, s%d, 8" % (S_COL0, S_CT))
    a("s_waitcnt lgkmcnt(0)")
    make_srd(a, SRD_A, P_WS, WS_X1, S * D * 2)
    make_srd(a, SRD_B, P_W3, 0, D * F * 2)
    make_srd(a, SRD_C, P_WS, WS_ACT, S * F * 2)
    a("s_mov_b32 s%d, %d" % (S_LDB, F * 2))
    a("s_mov_b32 s%d, 32" % S_SA)
    a("s_mov_b32 s%d, 64" % S_SB)
    a("s_cmp_ge_u32 s%d, 4" % S_WAVE)
    a("s_cbranch_scc1 L_k3_loader")
    k3_stats_from_partials(a, c)
    compute_addr_setup(a, c)
    zero_acc(a, V_ACC, 128)
    pf = None
    if "nopf" not in EXP:
        pf = pf_stream_setup(a, [(P_W4, D * F * 2, w, 4) for w in range(4)], 16)
    compute_start(a, c)
    compute_loop(a, c, 16, V_ACC, True, pf)
    stamp(a, 2)
    a("s_waitcnt lgkmcnt(0)")
    xfer_send(a)
    a("s_waitcnt lgkmcnt(0)")
    a("s_barrier")
    a.label("L_k3_epi")
    epi_ln_gelu(a, c, SRD_C, F * 2, None)
    a("s_branch L_%s_cdone" % name)
    a.label("L_k3_loader")
    a("s_sub_u32 s%d, s%d, 4" % (S_LW, S_WAVE))
    loader_a_offsets(a, V_LA, 2048)
    loader_b_offsets_big(a, V_LB)
    loader_loop(a, c, [(16, SRD_A, SRD_B, V_LA, V_LB, 64 * F * 2)], None)
    a("s_barrier")
    if NI_EPI == 2:
        xfer_recv(a)
        a("s_branch L_k3_epi")
    else:
        a("s_branch L_%s_ldone" % name)
    a.label("L_k3_owg")
    gen_owg(a)
    a("s_branch L_%s_cdone" % name)
    kernel_footer(a, name, 2)
    descriptor(a, name)
    return name, 256, c.LDS_TOTAL


def gen_owg(a):
    S_HEAD = S_CT
    a("s_sub_u32 s%d, s%d, 28" % (S_T0, S_J))
    a("s_lshl_b32 s%d, s%d, 2" % (S_T1, S_XCD))
    a("s_add_u32 s%d, s%d, s%d" % (S_HEAD, S_T0, S_T1))
    a("s_waitcnt lgkmcnt(0)")
    make_srd(a, SRD_A, P_WS, WS_KVB, 65536)
    make_srd(a, SRD_B, P_WS, WS_ZB, 2048)
    make_srd(a, SRD_C, P_WS, WS_PQ, S * D * 2)
    make_srd(a, SRD_D, P_WS, WS_O, S * D * 2)
    make_srd(a, SRD_E, P_X, 0, S * D * 2)
    make_srd(a, SRD_A2, P_WS, WS_G, 8192)
    a("v_and_b32 v2, 31, v1")
    a("v_lshrrev_b32 v3, 5, v1")
    a("v_lshlrev_b32 v3, 4, v3")
    a("v_lshl_add_u32 v4, v2, 6, v3")
    a("s_lshl_b32 s%d, s%d, 13" % (S_T0, S_WAVE))
    a("v_add_u32 v4, s%d, v4" % S_T0)
    a("s_lshl_b32 s%d, s%d, 8" % (S_T0, S_WAVE))
    a("v_add_u32 v5, s%d, v3" % S_T0)
    a("s_lshl_b32 s%d, s%d, 6" % (S_T1, S_HEAD))
    a("v_add_u32 v6, s%d, v2" % S_T1)
    a("v_lshlrev_b32 v6, 11, v6")
    a("v_add3_u32 v6, v6, v3, s%d" % S_T0)
    a("v_add_u32 v7, 0x10000, v6")
    KVB, ZB, PQ = 16, 48, 80
    for h in range(4):
        for m in range(2):
            a("buffer_load_dwordx4 v[%d:%d], v%d, s[%d:%d], 0 offen offset:%d%s" % (KVB + 8 * h + 4 * m, KVB + 8 * h + 4 * m + 3, 4 if h < 2 else 8, SRD_A, SRD_A + 3, 2048 * (h & 1) + 32 * m, HO))
        if h == 1:
            a("v_add_u32 v8, 4096, v4")
    for h in range(4):
        for m in range(2):
            a("buffer_load_dwordx4 v[%d:%d], v5, s[%d:%d], 0 offen offset:%d%s" % (ZB + 8 * h + 4 * m, ZB + 8 * h + 4 * m + 3, SRD_B, SRD_B + 3, 64 * h + 32 * m, HO))
    for rb in range(2):
        for h in range(4):
            for m in range(2):
                b = PQ + 32 * rb + 8 * h + 4 * m
                a("buffer_load_dwordx4 v[%d:%d], v%d, s[%d:%d], 0 offen offset:%d" % (b, b + 3, 6 + rb, SRD_C, SRD_C + 3, 64 * h + 32 * m))
    a("s_waitcnt vmcnt(0)")
    if "nopf" not in EXP:
        a("v_lshlrev_b32 v%d, 7, v1" % 14)
        prefetch_jobs(a, [(P_W4, D * F * 2)], 14, 15)
    NUM = 144
    t = 0
    OVST, OVW, OVR, OVAT, OVD = 9, 240, 10, 244, 16
    a("s_lshl_b32 s%d, s%d, 6" % (S_T2, S_HEAD))
    a("s_lshl_b32 s%d, s%d, 8" % (S_T3, S_WAVE))
    line_store_setup(a, 2048, OVST, OVW, OVR, S_T2, S_T3, 65536)
    for rb in range(2):
        for h in range(4):
            nb = NUM + 48 * (t & 1)
            db = nb + 16
            tp = nb + 32
            for m in range(2):
                cin_n = "0" if m == 0 else "v[%d:%d]" % (nb, nb + 15)
                cin_d = "0" if m == 0 else "v[%d:%d]" % (db, db + 15)
                b = PQ + 32 * rb + 8 * h + 4 * m
                a("v_mfma_f32_32x32x16_bf16 v[%d:%d], v[%d:%d], v[%d:%d], %s" % (nb, nb + 15, KVB + 8 * h + 4 * m, KVB + 8 * h + 4 * m + 3, b, b + 3, cin_n))
                a("v_mfma_f32_32x32x16_bf16 v[%d:%d], v[%d:%d], v[%d:%d], %s" % (db, db + 15, ZB + 8 * h + 4 * m, ZB + 8 * h + 4 * m + 3, b, b + 3, cin_d))
            a("s_nop 15")
            a("s_nop 3")
            bf16_round(a, db, db)
            a("v_add_f32 v%d, %s, v%d" % (db, f32(1e-6), db))
            bf16_round(a, db, db)
            a("v_rcp_f32 v%d, v%d" % (db, db))
            round_regs_bf16(a, nb, 16, tp)
            for p in range(8):
                a("v_pk_mul_f32 v[%d:%d], v[%d:%d], v[%d:%d] op_sel:[0,0] op_sel_hi:[1,0]" % (nb + 2 * p, nb + 2 * p + 1, nb + 2 * p, nb + 2 * p + 1, db, db + 1))
            off = 4096 * ((t >> 1) & 1)
            line_pack_write(a, nb, tp + 8, OVW, h & 1, off)
            if h & 1:
                vd = PQ + 32 * rb + 16 * (h >> 1)
                line_read(a, vd, OVR, off)
                a("s_waitcnt lgkmcnt(0)")
                line_store(a, vd, OVST, OVAT, SRD_D, 2048, rb, HO, 128 * (h >> 1))
            t += 1
    a("s_waitcnt vmcnt(0)")
    make_srd(a, SRD_F, P_GATE, 0, 2048)
    a("v_lshlrev_b32 v8, 4, v1")
    a("buffer_load_dwordx4 v[16:19], v8, s[%d:%d], 0 offen" % (SRD_F, SRD_F + 3))
    a("buffer_load_dwordx4 v[20:23], v8, s[%d:%d], 0 offen offset:1024" % (SRD_F, SRD_F + 3))
    a("s_lshl_b32 s%d, s%d, 6" % (S_T0, S_HEAD))
    a("s_lshl_b32 s%d, s%d, 3" % (S_T1, S_WAVE))
    a("s_add_u32 s%d, s%d, s%d" % (S_T2, S_T0, S_T1))
    a("s_lshl_b32 s%d, s%d, 11" % (S_T0, S_T2))
    for t in range(8):
        a("buffer_load_dwordx4 v[%d:%d], v8, s[%d:%d], s%d offen" % (64 + 8 * t, 67 + 8 * t, SRD_E, SRD_E + 3, S_T0))
        a("buffer_load_dwordx4 v[%d:%d], v8, s[%d:%d], s%d offen offset:1024" % (68 + 8 * t, 71 + 8 * t, SRD_E, SRD_E + 3, S_T0))
        a("s_add_u32 s%d, s%d, 2048" % (S_T0, S_T0))
    for t in range(8):
        a("v_mov_b32 v%d, 0" % (32 + t))
    a("s_waitcnt vmcnt(0)")
    for r in range(8):
        for t in range(8):
            a("v_dot2_f32_bf16 v%d, v%d, v%d, v%d" % (32 + t, 64 + 8 * t + r, 16 + r, 32 + t))
    a("s_nop 3")
    for pat in (0x041F, 0x081F, 0x101F, 0x201F, 0x401F):
        for t in range(8):
            a("ds_swizzle_b32 v%d, v%d offset:0x%x" % (40 + t, 32 + t, pat))
        a("s_waitcnt lgkmcnt(0)")
        for t in range(8):
            a("v_add_f32 v%d, v%d, v%d" % (32 + t, 32 + t, 40 + t))
    for t in range(8):
        a("v_mov_b32 v%d, v%d" % (40 + t, 32 + t))
    a("s_nop 1")
    for t in range(8):
        a("v_permlane32_swap_b32 v%d, v%d" % (32 + t, 40 + t))
    a("s_nop 1")
    for t in range(8):
        a("v_add_f32 v%d, v%d, v%d" % (32 + t, 32 + t, 40 + t))
    a("v_mov_b32 v48, v32")
    for t in range(1, 8):
        a("v_cmp_eq_u32 vcc, %d, v1" % t)
        a("s_nop 1")
        a("v_cndmask_b32 v48, v48, v%d, vcc" % (32 + t))
    bf16_round(a, 48, 48)
    a("v_mul_f32 v48, %s, v48" % f32(-LOG2E))
    a("v_exp_f32 v48, v48")
    a("s_nop 0")
    a("v_add_f32 v48, 1.0, v48")
    a("v_rcp_f32 v48, v48")
    a("s_nop 0")
    bf16_round(a, 48, 48)
    a("v_add_u32 v9, s%d, v1" % S_T2)
    a("v_lshlrev_b32 v9, 2, v9")
    a("v_cmp_gt_u32 vcc, 8, v1")
    a("s_and_saveexec_b64 s[%d:%d], vcc" % (S_EXEC, S_EXEC + 1))
    a("buffer_store_dword v48, v9, s[%d:%d], 0 offen%s" % (SRD_A2, SRD_A2 + 3, HO))
    a("s_mov_b64 exec, s[%d:%d]" % (S_EXEC, S_EXEC + 1))


def gen_k4(a):
    name = "k4_kernel"
    c = Cfg(64, 6)
    kernel_header(a, name, 256)
    small_tile_decode(a)
    a("s_waitcnt lgkmcnt(0)")
    make_srd(a, SRD_A, P_WS, WS_O, S * D * 2)
    make_srd(a, SRD_B, P_WO, 0, D * D * 2)
    make_srd(a, SRD_A2, P_WS, WS_ACT, S * F * 2)
    make_srd(a, SRD_B2, P_W4, 0, F * D * 2)
    make_srd(a, SRD_C, P_OUT, 0, S * D * 2)
    make_srd(a, SRD_D, P_WS, WS_X1, S * D * 2)
    make_srd(a, SRD_E, P_WS, WS_G, 8192)
    a("s_cmp_ge_u32 s%d, 4" % S_WAVE)
    a("s_cbranch_scc1 L_k4_loader")
    VST, VLD, VX, VG = 200, 204, 208, 224
    epi_store_addr(a, c, 2048, VST, 2)
    a("v_lshrrev_b32 v3, 5, v1")
    a("v_lshlrev_b32 v3, 3, v3")
    for i in range(2):
        a("v_sub_u32 v%d, v%d, v3" % (VLD + i, VST + i))
    for i in range(2):
        load_resid(a, c, VX + 8 * i, VLD + i, SRD_D)
    for i in range(2):
        a("v_lshrrev_b32 v3, 11, v%d" % (VST + i))
        a("v_lshlrev_b32 v3, 2, v3")
        a("buffer_load_dword v%d, v3, s[%d:%d], 0 offen" % (VG + 2 * i, SRD_E, SRD_E + 3))
    compute_addr_setup(a, c)
    zero_acc(a, V_ACC, 64)
    compute_start(a, c)
    compute_loop(a, c, 16, V_ACC, True)
    compute_loop(a, c, 56, V_ACC + 32, True)
    stamp(a, 2)
    a("s_waitcnt vmcnt(0) lgkmcnt(0)")
    a("s_nop 15")
    for i in range(2):
        aa = V_ACC + 16 * i
        bb = V_ACC + 32 + 16 * i
        g = VG + 2 * i
        a("v_sub_f32 v%d, 1.0, v%d" % (g + 1, g))
        bf16_round(a, g + 1, g + 1)
        round_regs_bf16(a, aa, 16, 16)
        round_regs_bf16(a, bb, 16, 24)
        unpack_bf16(a, 32, VX + 8 * i, 8)
        for p in range(8):
            a("v_pk_add_f32 v[%d:%d], v[%d:%d], v[%d:%d]" % (bb + 2 * p, bb + 2 * p + 1, bb + 2 * p, bb + 2 * p + 1, 32 + 2 * p, 33 + 2 * p))
        round_regs_bf16(a, bb, 16, 24)
        for p in range(8):
            a("v_pk_mul_f32 v[%d:%d], v[%d:%d], v[%d:%d] op_sel:[0,0] op_sel_hi:[1,0]" % (aa + 2 * p, aa + 2 * p + 1, aa + 2 * p, aa + 2 * p + 1, g, g + 1))
        for p in range(8):
            a("v_pk_mul_f32 v[%d:%d], v[%d:%d], v[%d:%d] op_sel:[0,1] op_sel_hi:[1,1]" % (bb + 2 * p, bb + 2 * p + 1, bb + 2 * p, bb + 2 * p + 1, g, g + 1))
        round_regs_bf16(a, aa, 16, 16)
        round_regs_bf16(a, bb, 16, 24)
        for p in range(8):
            a("v_pk_add_f32 v[%d:%d], v[%d:%d], v[%d:%d]" % (aa + 2 * p, aa + 2 * p + 1, aa + 2 * p, aa + 2 * p + 1, bb + 2 * p, bb + 2 * p + 1))
        pack_swap_store(a, aa, 48 + 8 * i, VST + i, SRD_C, 0)
    a("s_branch L_%s_cdone" % name)
    a.label("L_k4_loader")
    a("s_sub_u32 s%d, s%d, 4" % (S_LW, S_WAVE))
    loader_a_offsets(a, V_LA, 2048)
    loader_b_offsets_small(a, V_LB, 2048)
    loader_a_offsets(a, V_LA2, F * 2)
    loader_loop(a, c, [(16, SRD_A, SRD_B, V_LA, V_LB, 64 * 2048), (56, SRD_A2, SRD_B2, V_LA2, V_LB, 64 * 2048)], None)
    kernel_footer(a, name, 3)
    descriptor(a, name)
    return name, 256, c.LDS_TOTAL


SRD_FL = SRD_B2


def flag_srd(a):
    make_srd(a, SRD_FL, P_WS, WS_FLAG, 8192)


def flag_signal(a, base, idx_sgpr):
    flag_srd(a)
    if idx_sgpr is None:
        a("v_mov_b32 v2, %d" % base)
    else:
        a("s_lshl_b32 s%d, s%d, 7" % (S_T0, idx_sgpr))
        a("s_add_u32 s%d, s%d, %d" % (S_T0, S_T0, base))
        a("v_mov_b32 v2, s%d" % S_T0)
    a("v_mov_b32 v3, 1")
    a("s_mov_b64 exec, 1")
    a("buffer_atomic_add v3, v2, s[%d:%d], 0 offen sc1" % (SRD_FL, SRD_FL + 3))
    a("s_mov_b64 exec, -1")


def flag_poll(a, base, idx_sgpr, target):
    flag_srd(a)
    if idx_sgpr is None:
        a("v_mov_b32 v2, %d" % base)
    else:
        a("s_lshl_b32 s%d, s%d, 7" % (S_T0, idx_sgpr))
        a("s_add_u32 s%d, s%d, %d" % (S_T0, S_T0, base))
        a("v_mov_b32 v2, s%d" % S_T0)
    lp, ld = a.newlabel("poll"), a.newlabel("polld")
    a("s_mov_b32 s%d, 0x400000" % S_T1)
    a.label(lp)
    a("buffer_load_dword v3, v2, s[%d:%d], 0 offen sc1" % (SRD_FL, SRD_FL + 3))
    a("s_waitcnt vmcnt(0)")
    a("v_readfirstlane_b32 s%d, v3" % S_T0)
    a("s_sub_u32 s%d, s%d, 1" % (S_T1, S_T1))
    a("s_cmp_eq_u32 s%d, 0" % S_T1)
    a("s_cbranch_scc1 %s" % ld)
    a("s_cmp_ge_u32 s%d, %d" % (S_T0, target))
    a("s_cbranch_scc1 %s" % ld)
    a("s_sleep 1")
    a("s_branch %s" % lp)
    a.label(ld)


def wave0(a, fn):
    l = a.newlabel("w0")
    a("s_cmp_lg_u32 s%d, 0" % S_WAVE)
    a("s_cbranch_scc1 %s" % l)
    fn()
    a.label(l)


def p3_decode(a):
    a("s_lshr_b32 s%d, s%d, 2" % (S_T0, S_XCD))
    a("s_mul_i32 s%d, s%d, 7" % (S_T0, S_T0))
    a("s_lshr_b32 s%d, s%d, 2" % (S_T1, S_J))
    a("s_add_u32 s%d, s%d, s%d" % (S_CT, S_T0, S_T1))
    a("s_lshl_b32 s%d, s%d, 8" % (S_COL0, S_CT))
    make_srd(a, SRD_A, P_WS, WS_X1, S * D * 2)
    make_srd(a, SRD_B, P_W3, 0, D * F * 2)
    make_srd(a, SRD_C, P_WS, WS_ACT, S * F * 2)
    a("s_mov_b32 s%d, %d" % (S_LDB, F * 2))
    a("s_mov_b32 s%d, 32" % S_SA)
    a("s_mov_b32 s%d, 64" % S_SB)


def p4_decode(a):
    a("s_lshr_b32 s%d, s2, 3" % S_J)
    a("s_bfe_u32 s%d, s%d, 0x20002" % (S_T0, S_J))
    a("s_xor_b32 s%d, s%d, 16" % (S_T1, S_J))
    a("s_cmp_eq_u32 s%d, 3" % S_T0)
    a("s_cselect_b32 s%d, s%d, s%d" % (S_J, S_T1, S_J))
    small_tile_decode(a)
    make_srd(a, SRD_A, P_WS, WS_O, S * D * 2)
    make_srd(a, SRD_B, P_WO, 0, D * D * 2)
    make_srd(a, SRD_A2, P_WS, WS_ACT, S * F * 2)
    make_srd(a, SRD_C, P_OUT, 0, S * D * 2)
    make_srd(a, SRD_D, P_WS, WS_X1, S * D * 2)
    make_srd(a, SRD_E, P_WS, WS_G, 8192)


def small_epi_setup(a, VLD, VST, VW, VR):
    a("s_lshl_b32 s%d, s%d, 5" % (S_T2, S_WAVE))
    a("s_add_u32 s%d, s%d, s%d" % (S_T2, S_T2, S_ROW0))
    a("s_lshl_b32 s%d, s%d, 1" % (S_T3, S_COL0))
    line_store_setup(a, 2048, VST, VW, VR, S_T2, S_T3, 98304)
    a("v_and_b32 v2, 31, v1")
    a("v_add_u32 v2, s%d, v2" % S_T2)
    a("v_lshrrev_b32 v3, 5, v1")
    a("v_lshlrev_b32 v3, 3, v3")
    a("v_lshl_add_u32 v2, v2, 11, v3")
    a("v_add_u32 v%d, s%d, v2" % (VLD, S_T3))


def load_resid2(a, dst, vaddr, srd, fl=""):
    for j in range(2):
        for g in range(4):
            a("buffer_load_dwordx2 v[%d:%d], v%d, s[%d:%d], 0 offen offset:%d%s" % (dst + 8 * j + 2 * g, dst + 8 * j + 2 * g + 1, vaddr, srd, srd + 3, 64 * j + 16 * g, fl))


def dbgstamp(a, slot, back):
    if "dbg" not in EXP:
        return
    l = a.newlabel("dbg")
    a("s_cmp_lg_u32 s2, 5")
    a("s_cbranch_scc1 %s" % l)
    a("s_cmp_lg_u32 s%d, 0" % S_WAVE)
    a("s_cbranch_scc1 %s" % l)
    a("s_memrealtime s[%d:%d]" % (S_TS, S_TS + 1))
    a("s_add_u32 s%d, s%d, %d" % (S_TS + 4, P_DBG, 0 if back else 512))
    a("s_addc_u32 s%d, s%d, 0" % (S_TS + 5, P_DBG + 1))
    a("s_mov_b32 s%d, 256" % (S_TS + 6))
    a("s_mov_b32 s%d, 0x20000" % (S_TS + 7))
    a("s_waitcnt lgkmcnt(0)")
    a("v_mov_b32 v2, %d" % (slot * 4))
    a("v_mov_b32 v3, s%d" % S_TS)
    a("buffer_store_dword v3, v2, s[%d:%d], 0 offen" % (S_TS + 4, S_TS + 7))
    a("s_nop 1")
    a.label(l)


def mstamp(a, name):
    order = ["P2", "L2", "E2", "G3", "P3", "L3", "E3", "G4", "P4", "M4", "L4"]
    dbgstamp(a, 4 + order.index(name), True)
    sets = {"st0": ["E2", "G3", "E3", "G4"], "stA": ["P2", "L2", "E2", "G3"], "stB": ["G3", "P3", "L3", "E3"], "stC": ["G4", "P4", "M4", "L4"]}
    cur = "st0"
    for k in sets:
        if k in EXP:
            cur = k
    if name in sets[cur]:
        stamp(a, 1 + sets[cur].index(name))


def gen_k234(a):
    global INSTR
    name = "k234_kernel"
    cs2 = Cfg(64, 6)
    cb = Cfg(256, 3)
    cb.aflag = HO
    cs4 = Cfg(64, 6)
    cs4.aflag = HO
    kernel_header(a, name, 256)
    small_tile_decode(a)
    a("s_waitcnt lgkmcnt(0)")
    make_srd(a, SRD_A, P_WS, WS_HS, S * D * 2)
    make_srd(a, SRD_B, P_W2, 0, D * D * 2)
    make_srd(a, SRD_C, P_WS, WS_X1, S * D * 2)
    make_srd(a, SRD_D, P_X, 0, S * D * 2)
    a("s_cmp_ge_u32 s%d, 4" % S_WAVE)
    a("s_cbranch_scc1 L_m_loader2")
    c = cs2
    dbgstamp(a, 3, True)
    a("s_cmp_lg_u32 s%d, 1" % S_WAVE)
    a("s_cbranch_scc1 L_m_nocpf")
    code_prefetch(a, "k234_kernel", "L_code_end")
    a.label("L_m_nocpf")
    kv_reduce(a)
    a("s_waitcnt vmcnt(0)")
    VST, VLD, VW, VR, VX, VAT = 200, 201, 204, 202, 208, 228
    small_epi_setup(a, VLD, VST, VW, VR)
    load_resid2(a, VX, VLD, SRD_D)
    compute_addr_setup(a, c)
    zero_acc(a, V_ACC, 32)
    pf = pf_stream_setup(a, [(P_WO, D * D * 2, w, 4) for w in range(4)], 16)
    a("s_barrier")
    mstamp(a, "P2")
    for r in frag_reads(c, 0, 0):
        a(r)
    wave0(a, lambda: flag_signal(a, FL_RED, None))
    compute_loop(a, c, 16, V_ACC, True, pf)
    mstamp(a, "L2")
    a("s_waitcnt vmcnt(0) lgkmcnt(0)")
    a("s_nop 15")
    for j in range(2):
        acc = V_ACC + 16 * j
        round_regs_bf16(a, acc, 16, 16)
        unpack_bf16(a, 32, VX + 8 * j, 8)
        for p in range(8):
            a("v_pk_add_f32 v[%d:%d], v[%d:%d], v[%d:%d]" % (acc + 2 * p, acc + 2 * p + 1, acc + 2 * p, acc + 2 * p + 1, 32 + 2 * p, 33 + 2 * p))
        line_pack_write(a, acc, 48 + 8 * j, VW, j, 0)
    line_read(a, 80, VR, 0)
    make_srd(a, SRD_E, P_WS, WS_XS, 256 * 1024)
    a("v_mov_b32 v64, 0x3f803f80")
    for r in range(4):
        a("v_mov_b32 v%d, 0" % (68 + r))
    for p in range(16):
        b = 68 + 2 * (p & 1)
        a("v_dot2_f32_bf16 v%d, v%d, v64, v%d" % (b, 48 + p, b))
        a("v_dot2_f32_bf16 v%d, v%d, v%d, v%d" % (b + 1, 48 + p, 48 + p, b + 1))
    a("s_waitcnt lgkmcnt(0)")
    line_store(a, 80, VST, VAT, SRD_C, 2048, 0, HO)
    a("s_lshl_b32 s%d, s%d, 4" % (S_T0, S_RB))
    a("s_add_u32 s%d, s%d, s%d" % (S_T0, S_T0, S_CT))
    a("s_lshl_b32 s%d, s%d, 10" % (S_T0, S_T0))
    a("s_lshl_b32 s%d, s%d, 8" % (S_T1, S_WAVE))
    a("s_add_u32 s%d, s%d, s%d" % (S_T0, S_T0, S_T1))
    a("v_pk_add_f32 v[68:69], v[68:69], v[70:71]")
    a("v_mov_b32 v70, v68")
    a("v_mov_b32 v71, v69")
    a("s_nop 1")
    a("v_permlane32_swap_b32 v68, v70")
    a("v_permlane32_swap_b32 v69, v71")
    a("s_nop 1")
    a("v_pk_add_f32 v[68:69], v[68:69], v[70:71]")
    a("v_lshlrev_b32 v3, 3, v1")
    a("v_add_u32 v3, s%d, v3" % S_T0)
    a("s_mov_b32 exec_hi, 0")
    a("buffer_store_dwordx2 v[68:69], v3, s[%d:%d], 0 offen%s" % (SRD_E, SRD_E + 3, HO))
    a("s_mov_b64 exec, -1")
    a("s_waitcnt vmcnt(0)")
    mstamp(a, "E2")
    a("s_barrier")

    def sig2():
        l, l2, l3 = a.newlabel("slow"), a.newlabel("sigd"), a.newlabel("isowg")
        a("s_and_b32 s%d, s%d, 7" % (S_T2, S_CT))
        a("s_cmp_eq_u32 s%d, 3" % S_T2)
        a("s_cbranch_scc1 %s" % l)
        flag_signal(a, FL_X1, S_RB)
        a("s_branch %s" % l2)
        a.label(l)
        flag_signal(a, FL_X1S, S_RB)
        a.label(l2)
        a("s_cmp_ge_u32 s%d, 28" % S_J)
        a("s_cbranch_scc1 %s" % l3)
        flag_poll(a, FL_X1, S_RB, 14)
        a("s_branch %s_d" % l3)
        a.label(l3)
        flag_poll(a, FL_RED, None, 256)
        a.label(l3 + "_d")
    wave0(a, sig2)
    a("s_barrier")
    mstamp(a, "G3")
    a("s_cmp_ge_u32 s%d, 28" % S_J)
    a("s_cbranch_scc1 L_m_owg")
    c = cb
    p3_decode(a)
    compute_addr_setup(a, c)
    zero_acc(a, V_ACC, 128)
    pf = pf_stream_setup(a, [(P_W4, D * F * 2, w, 4) for w in range(4)], 16)
    a("s_barrier")
    mstamp(a, "P3")
    for r in frag_reads(c, 0, 0):
        a(r)
    compute_loop(a, c, 11, V_ACC, True, pf)

    def poll3():
        flag_poll(a, FL_X1S, S_RB, 2)
        flag_poll(a, FL_RED, None, 256)
    wave0(a, poll3)
    compute_loop(a, c, 5, V_ACC, True, pf)
    mstamp(a, "L3")
    a("s_waitcnt lgkmcnt(0)")
    a("s_mov_b32 s%d, 0" % S_STOFF)
    a("s_nop 15")
    epi_ln_gelu(a, c, SRD_C, F * 2, None)
    a("s_waitcnt vmcnt(0)")
    mstamp(a, "E3")
    a("s_barrier")
    wave0(a, lambda: flag_signal(a, FL_ACT, S_RB))
    a.label("L_m_c4")
    def poll4():
        flag_poll(a, FL_O, S_RB, 2)
        flag_poll(a, FL_X1, S_RB, 14)
        flag_poll(a, FL_X1S, S_RB, 2)
    wave0(a, poll4)
    a("s_barrier")
    mstamp(a, "G4")
    c = cs4
    p4_decode(a)
    VST, VLD, VW, VR, VX, VAT, VG = 200, 201, 204, 202, 208, 228, 224
    small_epi_setup(a, VLD, VST, VW, VR)
    load_resid2(a, VX, VLD, SRD_D, HO)
    a("v_lshrrev_b32 v3, 11, v%d" % VLD)
    a("v_lshlrev_b32 v3, 2, v3")
    a("buffer_load_dword v%d, v3, s[%d:%d], 0 offen%s" % (VG, SRD_E, SRD_E + 3, HO))
    compute_addr_setup(a, c)
    zero_acc(a, V_ACC, 64)
    a("s_barrier")
    mstamp(a, "P4")
    for r in frag_reads(c, 0, 0):
        a(r)
    compute_loop(a, c, 10, V_ACC, True)
    wave0(a, lambda: flag_poll(a, FL_ACT, S_RB, 14))
    compute_loop(a, c, 6, V_ACC, True)
    mstamp(a, "M4")
    compute_loop(a, c, 56, V_ACC + 32, True)
    mstamp(a, "L4")
    a("s_waitcnt vmcnt(0) lgkmcnt(0)")
    a("s_nop 15")
    g = VG
    a("v_sub_f32 v%d, 1.0, v%d" % (g + 1, g))
    bf16_round(a, g + 1, g + 1)
    for j in range(2):
        aa = V_ACC + 16 * j
        bb = V_ACC + 32 + 16 * j
        round_regs_bf16(a, aa, 16, 16)
        round_regs_bf16(a, bb, 16, 24)
        unpack_bf16(a, 32, VX + 8 * j, 8)
        for p in range(8):
            a("v_pk_add_f32 v[%d:%d], v[%d:%d], v[%d:%d]" % (bb + 2 * p, bb + 2 * p + 1, bb + 2 * p, bb + 2 * p + 1, 32 + 2 * p, 33 + 2 * p))
        round_regs_bf16(a, bb, 16, 24)
        for p in range(8):
            a("v_pk_mul_f32 v[%d:%d], v[%d:%d], v[%d:%d] op_sel:[0,0] op_sel_hi:[1,0]" % (aa + 2 * p, aa + 2 * p + 1, aa + 2 * p, aa + 2 * p + 1, g, g + 1))
        for p in range(8):
            a("v_pk_mul_f32 v[%d:%d], v[%d:%d], v[%d:%d] op_sel:[0,1] op_sel_hi:[1,1]" % (bb + 2 * p, bb + 2 * p + 1, bb + 2 * p, bb + 2 * p + 1, g, g + 1))
        round_regs_bf16(a, aa, 16, 16)
        round_regs_bf16(a, bb, 16, 24)
        for p in range(8):
            a("v_pk_add_f32 v[%d:%d], v[%d:%d], v[%d:%d]" % (aa + 2 * p, aa + 2 * p + 1, aa + 2 * p, aa + 2 * p + 1, bb + 2 * p, bb + 2 * p + 1))
        line_pack_write(a, aa, 48 + 8 * j, VW, j, 0)
    line_read(a, 80, VR, 0)
    a("s_waitcnt lgkmcnt(0)")
    line_store(a, 80, VST, VAT, SRD_C, 2048, 0, "")
    if "dbg" in EXP:
        a("s_waitcnt vmcnt(0)")
    dbgstamp(a, 15, True)
    if INSTR:
        a("s_waitcnt vmcnt(0)")
        stamp_flush(a, 1, 5)
    a("s_branch L_%s_end" % name)
    a.label("L_m_owg")
    gen_owg(a)
    a("s_waitcnt vmcnt(0)")
    mstamp(a, "E3")
    a("s_barrier")
    a("s_cmp_ge_u32 s%d, 4" % S_WAVE)
    a("s_cbranch_scc1 L_m_loader4o")

    def sigo():
        a("s_lshr_b32 s%d, s%d, 1" % (S_T2, S_CT))
        flag_signal(a, FL_O, S_T2)
    wave0(a, sigo)
    a("s_branch L_m_c4")
    a.label("L_m_loader2")
    keep = INSTR
    INSTR = False
    a("s_sub_u32 s%d, s%d, 4" % (S_LW, S_WAVE))
    loader_a_offsets(a, V_LA, 2048)
    loader_b_offsets_small(a, V_LB, 2048)
    loader_loop(a, cs2, [(16, SRD_A, SRD_B, V_LA, V_LB, 64 * 2048)], None)
    a("s_cmp_lt_u32 s%d, 28" % S_J)
    a("s_cbranch_scc1 L_m_loader3")
    a("s_barrier")
    a("s_barrier")
    a("s_branch L_m_owg")
    a.label("L_m_loader3")
    p3_decode(a)
    loader_b_offsets_big(a, V_LB)

    def gate3():
        a("s_barrier")
        a("s_barrier")
    kb3 = 64 * F * 2
    loader_loop(a, cb, [(n, SRD_A, SRD_B, V_LA, V_LB, kb3, c0) for n, c0 in ((3, 0), (7, 4), (4, 12), (1, 3), (1, 11))], None, gate3,
                (lambda: k3_stats_issue(a, cb, S_LW), 16, lambda: k3_stats_fin(a, cb, S_LW)))
    p4_decode(a)
    make_srd(a, SRD_B2, P_W4, 0, F * D * 2)
    loader_b_offsets_small(a, V_LB, 2048)
    loader_a_offsets(a, V_LA2, F * 2)
    a("s_mov_b32 s%d, 1" % S_C0)
    a("s_branch L_m_loader4")
    a.label("L_m_loader4o")
    p4_decode(a)
    make_srd(a, SRD_B2, P_W4, 0, F * D * 2)
    loader_a_offsets(a, V_LA, 2048)
    loader_b_offsets_small(a, V_LB, 2048)
    loader_a_offsets(a, V_LA2, F * 2)
    a("s_mov_b32 s%d, 0" % S_C0)
    a.label("L_m_loader4")

    def gate4():
        l = a.newlabel("noe3")
        a("s_cmp_eq_u32 s%d, 0" % S_C0)
        a("s_cbranch_scc1 %s" % l)
        a("s_barrier")
        a.label(l)
        a("s_barrier")
    loader_loop(a, cs4, [(16, SRD_A, SRD_B, V_LA, V_LB, 64 * 2048), (56, SRD_A2, SRD_B2, V_LA2, V_LB, 64 * 2048)], None, gate4)
    INSTR = keep
    a.label("L_%s_end" % name)
    a("s_endpgm")
    a.label("L_code_end")
    descriptor(a, name)
    return name, 256, cb.LDS_TOTAL


def main():
    global INSTR
    if "--instr" in sys.argv:
        INSTR = True
        sys.argv.remove("--instr")
    for x in list(sys.argv):
        if x.startswith("--exp="):
            EXP.update(x[6:].split(","))
            sys.argv.remove(x)
    body = Asm()
    launches = []
    for g in (gen_k1, gen_k234):
        launches.append(g(body))
    hdr = []
    for name, nwg, lds in launches:
        hdr.append("; @launch kernel=%s grid=(%d,1,1) block=(512,1,1) lds=%d" % (name, nwg, lds))
    hdr.append('.amdgcn_target "amdgcn-amd-amdhsa--gfx950"')
    hdr.append(".text")
    out = "\n".join(hdr + body.lines) + "\n"
    path = sys.argv[1] if len(sys.argv) > 1 else "gated_mix__linear_attn_block__mixer_s_mlp__prompt.s"
    open(path, "w").write(out)
    print("wrote", path, len(out), "bytes")


if __name__ == "__main__":
    main()
```

```python
import struct, sys

MB = 1 << 20
WS_PQ = 0 * MB
WS_HS = 4 * MB
WS_X1 = 8 * MB
WS_O = 12 * MB
WS_ACT = 16 * MB
WS_KVP = 32 * MB
WS_ZP = 34 * MB
WS_G = 35 * MB
WS_XS = 37 * MB
WS_FLAG = 39 * MB
FL_X1, FL_ACT, FL_O, FL_RED, FL_X1S = 0, 2048, 4096, 6144, 64
FL_H, FL_Q, FL_KV = 2048 + 64, 4096 + 64, 6144 + 128
MAIN = "gated_mix__linear_attn_block__mixer_s_mlp__prompt_kernel"
MERGED = True
HO = " sc1"
WS_CSP = 38 * MB
WS_KVB = 36 * MB
WS_ZB = 36 * MB + 65536

S, D, F = 2048, 1024, 3584


def f32(x):
    return "0x%08x" % struct.unpack("<I", struct.pack("<f", x))[0]


LOG2E = 1.4426950408889634
GC0 = -2.0 * 0.7978845608028654 * LOG2E
GC1 = GC0 * 0.044715


class Asm:
    def __init__(self):
        self.lines = []
        self.uid = 0

    def __call__(self, s):
        for ln in s.strip("\n").split("\n"):
            self.lines.append("    " + ln.strip())

    def label(self, l):
        self.lines.append(l + ":")

    def newlabel(self, base):
        self.uid += 1
        return "L_%s_%d" % (base, self.uid)

    def raw(self, s):
        self.lines.append(s)


def vr(a, n=1):
    return "v%d" % a if n == 1 else "v[%d:%d]" % (a, a + n - 1)


def sr(a, n=1):
    return "s%d" % a if n == 1 else "s[%d:%d]" % (a, a + n - 1)


P_X, P_WQKV, P_WO, P_W1, P_W2, P_W3, P_W4, P_GATE, P_OUT, P_DBG, P_WS = 4, 6, 8, 12, 14, 16, 18, 20, 22, 24, 26
SRD_A, SRD_B, SRD_C, SRD_D, SRD_A2, SRD_B2, SRD_E, SRD_F = 28, 32, 36, 40, 44, 48, 52, 56
S_WAVE, S_ROW0, S_COL0, S_TYPE, S_LDB, S_SA, S_SB, S_CNT = 60, 61, 62, 63, 64, 65, 66, 67
S_KA, S_KB, S_BUF, S_T0, S_T1, S_T2, S_T3, S_LW = 68, 69, 70, 71, 72, 73, 74, 75
S_SHIFT, S_RB, S_CT, S_XCD, S_J, S_KBSTEP = 76, 77, 78, 79, 80, 81
S_EXEC = 82
S_C0 = 84


def make_srd(a, srd, ptr, off, nbytes):
    if off:
        a("s_add_u32 s%d, s%d, 0x%x" % (srd, ptr, off))
        a("s_addc_u32 s%d, s%d, 0" % (srd + 1, ptr + 1))
    else:
        a("s_mov_b32 s%d, s%d" % (srd, ptr))
        a("s_mov_b32 s%d, s%d" % (srd + 1, ptr + 1))
    a("s_mov_b32 s%d, 0x%x" % (srd + 2, nbytes))
    a("s_mov_b32 s%d, 0x20000" % (srd + 3))


def kernel_header(a, name, nwg):
    a.raw(".globl %s" % name)
    a.raw(".p2align 8")
    a.raw(".type %s,@function" % name)
    a.label(name)
    a("s_cmp_ge_u32 s2, %d" % nwg)
    a("s_cbranch_scc1 L_%s_end" % name)
    if INSTR:
        a("s_memrealtime s[%d:%d]" % (S_TS + 12, S_TS + 13))
    stamp(a, 0)
    a("s_load_dwordx16 s[4:19], s[0:1], 0")
    a("s_load_dwordx8 s[20:27], s[0:1], 64")
    a("v_lshrrev_b32 v2, 6, v0")
    a("v_and_b32 v1, 63, v0")
    a("s_and_b32 s%d, s2, 7" % S_XCD)
    a("v_readfirstlane_b32 s%d, v2" % S_WAVE)
    a("s_lshr_b32 s%d, s2, 3" % S_J)
    if INSTR:
        a("s_nop 3")
        a("s_mov_b32 s3, s%d" % S_WAVE)


def kernel_footer(a, name, kidx=0):
    a.label("L_%s_ldone" % name)
    if INSTR:
        stamp(a, 4)
        stamp_flush(a, kidx, 5)
    a("s_branch L_%s_end" % name)
    a.label("L_%s_cdone" % name)
    if "dbg" in EXP:
        a("s_waitcnt vmcnt(0)")
    dbgstamp(a, 2, False)
    stamp(a, 3)
    if INSTR:
        a("s_waitcnt vmcnt(0)")
    stamp(a, 4)
    stamp_flush(a, kidx, 5)
    a.label("L_%s_end" % name)
    a("s_endpgm")


def descriptor(a, name, vgprs=256):
    a.raw(".section .rodata,\"a\"")
    a.raw(".p2align 6")
    a.raw(".amdhsa_kernel %s" % name)
    a.raw("  .amdhsa_next_free_vgpr %d" % vgprs)
    a.raw("  .amdhsa_next_free_sgpr 102")
    a.raw("  .amdhsa_accum_offset %d" % vgprs)
    a.raw("  .amdhsa_group_segment_fixed_size 0")
    a.raw("  .amdhsa_kernarg_size 96")
    a.raw("  .amdhsa_user_sgpr_count 2")
    a.raw("  .amdhsa_user_sgpr_kernarg_segment_ptr 1")
    a.raw("  .amdhsa_system_sgpr_workgroup_id_x 1")
    a.raw(".end_amdhsa_kernel")
    a.raw(".text")


INSTR = False
EXP = set()
WS_DBGT = 40 * MB
S_TS = 88


def stamp(a, n):
    if not INSTR:
        return
    a("s_memtime s[%d:%d]" % (S_TS + 2 * n, S_TS + 2 * n + 1))
    a("s_waitcnt lgkmcnt(0)")


def stamp_flush(a, kidx, nst):
    if not INSTR:
        return
    a("s_memrealtime s[%d:%d]" % (S_TS + 2 * nst, S_TS + 2 * nst + 1))
    a("s_waitcnt lgkmcnt(0)")
    make_srd(a, SRD_F, P_WS, WS_DBGT + kidx * 65536, 65536)
    a("s_lshl_b32 s%d, s2, 8" % S_T0)
    a("s_lshl_b32 s%d, s3, 5" % (S_T1,))
    a("s_add_u32 s%d, s%d, s%d" % (S_T0, S_T0, S_T1))
    a("v_mov_b32 v2, s%d" % S_T0)
    for n in range(nst + 2):
        a("v_mov_b32 v3, s%d" % (S_TS + 2 * n))
        a("buffer_store_dword v3, v2, s[%d:%d], 0 offen offset:%d" % (SRD_F, SRD_F + 3, 4 * n))
        a("s_nop 1")


class Cfg:
    def __init__(self, BN, NBUF):
        self.BN = BN
        self.NBUF = NBUF
        self.STAGE = 16384 + BN * 128
        self.big = BN == 256
        self.MI = 4 if self.big else 1
        self.NI = 2
        self.LA = 4
        self.LB = BN // 32
        self.LPS = self.LA + self.LB
        self.NSUB = 4 if self.big else 1
        self.KPS = 4 // self.NSUB
        self.INIT = 2
        self.aflag = ""
        self.RAMP = 1 if self.big else 2
        for e in EXP:
            if e.startswith("initb") and self.big: self.INIT = int(e[5:])
            if e.startswith("inits") and not self.big: self.INIT = int(e[5:])
            if e.startswith("rampb") and self.big: self.RAMP = int(e[5:])
            if e.startswith("ramps") and not self.big: self.RAMP = int(e[5:])
        self.LDS_STATS = self.NBUF * self.STAGE
        self.LDS_CS = self.LDS_STATS + 1024
        self.LDS_TOTAL = self.LDS_CS + 1024


V_LA = 16
V_LB = 20
V_LA2 = 28
V_LB2 = 32
V_SA = 40
V_SAB = 44
V_SB = 48
V_SBB = 49
V_SUM, V_SQ, V_CS0, V_CS1, V_ONES = 50, 51, 52, 53, 54
V_SUM2, V_SQ2 = 55, 56
V_SD = 64


def loader_a_offsets(a, vdst, lda):
    a("v_lshrrev_b32 v3, 3, v1")
    a("v_and_b32 v4, 7, v1")
    a("v_lshrrev_b32 v5, 4, v1")
    a("v_xor_b32 v4, v4, v5")
    a("s_lshl_b32 s%d, s%d, 5" % (S_T0, S_LW))
    a("s_add_u32 s%d, s%d, s%d" % (S_T0, S_T0, S_ROW0))
    a("v_add_u32 v3, s%d, v3" % S_T0)
    a("s_mov_b32 s%d, %d" % (S_T1, lda))
    a("v_mul_lo_u32 v3, v3, s%d" % S_T1)
    for j in range(4):
        if j & 1:
            a("v_xor_b32 v5, 4, v4")
        else:
            a("v_mov_b32 v5, v4")
        a("v_lshl_add_u32 v5, v5, 4, v3")
        a("v_add_u32 v%d, 0x%x, v5" % (vdst + j, 8 * j * lda - 1024 * j))


def loader_b_offsets_big(a, vdst):
    a("v_lshrrev_b32 v3, 5, v1")
    a("v_and_b32 v4, 31, v1")
    a("s_lshl_b32 s%d, s%d, 4" % (S_T0, S_LW))
    a("v_add_u32 v6, s%d, v3" % S_T0)
    a("v_mul_lo_u32 v6, v6, s%d" % S_LDB)
    for par in range(2):
        a("v_or_b32 v5, %d, v3" % (par << 1))
        a("v_lshlrev_b32 v5, 2, v5")
        a("v_xor_b32 v5, v5, v4")
        a("v_bfe_u32 v7, v5, 2, 1")
        a("v_mul_lo_u32 v7, v7, s%d" % S_SA)
        a("v_lshrrev_b32 v8, 3, v5")
        a("v_mul_lo_u32 v8, v8, s%d" % S_SB)
        a("v_and_b32 v9, 3, v5")
        a("v_lshlrev_b32 v9, 3, v9")
        a("v_add3_u32 v7, v7, v8, v9")
        a("v_add_u32 v7, s%d, v7" % S_COL0)
        a("v_lshl_add_u32 v%d, v7, 1, v6" % (10 + par))
    for j in range(8):
        a("s_mul_i32 s%d, s%d, %d" % (S_T0, S_LDB, 2 * j))
        a("s_sub_u32 s%d, s%d, %d" % (S_T0, S_T0, 1024 * (j & 3)))
        a("v_add_u32 v%d, s%d, v%d" % (vdst + j, S_T0, 10 + (j & 1)))


def loader_b_offsets_small(a, vdst, ldb):
    a("v_lshrrev_b32 v3, 3, v1")
    a("s_lshl_b32 s%d, s%d, 4" % (S_T0, S_LW))
    a("v_add_u32 v3, s%d, v3" % S_T0)
    a("s_mov_b32 s%d, %d" % (S_T1, ldb))
    a("v_mul_lo_u32 v3, v3, s%d" % S_T1)
    a("v_and_b32 v4, 7, v1")
    a("v_bfe_u32 v5, v1, 4, 1")
    a("v_lshlrev_b32 v5, 2, v5")
    a("v_xor_b32 v4, v4, v5")
    a("v_lshl_add_u32 v3, v4, 4, v3")
    a("s_lshl_b32 s%d, s%d, 1" % (S_T0, S_COL0))
    a("v_add_u32 v3, s%d, v3" % S_T0)
    for j in range(2):
        a("v_add_u32 v%d, 0x%x, v3" % (vdst + j, 8 * j * ldb - 1024 * j))


def loader_issue(a, c, srda, srdb, vla, vlb, part="AB"):
    if "nodma" in EXP:
        return
    if "A" in part:
        a("s_lshl_b32 s%d, s%d, 12" % (S_T0, S_LW))
        a("s_add_u32 m0, s%d, s%d" % (S_BUF, S_T0))
        a("s_nop 0")
        for j in range(4):
            a("buffer_load_dwordx4 v%d, s[%d:%d], s%d offen offset:%d%s lds" % (vla + j, srda, srda + 3, S_KA, 1024 * j, c.aflag))
    if "B" not in part:
        pass
    elif c.big:
        a("s_lshl_b32 s%d, s%d, 13" % (S_T0, S_LW))
        a("s_add_u32 s%d, s%d, s%d" % (S_T0, S_T0, S_BUF))
        a("s_add_u32 m0, s%d, 16384" % S_T0)
        a("s_nop 0")
        for j in range(4):
            a("buffer_load_dwordx4 v%d, s[%d:%d], s%d offen offset:%d lds" % (vlb + j, srdb, srdb + 3, S_KB, 1024 * j))
        a("s_add_u32 m0, s%d, %d" % (S_T0, 16384 + 4096))
        a("s_nop 0")
        for j in range(4, 8):
            a("buffer_load_dwordx4 v%d, s[%d:%d], s%d offen offset:%d lds" % (vlb + j, srdb, srdb + 3, S_KB, 1024 * (j & 3)))
    else:
        a("s_lshl_b32 s%d, s%d, 11" % (S_T0, S_LW))
        a("s_add_u32 s%d, s%d, s%d" % (S_T0, S_T0, S_BUF))
        a("s_add_u32 m0, s%d, 16384" % S_T0)
        a("s_nop 0")
        for j in range(2):
            a("buffer_load_dwordx4 v%d, s[%d:%d], s%d offen offset:%d lds" % (vlb + j, srdb, srdb + 3, S_KB, 1024 * j))
    if "A" in part:
        a("s_add_u32 s%d, s%d, 128" % (S_KA, S_KA))
    if "B" in part:
        a("s_add_u32 s%d, s%d, s%d" % (S_KB, S_KB, S_KBSTEP))
    a("s_add_u32 s%d, s%d, %d" % (S_BUF, S_BUF, c.STAGE))
    a("s_cmp_eq_u32 s%d, %d" % (S_BUF, c.STAGE * c.NBUF))
    a("s_cselect_b32 s%d, 0, s%d" % (S_BUF, S_BUF))


def stats_setup(a, c):
    a("v_and_b32 v3, 31, v1")
    a("s_lshl_b32 s%d, s%d, 5" % (S_T0, S_LW))
    a("v_add_u32 v3, s%d, v3" % S_T0)
    a("v_lshlrev_b32 v3, 7, v3")
    a("v_bfe_u32 v4, v1, 1, 3")
    a("v_lshrrev_b32 v5, 5, v1")
    a("v_lshlrev_b32 v5, 2, v5")
    a("v_xor_b32 v4, v4, v5")
    for t in range(4):
        a("v_xor_b32 v5, %d, v4" % t)
        a("v_lshl_add_u32 v%d, v5, 4, v3" % (V_SAB + t))
        a("v_mov_b32 v%d, v%d" % (V_SA + t, V_SAB + t))
    a("v_bfe_u32 v3, v1, 2, 2")
    a("v_and_b32 v4, 3, v1")
    a("v_lshrrev_b32 v5, 4, v1")
    a("v_lshlrev_b32 v5, 1, v5")
    a("v_lshrrev_b32 v6, 1, v4")
    a("v_add_u32 v5, v5, v6")
    a("s_lshl_b32 s%d, s%d, 3" % (S_T0, S_LW))
    a("v_add_u32 v5, s%d, v5" % S_T0)
    a("v_lshlrev_b32 v6, 2, v3")
    a("v_xor_b32 v5, v5, v6")
    a("v_lshlrev_b32 v5, 4, v5")
    a("v_lshl_add_u32 v5, v3, 9, v5")
    a("v_and_b32 v4, 1, v4")
    a("v_lshl_add_u32 v5, v4, 3, v5")
    a("v_add_u32 v%d, 16384, v5" % V_SBB)
    a("v_mov_b32 v%d, v%d" % (V_SB, V_SBB))
    for r in (V_SUM, V_SQ, V_CS0, V_CS1, V_SUM2, V_SQ2):
        a("v_mov_b32 v%d, 0" % r)
    a("v_mov_b32 v%d, 0x3f803f80" % V_ONES)
    a("s_mov_b32 s%d, 0" % S_T3)


def stats_step(a, c):
    for t in range(4):
        a("ds_read_b128 v[%d:%d], v%d" % (V_SD + 4 * t, V_SD + 4 * t + 3, V_SA + t))
    for m in range(16):
        a("ds_read_b64_tr_b16 v[%d:%d], v%d offset:%d" % (V_SD + 16 + 2 * m, V_SD + 17 + 2 * m, V_SB, 2048 * m))
    a("s_add_u32 s%d, s%d, %d" % (S_T3, S_T3, c.STAGE))
    a("s_cmp_eq_u32 s%d, %d" % (S_T3, c.STAGE * c.NBUF))
    a("s_cselect_b32 s%d, 0, s%d" % (S_T3, S_T3))
    a("s_waitcnt lgkmcnt(15)")
    for t in range(16):
        s, q = (V_SUM, V_SQ) if t & 1 else (V_SUM2, V_SQ2)
        a("v_dot2_f32_bf16 v%d, v%d, v%d, v%d" % (s, V_SD + t, V_ONES, s))
        a("v_dot2_f32_bf16 v%d, v%d, v%d, v%d" % (q, V_SD + t, V_SD + t, q))
    a("s_waitcnt lgkmcnt(0)")
    for t in range(4):
        a("v_add_u32 v%d, s%d, v%d" % (V_SA + t, S_T3, V_SAB + t))
    a("v_add_u32 v%d, s%d, v%d" % (V_SB, S_T3, V_SBB))
    for m in range(32):
        cs = V_CS0 if m & 1 else V_CS1
        a("v_dot2_f32_bf16 v%d, v%d, v%d, v%d" % (cs, V_SD + 16 + m, V_ONES, cs))


def bf16_round(a, dst, src):
    a("v_cvt_pk_bf16_f32 v%d, v%d, v%d" % (dst, src, src))
    a("v_lshlrev_b32 v%d, 16, v%d" % (dst, dst))


def stats_finish(a, c, S_LW=S_LW):
    a("s_nop 3")
    a("v_add_f32 v%d, v%d, v%d" % (V_SUM, V_SUM, V_SUM2))
    a("v_add_f32 v%d, v%d, v%d" % (V_SQ, V_SQ, V_SQ2))
    a("v_add_f32 v%d, v%d, v%d" % (V_CS0, V_CS0, V_CS1))
    a("v_mov_b32 v3, v%d" % V_SUM)
    a("v_mov_b32 v4, v%d" % V_SUM)
    a("v_mov_b32 v5, v%d" % V_SQ)
    a("v_mov_b32 v6, v%d" % V_SQ)
    a("s_nop 1")
    a("v_permlane32_swap_b32 v3, v4")
    a("v_permlane32_swap_b32 v5, v6")
    a("s_nop 1")
    a("v_add_f32 v3, v3, v4")
    a("v_add_f32 v5, v5, v6")
    a("v_mul_f32 v3, %s, v3" % f32(1.0 / 1024))
    a("v_mul_f32 v5, %s, v5" % f32(1.0 / 1024))
    a("v_fma_f32 v5, -v3, v3, v5")
    a("v_max_f32 v5, 0, v5")
    bf16_round(a, 3, 3)
    bf16_round(a, 5, 5)
    a("v_add_f32 v5, %s, v5" % f32(1e-5))
    bf16_round(a, 5, 5)
    a("v_sqrt_f32 v5, v5")
    a("s_nop 0")
    bf16_round(a, 5, 5)
    a("v_rcp_f32 v6, v5")
    a("s_nop 0")
    a("v_mul_f32 v7, v3, v6")
    a("v_sub_f32 v7, 0, v7")
    a("v_and_b32 v3, 31, v1")
    a("s_lshl_b32 s%d, s%d, 5" % (S_T0, S_LW))
    a("v_add_u32 v3, s%d, v3" % S_T0)
    a("v_lshlrev_b32 v3, 3, v3")
    a("v_add_u32 v3, %d, v3" % c.LDS_STATS)
    a("ds_write_b64 v3, v[6:7]")
    a("s_lshl_b32 s%d, s%d, 6" % (S_T0, S_LW))
    a("v_add_u32 v3, s%d, v1" % S_T0)
    a("v_lshlrev_b32 v3, 2, v3")
    a("v_add_u32 v3, %d, v3" % c.LDS_CS)
    a("ds_write_b32 v3, v%d" % V_CS0)
    a("s_waitcnt lgkmcnt(0)")


def loader_loop(a, c, phases, stats, gate=None, tail=None):
    NIT = sum(p[0] for p in phases)
    NBUF, LPS = c.NBUF, c.LPS
    starts = []
    t = 0
    for p in phases:
        starts.append(t)
        t += p[0]

    def phase_of(s):
        k = 0
        for i, st in enumerate(starts):
            if s >= st:
                k = i
        return k

    def set_phase(k):
        c0 = phases[k][6] if len(phases[k]) > 6 else 0
        a("s_mov_b32 s%d, %d" % (S_KA, c0 * 128))
        a("s_mov_b32 s%d, %d" % (S_KB, c0 * phases[k][5] if c0 else 0))
        kb = phases[k][5]
        if isinstance(kb, int):
            a("s_mov_b32 s%d, %d" % (S_KBSTEP, kb))
        else:
            a(kb)

    def issue(s):
        k = phase_of(s)
        if s == starts[k]:
            set_phase(k)
        p = phases[k]
        loader_issue(a, c, p[1], p[2], p[3], p[4])

    def do_stats():
        if stats is None:
            return
        if stats == 'always':
            stats_step(a, c)
        else:
            l = a.newlabel("nostat")
            a("s_cmp_eq_u32 s%d, 0" % stats)
            a("s_cbranch_scc1 %s" % l)
            stats_step(a, c)
            a.label(l)

    a("s_mov_b32 s%d, 0" % S_BUF)
    init = c.INIT
    issued = 0
    if gate is None:
        for s in range(init):
            issue(s)
            issued += 1
    else:
        set_phase(0)
        p = phases[0]
        for s in range(init):
            loader_issue(a, c, p[1], p[2], p[3], p[4], "B")
        gate()
        a("s_mov_b32 s%d, 0" % S_BUF)
        for s in range(init):
            loader_issue(a, c, p[1], p[2], p[3], p[4], "A")
            issued += 1
    if stats is not None:
        stats_setup(a, c)
    a("s_waitcnt vmcnt(%d)" % ((issued - 1) * (LPS if gate is None else c.LA)))
    a("s_barrier")
    it = 0
    b = -1
    while True:
        n = 0
        while issued <= b + NBUF and issued < NIT and n < c.RAMP:
            issue(issued)
            issued += 1
            n += 1
        if issued == b + NBUF + 1 or issued == NIT:
            break
        do_stats()
        a("s_waitcnt vmcnt(%d)" % ((issued - (it + 2)) * LPS))
        a("s_barrier")
        b = it
        it += 1
    while it < NIT:
        s = it + NBUF
        if s < NIT:
            k = phase_of(s)
            end_s = starts[k] + phases[k][0]
            n = end_s - s
            if s == starts[k]:
                set_phase(k)
            p = phases[k]
            lbl = a.newlabel("ld")
            if n > 1:
                a("s_mov_b32 s%d, %d" % (S_CNT, n))
                a.label(lbl)
            do_stats()
            a("s_waitcnt vmcnt(%d)" % ((NBUF - 2) * LPS))
            a("s_barrier")
            loader_issue(a, c, p[1], p[2], p[3], p[4])
            if n > 1:
                a("s_sub_u32 s%d, s%d, 1" % (S_CNT, S_CNT))
                a("s_cmp_lg_u32 s%d, 0" % S_CNT)
                a("s_cbranch_scc1 %s" % lbl)
            it += n
        else:
            do_stats()
            if tail is not None and s == NIT:
                tail[0]()
            rem = max(0, min(NBUF - 2, NIT - 2 - it))
            if tail is not None and it == NIT - 1:
                tail[2]()
            else:
                a("s_waitcnt vmcnt(%d)" % (rem * LPS + (tail[1] if tail is not None else 0)))
            a("s_barrier")
            it += 1


V_AA = 4
V_AB = 8
V_BA = 12
V_BB = 14
V_F = 16
V_ACC = 128


def compute_addr_setup(a, c):
    a("v_and_b32 v2, 31, v1")
    if not c.big:
        a("s_lshl_b32 s%d, s%d, 5" % (S_T0, S_WAVE))
        a("v_add_u32 v2, s%d, v2" % S_T0)
    a("v_lshlrev_b32 v2, 7, v2")
    a("v_bfe_u32 v3, v1, 1, 3")
    a("v_lshrrev_b32 v16, 5, v1")
    a("v_xor_b32 v3, v3, v16")
    for kk in range(4):
        a("v_xor_b32 v17, %d, v3" % (2 * kk))
        a("v_lshl_add_u32 v%d, v17, 4, v2" % (V_AB + kk))
        a("v_mov_b32 v%d, v%d" % (V_AA + kk, V_AB + kk))
    a("v_bfe_u32 v2, v1, 2, 2")
    a("v_and_b32 v3, 3, v1")
    a("v_bfe_u32 v17, v1, 4, 1")
    a("v_lshlrev_b32 v17, 1, v17")
    a("v_lshrrev_b32 v18, 1, v3")
    a("v_add_u32 v17, v17, v18")
    a("v_lshl_add_u32 v18, v16, 3, v2")
    a("v_and_b32 v3, 1, v3")
    a("v_lshlrev_b32 v3, 3, v3")
    if c.big:
        a("s_lshl_b32 s%d, s%d, 3" % (S_T0, S_WAVE))
        a("v_add_u32 v17, s%d, v17" % S_T0)
        a("v_lshl_add_u32 v3, v18, 9, v3")
        a("v_lshlrev_b32 v2, 2, v2")
        for j in range(2):
            a("v_add_u32 v19, %d, v17" % (4 * j))
            a("v_xor_b32 v19, v19, v2")
            a("v_lshl_add_u32 v19, v19, 4, v3")
            a("v_add_u32 v%d, 16384, v19" % (V_BB + j))
            a("v_mov_b32 v%d, v%d" % (V_BA + j, V_BB + j))
    else:
        a("v_lshl_add_u32 v3, v18, 7, v3")
        a("v_lshrrev_b32 v2, 1, v2")
        a("v_lshlrev_b32 v2, 2, v2")
        for j in range(2):
            a("v_add_u32 v19, %d, v17" % (4 * j))
            a("v_xor_b32 v19, v19, v2")
            a("v_lshl_add_u32 v19, v19, 4, v3")
            a("v_add_u32 v%d, 16384, v19" % (V_BB + j))
            a("v_mov_b32 v%d, v%d" % (V_BA + j, V_BB + j))
    a("s_mov_b32 s%d, 0" % S_BUF)


def frag_regs(c, fset, kq):
    per_kk = (c.MI + c.NI) * 4
    base = V_F + fset * per_kk * c.KPS + kq * per_kk
    A = [base + 4 * i for i in range(c.MI)]
    B = [base + 4 * c.MI + 4 * j for j in range(c.NI)]
    return A, B


def frag_reads(c, fset, sub):
    out = []
    if "noread" in EXP:
        return out
    for kq in range(c.KPS):
        kk = sub * c.KPS + kq
        A, B = frag_regs(c, fset, kq)
        for j in range(c.NI):
            for q in range(2):
                off = kk * 8192 + q * 2048 if c.big else kk * 2048 + q * 512
                out.append("ds_read_b64_tr_b16 v[%d:%d], v%d offset:%d" % (B[j] + 2 * q, B[j] + 2 * q + 1, V_BA + j, off))
        for i in range(c.MI):
            out.append("ds_read_b128 v[%d:%d], v%d offset:%d" % (A[i], A[i] + 3, V_AA + kk, 4096 * i))
    return out


def mfma_list(c, fset, acc, swapped):
    out = []
    if "nomfma" in EXP:
        return ["s_nop 0"]
    for kq in range(c.KPS):
        A, B = frag_regs(c, fset, kq)
        for i in range(c.MI):
            for j in range(c.NI):
                d = acc + 16 * (i * c.NI + j)
                x, w = "v[%d:%d]" % (A[i], A[i] + 3), "v[%d:%d]" % (B[j], B[j] + 3)
                if swapped:
                    x, w = w, x
                if "mfma16" in EXP:
                    out.append("v_mfma_f32_16x16x32_bf16 v[%d:%d], %s, %s, v[%d:%d]" % (d, d + 3, x, w, d, d + 3))
                    out.append("v_mfma_f32_16x16x32_bf16 v[%d:%d], %s, %s, v[%d:%d]" % (d + 4, d + 7, w, x, d + 4, d + 7))
                else:
                    out.append("v_mfma_f32_32x32x16_bf16 v[%d:%d], %s, %s, v[%d:%d]" % (d, d + 15, x, w, d, d + 15))
    return out


def addr_update(c):
    out = []
    out.append("s_add_u32 s%d, s%d, %d" % (S_BUF, S_BUF, c.STAGE))
    out.append("s_cmp_eq_u32 s%d, %d" % (S_BUF, c.STAGE * c.NBUF))
    out.append("s_cselect_b32 s%d, 0, s%d" % (S_BUF, S_BUF))
    for kk in range(4):
        out.append("v_add_u32 v%d, s%d, v%d" % (V_AA + kk, S_BUF, V_AB + kk))
    for j in range(c.NI):
        out.append("v_add_u32 v%d, s%d, v%d" % (V_BA + j, S_BUF, V_BB + j))
    return out


def emit_interleaved(a, mfmas, others, per_gap, lead=0):
    oi = 0
    if "mfma16" in EXP:
        per_gap = 1
    for n, m in enumerate(mfmas):
        a(m)
        if n >= lead:
            for _ in range(per_gap):
                if oi < len(others):
                    a(others[oi])
                    oi += 1
    while oi < len(others):
        a(others[oi])
        oi += 1


def compute_iter(a, c, acc, swapped, fs0, pf=None):
    fs = fs0
    for sub in range(c.NSUB):
        last = sub == c.NSUB - 1
        m = mfma_list(c, fs, acc, swapped)
        a("s_waitcnt lgkmcnt(0)")
        if last:
            if c.NSUB == 1:
                upd = addr_update(c)
                for u in upd:
                    a(u)
                a("s_barrier")
                emit_interleaved(a, m, frag_reads(c, fs ^ 1, 0) + (pf_step(pf) if pf else []), 3)
            else:
                a(m[0])
                a("s_barrier")
                emit_interleaved(a, m[1:], frag_reads(c, fs ^ 1, 0), 3)
        else:
            others = frag_reads(c, fs ^ 1, sub + 1)
            if sub == c.NSUB - 2:
                others = others + addr_update(c)
            if sub == 0 and pf:
                others = others + pf_step(pf)
            emit_interleaved(a, m, others, 2)
        fs ^= 1
    return fs


def compute_loop(a, c, nit, acc, swapped, pf=None):
    unroll = 1 if c.NSUB % 2 == 0 else 2
    assert nit % unroll == 0
    lbl = a.newlabel("cl")
    a("s_mov_b32 s%d, %d" % (S_CNT, nit // unroll))
    a.label(lbl)
    fs = 0
    for u in range(unroll):
        fs = compute_iter(a, c, acc, swapped, fs, pf)
    assert fs == 0
    a("s_sub_u32 s%d, s%d, 1" % (S_CNT, S_CNT))
    a("s_cmp_lg_u32 s%d, 0" % S_CNT)
    a("s_cbranch_scc1 %s" % lbl)


V_PF, V_PFD = 126, 127


def prefetch_jobs(a, jobs, vpf=V_PF, vpfd=V_PFD):
    n = 0
    per_wave = [[] for _ in range(4)]
    for ptr, total in jobs:
        share = total // 256
        for off in range(0, share, 8192):
            per_wave[n % 4].append((ptr, total, share, off))
            n += 1
    done = a.newlabel("pfdone")
    for w in range(4):
        nxt = a.newlabel("pfw")
        a("s_cmp_lg_u32 s%d, %d" % (S_WAVE, w))
        a("s_cbranch_scc1 %s" % nxt)
        for ptr, total, share, off in per_wave[w]:
            make_srd(a, SRD_F, ptr, 0, total)
            a("s_mul_i32 s%d, s2, %d" % (S_T0, share))
            a("s_add_u32 s%d, s%d, %d" % (S_T0, S_T0, off))
            if share - off < 8192:
                a("s_add_u32 s%d, s%d, %d" % (SRD_F + 2, S_T0, share - off))
            a("buffer_load_dword v%d, v%d, s[%d:%d], s%d offen" % (vpfd, vpf, SRD_F, SRD_F + 3, S_T0))
        a("s_branch %s" % done)
        a.label(nxt)
    a.label(done)


S_PFO = 85


def pf_stream_setup(a, assign, nit):
    steps = []
    for ptr, total, part, nparts in assign:
        lines = total // 256 // 128
        per = -(-lines // nparts)
        steps.append(-(-per // nit))
    L = max(steps)
    done = a.newlabel("pfs")
    for w, (ptr, total, part, nparts) in enumerate(assign):
        nxt = a.newlabel("pfsw")
        a("s_cmp_lg_u32 s%d, %d" % (S_WAVE, w))
        a("s_cbranch_scc1 %s" % nxt)
        share = total // 256
        lines = share // 128
        per = -(-lines // nparts)
        beg = part * per * 128
        end = min(share, (part + 1) * per * 128)
        make_srd(a, SRD_F, ptr, 0, total)
        a("s_mul_i32 s%d, s2, %d" % (S_PFO, share))
        a("s_add_u32 s%d, s%d, %d" % (SRD_F + 2, S_PFO, end))
        a("s_add_u32 s%d, s%d, %d" % (S_PFO, S_PFO, beg))
        a("s_branch %s" % done)
        a.label(nxt)
    a.label(done)
    a("v_lshlrev_b32 v%d, 7, v1" % V_PF)
    a("v_mov_b32 v2, 0x40000000")
    a("v_cmp_gt_u32 vcc, %d, v1" % L)
    a("s_nop 1")
    a("v_cndmask_b32 v%d, v2, v%d, vcc" % (V_PF, V_PF))
    return L * 128


def pf_step(step):
    return ["buffer_load_dword v%d, v%d, s[%d:%d], s%d offen" % (V_PFD, V_PF, SRD_F, SRD_F + 3, S_PFO),
            "s_add_u32 s%d, s%d, %d" % (S_PFO, S_PFO, step)]


def code_prefetch(a, first, last):
    if "nocpf" in EXP:
        return
    here = a.newlabel("pc")
    a("s_getpc_b64 s[%d:%d]" % (SRD_F, SRD_F + 1))
    a.label(here)
    a("s_add_u32 s%d, s%d, %s-%s" % (SRD_F, SRD_F, first, here))
    a("s_addc_u32 s%d, s%d, -1" % (SRD_F + 1, SRD_F + 1) if False else "s_addc_u32 s%d, s%d, (%s-%s)>>32" % (SRD_F + 1, SRD_F + 1, first, here))
    a("s_mov_b32 s%d, %s-%s" % (SRD_F + 2, last, first))
    a("s_mov_b32 s%d, 0x20000" % (SRD_F + 3))
    a("v_lshlrev_b32 v2, 7, v1")
    a("s_lshl_b32 s%d, s%d, 13" % (S_T0, S_J))
    a("buffer_load_dword v%d, v2, s[%d:%d], s%d offen" % (V_PFD, SRD_F, SRD_F + 3, S_T0))


def zero_acc(a, acc, n):
    for r in range(acc, acc + n):
        a("v_mov_b32 v%d, 0" % r)


def compute_start(a, c):
    a("s_barrier")
    dbgstamp(a, 1, False)
    for r in frag_reads(c, 0, 0):
        a(r)


def pack_swap_store(a, src, tmp, vaddr, srd, imm, flags=""):
    if "st_sc1" in EXP: flags = " sc1"
    if "st_sc01" in EXP: flags = " sc0 sc1"
    if "st_nt" in EXP: flags = " nt"
    if "st_ntsc1" in EXP: flags = " sc1 nt"
    for p in range(8):
        a("v_cvt_pk_bf16_f32 v%d, v%d, v%d" % (tmp + p, src + 2 * p, src + 2 * p + 1))
    a("s_nop 1")
    for gp in range(2):
        b = tmp + 4 * gp
        a("v_permlane32_swap_b32 v%d, v%d" % (b, b + 2))
        a("v_permlane32_swap_b32 v%d, v%d" % (b + 1, b + 3))
    for gp in range(2):
        b = tmp + 4 * gp
        a("buffer_store_dwordx4 v[%d:%d], v%d, s[%d:%d], 0 offen offset:%d%s" % (b, b + 3, vaddr, srd, srd + 3, imm + 32 * gp, flags))


def line_store_setup(a, ld, vst, VW, VR, s_row, s_colb, ldsbase=65536):
    a("s_lshl_b32 s%d, s%d, 13" % (S_T0, S_WAVE))
    a("s_add_u32 s%d, s%d, %d" % (S_T0, S_T0, ldsbase))
    a("v_and_b32 v2, 31, v1")
    a("v_lshrrev_b32 v3, 5, v1")
    a("v_and_b32 v%d, 7, v2" % VR)
    a("v_xor_b32 v3, v3, v%d" % VR)
    a("v_lshlrev_b32 v2, 7, v2")
    a("v_add_u32 v2, s%d, v2" % S_T0)
    for q in range(4):
        a("v_xor_b32 v%d, %d, v3" % (VW + q, 2 * q))
        a("v_lshl_add_u32 v%d, v%d, 4, v2" % (VW + q, VW + q))
    a("v_lshrrev_b32 v2, 3, v1")
    a("v_and_b32 v3, 7, v1")
    a("v_xor_b32 v%d, v3, v2" % VR)
    a("v_lshlrev_b32 v%d, 4, v%d" % (VR, VR))
    a("v_lshl_add_u32 v%d, v2, 7, v%d" % (VR, VR))
    a("v_add_u32 v%d, s%d, v%d" % (VR, S_T0, VR))
    a("v_add_u32 v2, s%d, v2" % s_row)
    a("s_mov_b32 s%d, %d" % (S_T1, ld))
    a("v_mul_lo_u32 v2, v2, s%d" % S_T1)
    a("v_lshl_add_u32 v2, v3, 4, v2")
    a("v_add_u32 v%d, s%d, v2" % (vst, s_colb))


def line_pack_write(a, src, tmp, VW, j, ldsoff):
    for p in range(8):
        a("v_cvt_pk_bf16_f32 v%d, v%d, v%d" % (tmp + p, src + 2 * p, src + 2 * p + 1))
    a("s_nop 1")
    for gp in range(2):
        b = tmp + 4 * gp
        a("v_permlane32_swap_b32 v%d, v%d" % (b, b + 2))
        a("v_permlane32_swap_b32 v%d, v%d" % (b + 1, b + 3))
    for gp in range(2):
        b = tmp + 4 * gp
        a("ds_write_b128 v%d, v[%d:%d] offset:%d" % (VW + 2 * j + gp, b, b + 3, ldsoff))


def line_read(a, dst, VR, ldsoff):
    for t in range(4):
        a("ds_read_b128 v[%d:%d], v%d offset:%d" % (dst + 4 * t, dst + 4 * t + 3, VR, ldsoff + 1024 * t))


def line_store(a, src, vst, vtmp, srd, ld, i, flags=" sc1", extra=0):
    for t in range(4):
        a("v_add_u32 v%d, 0x%x, v%d" % (vtmp + t, (32 * i + 8 * t) * ld + extra, vst))
    for t in range(4):
        a("buffer_store_dwordx4 v[%d:%d], v%d, s[%d:%d], 0 offen%s" % (src + 4 * t, src + 4 * t + 3, vtmp + t, srd, srd + 3, flags))


def epi_lines(a, c, srd, ld, shift_sgpr, mathfn, VP, VD, VW, VR, VST, VAT):
    if shift_sgpr is not None:
        a("s_add_u32 s%d, s%d, s%d" % (S_T2, S_ROW0, shift_sgpr))
    else:
        a("s_mov_b32 s%d, s%d" % (S_T2, S_ROW0))
    a("s_lshl_b32 s%d, s%d, 6" % (S_T3, S_WAVE))
    a("s_add_u32 s%d, s%d, s%d" % (S_T3, S_T3, S_COL0))
    a("s_lshl_b32 s%d, s%d, 1" % (S_T3, S_T3))
    line_store_setup(a, ld, VST, VW, VR, S_T2, S_T3)
    for i in range(4):
        off = 4096 * (i & 1)
        for j in range(2):
            acc = V_ACC + 16 * (i * 2 + j)
            mathfn(i, j, acc)
            if j == 0 and i > 0:
                a("s_waitcnt lgkmcnt(0)")
                line_store(a, VD, VST, VAT, srd, ld, i - 1)
            line_pack_write(a, acc, VP + 8 * j, VW, j, off)
        line_read(a, VD, VR, off)
    a("s_waitcnt lgkmcnt(0)")
    line_store(a, VD, VST, VAT, srd, ld, 3)


def phi_inplace(a, regs, tmp, vconst):
    n = len(regs)
    for p in range(n):
        a("v_pk_mul_f32 v[%d:%d], v[%d:%d], v[%d:%d] op_sel:[0,0] op_sel_hi:[1,0]" % (tmp + 2 * p, tmp + 2 * p + 1, regs[p], regs[p] + 1, vconst, vconst + 1))
    for p in range(n):
        a("v_exp_f32 v%d, v%d clamp" % (tmp + 2 * p, tmp + 2 * p))
        a("v_exp_f32 v%d, v%d clamp" % (tmp + 2 * p + 1, tmp + 2 * p + 1))
    for p in range(n):
        a("v_max_f32 v%d, 0, v%d" % (regs[p], regs[p]))
        a("v_max_f32 v%d, 0, v%d" % (regs[p] + 1, regs[p] + 1))
    for p in range(n):
        a("v_pk_add_f32 v[%d:%d], v[%d:%d], v[%d:%d] op_sel:[0,1] op_sel_hi:[1,1]" % (tmp + 2 * p, tmp + 2 * p + 1, tmp + 2 * p, tmp + 2 * p + 1, vconst, vconst + 1))
    for p in range(n):
        a("v_pk_add_f32 v[%d:%d], v[%d:%d], v[%d:%d]" % (regs[p], regs[p] + 1, regs[p], regs[p] + 1, tmp + 2 * p, tmp + 2 * p + 1))


def ln_gelu_inplace(a, regs, tmp, vstat, vcs, vconst):
    n = len(regs)
    P = lambda r: "v[%d:%d]" % (r, r + 1)
    for p in range(n):
        a("v_pk_mul_f32 %s, %s, %s op_sel:[0,0] op_sel_hi:[1,0]" % (P(regs[p]), P(regs[p]), P(vstat)))
    for p in range(n):
        a("v_pk_fma_f32 %s, %s, %s, %s op_sel:[0,1,0] op_sel_hi:[1,1,1]" % (P(regs[p]), P(vcs + 2 * p), P(vstat), P(regs[p])))
    for p in range(n):
        a("v_pk_mul_f32 %s, %s, %s" % (P(tmp + 2 * p), P(regs[p]), P(regs[p])))
    for p in range(n):
        a("v_pk_fma_f32 %s, %s, %s, %s op_sel:[0,0,1] op_sel_hi:[1,0,1]" % (P(tmp + 2 * p), P(tmp + 2 * p), P(vconst), P(vconst)))
    for p in range(n):
        a("v_pk_mul_f32 %s, %s, %s" % (P(tmp + 2 * p), P(tmp + 2 * p), P(regs[p])))
    for p in range(n):
        a("v_exp_f32 v%d, v%d" % (tmp + 2 * p, tmp + 2 * p))
        a("v_exp_f32 v%d, v%d" % (tmp + 2 * p + 1, tmp + 2 * p + 1))
    for p in range(n):
        a("v_pk_add_f32 %s, %s, 1.0 op_sel_hi:[1,0]" % (P(tmp + 2 * p), P(tmp + 2 * p)))
    for p in range(n):
        a("v_rcp_f32 v%d, v%d" % (tmp + 2 * p, tmp + 2 * p))
        a("v_rcp_f32 v%d, v%d" % (tmp + 2 * p + 1, tmp + 2 * p + 1))
    for p in range(n):
        a("v_pk_mul_f32 %s, %s, %s" % (P(regs[p]), P(regs[p]), P(tmp + 2 * p)))


def epi_store_addr(a, c, ld, vdst, n_i, shift_sgpr=None):
    a("v_and_b32 v2, 31, v1")
    a("v_add_u32 v2, s%d, v2" % S_ROW0)
    if shift_sgpr is not None:
        a("v_add_u32 v2, s%d, v2" % shift_sgpr)
    if c.big:
        a("s_lshl_b32 s%d, s%d, 6" % (S_T0, S_WAVE))
    else:
        a("s_lshr_b32 s%d, s%d, 1" % (S_T1, S_WAVE))
        a("s_lshl_b32 s%d, s%d, 6" % (S_T1, S_T1))
        a("v_add_u32 v2, s%d, v2" % S_T1)
        a("s_and_b32 s%d, s%d, 1" % (S_T0, S_WAVE))
        a("s_lshl_b32 s%d, s%d, 5" % (S_T0, S_T0))
    a("s_add_u32 s%d, s%d, s%d" % (S_T0, S_T0, S_COL0))
    a("s_lshl_b32 s%d, s%d, 1" % (S_T0, S_T0))
    a("s_mov_b32 s%d, %d" % (S_T1, ld))
    a("v_mul_lo_u32 v2, v2, s%d" % S_T1)
    a("v_lshrrev_b32 v3, 5, v1")
    a("v_lshl_add_u32 v2, v3, 4, v2")
    a("v_add_u32 v%d, s%d, v2" % (vdst, S_T0))
    for i in range(1, n_i):
        a("v_add_u32 v%d, 0x%x, v%d" % (vdst + i, 32 * ld * i, vdst))


S_STOFF = 86
NI_EPI = 4


def xfer_send(a):
    if NI_EPI == 4:
        a("s_mov_b32 s%d, 0" % S_STOFF)
        a("s_nop 15")
        return
    a("s_lshl_b32 s%d, s%d, 14" % (S_T0, S_WAVE))
    a("v_lshlrev_b32 v2, 4, v1")
    a("v_add_u32 v2, s%d, v2" % S_T0)
    a("s_mov_b32 s%d, 0" % S_STOFF)
    a("s_nop 15")
    for q in range(16):
        a("ds_write_b128 v2, v[%d:%d] offset:%d" % (V_ACC + 64 + 4 * q, V_ACC + 67 + 4 * q, 1024 * q))


def xfer_recv(a):
    a("s_lshl_b32 s%d, s%d, 14" % (S_T0, S_LW))
    a("v_lshlrev_b32 v2, 4, v1")
    a("v_add_u32 v2, s%d, v2" % S_T0)
    for q in range(16):
        a("ds_read_b128 v[%d:%d], v2 offset:%d" % (V_ACC + 4 * q, V_ACC + 3 + 4 * q, 1024 * q))
    a("s_mov_b32 s%d, s%d" % (S_WAVE, S_LW))
    a("s_add_u32 s%d, s%d, 64" % (S_ROW0, S_ROW0))
    a("s_mov_b32 s%d, 512" % S_STOFF)
    a("s_waitcnt lgkmcnt(0)")


def epi_ln_gelu(a, c, srd, ld, shift_sgpr):
    VST, VSTAT, VCS, VC, VT, VP = 4, 8, 16, 48, 64, 96
    epi_store_addr(a, c, ld, VST, NI_EPI, shift_sgpr)
    a("v_and_b32 v2, 31, v1")
    a("v_lshlrev_b32 v2, 3, v2")
    a("v_add_u32 v2, %d, v2" % c.LDS_STATS)
    a("v_add_u32 v2, s%d, v2" % S_STOFF)
    for i in range(NI_EPI):
        a("ds_read_b64 v[%d:%d], v2 offset:%d" % (VSTAT + 2 * i, VSTAT + 2 * i + 1, 256 * i))
    a("v_lshrrev_b32 v3, 5, v1")
    a("v_lshlrev_b32 v3, 4, v3")
    a("s_lshl_b32 s%d, s%d, 8" % (S_T0, S_WAVE))
    a("v_add_u32 v3, s%d, v3" % S_T0)
    a("v_add_u32 v3, %d, v3" % c.LDS_CS)
    for j in range(2):
        for g in range(4):
            a("ds_read_b128 v[%d:%d], v3 offset:%d" % (VCS + 16 * j + 4 * g, VCS + 16 * j + 4 * g + 3, 128 * j + 32 * g))
    a("v_mov_b32 v%d, %s" % (VC, f32(GC1)))
    a("v_mov_b32 v%d, %s" % (VC + 1, f32(GC0)))
    a("s_waitcnt lgkmcnt(0)")
    if "nolines" not in EXP:
        epi_lines(a, c, srd, ld, shift_sgpr,
                  lambda i, j, acc: ln_gelu_inplace(a, [acc + 2 * p for p in range(8)], VT, VSTAT + 2 * i, VCS + 16 * j, VC),
                  96, 80, 52, 56, 57, 58)
        return
    n = 0
    for i in range(NI_EPI):
        for j in range(2):
            acc = V_ACC + 16 * (i * 2 + j)
            ln_gelu_inplace(a, [acc + 2 * p for p in range(8)], VT, VSTAT + 2 * i, VCS + 16 * j, VC)
            pack_swap_store(a, acc, VP + 8 * (n & 1), VST + i, srd, 64 * j)
            n += 1


def epi_phi_q(a, c, srd, ld):
    VST, VC, VT, VP = 4, 48, 64, 96
    epi_store_addr(a, c, ld, VST, NI_EPI)
    a("v_mov_b32 v%d, %s" % (VC, f32(LOG2E)))
    a("v_mov_b32 v%d, %s" % (VC + 1, f32(1e-6)))
    if "nolines" not in EXP:
        epi_lines(a, c, srd, ld, None,
                  lambda i, j, acc: phi_inplace(a, [acc + 2 * p for p in range(8)], VT, VC),
                  96, 80, 52, 56, 57, 58)
        return
    n = 0
    for i in range(NI_EPI):
        for j in range(2):
            acc = V_ACC + 16 * (i * 2 + j)
            phi_inplace(a, [acc + 2 * p for p in range(8)], VT, VC)
            pack_swap_store(a, acc, VP + 8 * (n & 1), VST + i, srd, 64 * j)
            n += 1


def epi_kv(a, c):
    VC, VT, VPK, VV, VONE, VKV, VZ = 48, 64, 16, 24, 32, 80, 96
    a("v_mov_b32 v%d, %s" % (VC, f32(LOG2E)))
    a("v_mov_b32 v%d, %s" % (VC + 1, f32(1e-6)))
    for r in range(4):
        a("v_mov_b32 v%d, 0x3f803f80" % (VONE + r))
    zero_acc(a, VKV, 32)
    for i in range(4):
        kacc = V_ACC + 32 * i
        vacc = kacc + 16
        phi_inplace(a, [kacc + 2 * p for p in range(8)], VT, VC)
        for p in range(8):
            a("v_cvt_pk_bf16_f32 v%d, v%d, v%d" % (VPK + p, kacc + 2 * p, kacc + 2 * p + 1))
        for p in range(8):
            a("v_cvt_pk_bf16_f32 v%d, v%d, v%d" % (VV + p, vacc + 2 * p, vacc + 2 * p + 1))
        a("s_nop 1")
        for m in range(2):
            a("v_mfma_f32_32x32x16_bf16 v[%d:%d], v[%d:%d], v[%d:%d], v[%d:%d]" % (VKV, VKV + 15, VPK + 4 * m, VPK + 4 * m + 3, VV + 4 * m, VV + 4 * m + 3, VKV, VKV + 15))
            a("v_mfma_f32_32x32x16_bf16 v[%d:%d], v[%d:%d], v[%d:%d], v[%d:%d]" % (VZ, VZ + 15, VPK + 4 * m, VPK + 4 * m + 3, VONE, VONE + 3, VZ, VZ + 15))
    a("s_sub_u32 s%d, s%d, 4" % (S_T0, S_CT))
    a("s_lshl_b32 s%d, s%d, 2" % (S_T0, S_T0))
    a("s_add_u32 s%d, s%d, s%d" % (S_T0, S_T0, S_WAVE))
    a("s_lshl_b32 s%d, s%d, 5" % (S_T1, S_RB))
    a("s_add_u32 s%d, s%d, s%d" % (S_T0, S_T0, S_T1))
    a("s_lshl_b32 s%d, s%d, 12" % (S_T1, S_T0))
    a("s_lshl_b32 s%d, s%d, 7" % (S_T2, S_T0))
    a("v_and_b32 v2, 31, v1")
    a("v_lshrrev_b32 v3, 5, v1")
    a("v_lshlrev_b32 v3, 4, v3")
    a("v_lshlrev_b32 v4, 4, v1")
    a("v_add_u32 v4, s%d, v4" % S_T1)
    a("v_add_u32 v5, s%d, v3" % S_T2)
    a("v_cmp_eq_u32 vcc, 0, v2")
    a("s_nop 15")
    for g in range(4):
        a("buffer_store_dwordx4 v[%d:%d], v4, s[%d:%d], 0 offen offset:%d%s" % (VKV + 4 * g, VKV + 4 * g + 3, SRD_D, SRD_D + 3, 1024 * g, HO))
    a("s_and_saveexec_b64 s[%d:%d], vcc" % (S_EXEC, S_EXEC + 1))
    for g in range(4):
        a("buffer_store_dwordx4 v[%d:%d], v5, s[%d:%d], 0 offen offset:%d%s" % (VZ + 4 * g, VZ + 4 * g + 3, SRD_E, SRD_E + 3, 32 * g, HO))
    a("s_mov_b64 exec, s[%d:%d]" % (S_EXEC, S_EXEC + 1))


def gen_k1(a):
    name = MAIN
    c = Cfg(256, 3)
    kernel_header(a, name, 256)
    a("s_and_b32 s%d, s%d, 1" % (S_T0, S_XCD))
    a("s_lshl_b32 s%d, s%d, 3" % (S_T0, S_T0))
    a("s_and_b32 s%d, s%d, 7" % (S_T1, S_J))
    a("s_add_u32 s%d, s%d, s%d" % (S_RB, S_T0, S_T1))
    a("s_lshr_b32 s%d, s%d, 1" % (S_T0, S_XCD))
    a("s_lshl_b32 s%d, s%d, 2" % (S_T0, S_T0))
    a("s_lshr_b32 s%d, s%d, 3" % (S_T1, S_J))
    a("s_add_u32 s%d, s%d, s%d" % (S_CT, S_T0, S_T1))
    a("s_lshl_b32 s%d, s%d, 7" % (S_ROW0, S_RB))
    a("s_waitcnt lgkmcnt(0)")
    make_srd(a, SRD_A, P_X, 0, S * D * 2)
    make_srd(a, SRD_D, P_WS, WS_KVP, 2 * MB)
    make_srd(a, SRD_E, P_WS, WS_ZP, 65536)
    lq, lkv, lw1, ldone = "L_k1_tq", "L_k1_tkv", "L_k1_tw1", "L_k1_tdone"
    a("s_cmp_lt_u32 s%d, 4" % S_CT)
    a("s_cbranch_scc1 %s" % lq)
    a("s_cmp_lt_u32 s%d, 12" % S_CT)
    a("s_cbranch_scc1 %s" % lkv)
    a.label(lw1)
    a("s_mov_b32 s%d, 2" % S_TYPE)
    make_srd(a, SRD_B, P_W1, 0, D * D * 2)
    make_srd(a, SRD_C, P_WS, WS_HS, S * D * 2)
    a("s_mov_b32 s%d, 2048" % S_LDB)
    a("s_sub_u32 s%d, s%d, 12" % (S_T0, S_CT))
    a("s_lshl_b32 s%d, s%d, 8" % (S_COL0, S_T0))
    a("s_mov_b32 s%d, 32" % S_SA)
    a("s_mov_b32 s%d, 64" % S_SB)
    a("s_lshr_b32 s%d, s%d, 1" % (S_T1, S_T0))
    a("s_add_u32 s%d, s%d, 1" % (S_T1, S_T1))
    a("s_sub_u32 s%d, 0, s%d" % (S_T2, S_T1))
    a("s_and_b32 s%d, s%d, 1" % (S_T0, S_T0))
    a("s_cmp_eq_u32 s%d, 0" % S_T0)
    a("s_cselect_b32 s%d, s%d, s%d" % (S_SHIFT, S_T1, S_T2))
    a("s_branch %s" % ldone)
    a.label(lq)
    a("s_mov_b32 s%d, 0" % S_TYPE)
    make_srd(a, SRD_B, P_WQKV, 0, D * 3 * D * 2)
    make_srd(a, SRD_C, P_WS, WS_PQ, S * D * 2)
    a("s_mov_b32 s%d, 6144" % S_LDB)
    a("s_lshl_b32 s%d, s%d, 8" % (S_COL0, S_CT))
    a("s_mov_b32 s%d, 32" % S_SA)
    a("s_mov_b32 s%d, 64" % S_SB)
    a("s_mov_b32 s%d, 0" % S_SHIFT)
    a("s_branch %s" % ldone)
    a.label(lkv)
    a("s_mov_b32 s%d, 1" % S_TYPE)
    make_srd(a, SRD_B, P_WQKV, 0, D * 3 * D * 2)
    make_srd(a, SRD_C, P_WS, WS_PQ, S * D * 2)
    a("s_mov_b32 s%d, 6144" % S_LDB)
    a("s_sub_u32 s%d, s%d, 4" % (S_T0, S_CT))
    a("s_lshl_b32 s%d, s%d, 7" % (S_T0, S_T0))
    a("s_add_u32 s%d, s%d, 1024" % (S_COL0, S_T0))
    a("s_mov_b32 s%d, 1024" % S_SA)
    a("s_mov_b32 s%d, 32" % S_SB)
    a("s_mov_b32 s%d, 0" % S_SHIFT)
    a.label(ldone)
    a("s_cmp_ge_u32 s%d, 4" % S_WAVE)
    a("s_cbranch_scc1 L_k1_loader")
    a("s_or_b32 s%d, s2, s%d" % (S_T0, S_WAVE))
    a("s_cmp_lg_u32 s%d, 0" % S_T0)
    a("s_cbranch_scc1 L_k1_noclr")
    make_srd(a, SRD_F, P_WS, WS_FLAG, 8192)
    a("v_lshlrev_b32 v2, 4, v1")
    for r in range(4):
        a("v_mov_b32 v%d, 0" % (4 + r))
    for t in range(4):
        a("buffer_store_dwordx4 v[4:7], v2, s[%d:%d], 0 offen offset:%d sc1" % (SRD_F, SRD_F + 3, 1024 * t))
    a("v_add_u32 v2, 4096, v2")
    for t in range(4):
        a("buffer_store_dwordx4 v[4:7], v2, s[%d:%d], 0 offen offset:%d sc1" % (SRD_F, SRD_F + 3, 1024 * t))
    a("s_waitcnt vmcnt(0)")
    make_srd(a, SRD_F, P_DBG, 0, 256)
    a("v_mov_b32 v2, 252")
    a("v_mov_b32 v3, 1")
    a("s_mov_b64 exec, 1")
    a("buffer_store_dword v3, v2, s[%d:%d], 0 offen sc1" % (SRD_F, SRD_F + 3))
    a("s_mov_b64 exec, -1")
    a.label("L_k1_noclr")
    dbgstamp(a, 0, False)
    a("s_cmp_lg_u32 s%d, 1" % S_WAVE)
    a("s_cbranch_scc1 L_k1_nocpf")
    code_prefetch(a, MAIN, "L_code_end")
    a.label("L_k1_nocpf")
    PF = "nopf" not in EXP
    if PF and "k1nox" not in EXP:
        a("v_lshlrev_b32 v%d, 7, v1" % V_PF)
        prefetch_jobs(a, [(P_X, S * D * 2)])
    compute_addr_setup(a, c)
    zero_acc(a, V_ACC, 128)
    pf = None
    PF0 = 0
    for e in EXP:
        if e.startswith("pf0_"): PF0 = int(e[4:])
    if PF and "k1nolate" not in EXP:
        pf = pf_stream_setup(a, [(P_W2, D * D * 2, 0, 1), (P_W3, D * F * 2, 0, 3), (P_W3, D * F * 2, 1, 3), (P_W3, D * F * 2, 2, 3)], 16 - PF0)
    def initpoll():
        make_srd(a, SRD_B2, P_DBG, 0, 256)
        a("v_mov_b32 v2, 252")
        poll_loop(a, 1)
    wave0(a, initpoll)
    compute_start(a, c)
    a("s_cmp_eq_u32 s%d, 1" % S_TYPE)
    a("s_cbranch_scc1 L_k1_kvloop")
    if PF0:
        compute_loop(a, c, PF0, V_ACC, True, None)
    compute_loop(a, c, 16 - PF0, V_ACC, True, pf)
    a("s_waitcnt lgkmcnt(0)")
    xfer_send(a)
    a("s_waitcnt lgkmcnt(0)")
    a("s_barrier")
    a.label("L_k1_epi")
    a("s_cmp_eq_u32 s%d, 0" % S_TYPE)
    a("s_cbranch_scc1 L_k1_epq")
    epi_ln_gelu(a, c, SRD_C, 2048, S_SHIFT)
    a("s_branch L_m_e1c")
    a.label("L_k1_epq")
    epi_phi_q(a, c, SRD_C, 2048)
    a("s_branch L_m_e1c")
    a.label("L_k1_kvloop")
    if PF0:
        compute_loop(a, c, PF0, V_ACC, False, None)
    compute_loop(a, c, 16 - PF0, V_ACC, False, pf)
    a("s_waitcnt lgkmcnt(0)")
    a("s_barrier")
    a("s_nop 15")
    epi_kv(a, c)
    a("s_branch L_m_e1c")
    a.label("L_k1_loader")
    a("s_sub_u32 s%d, s%d, 4" % (S_LW, S_WAVE))
    loader_a_offsets(a, V_LA, 2048)
    loader_b_offsets_big(a, V_LB)
    a("s_cmp_eq_u32 s%d, 2" % S_TYPE)
    a("s_cselect_b32 s%d, 1, 0" % S_C0)
    loader_loop(a, c, [(16, SRD_A, SRD_B, V_LA, V_LB, "s_lshl_b32 s%d, s%d, 6" % (S_KBSTEP, S_LDB))], S_C0)
    a("s_cmp_eq_u32 s%d, 0" % S_C0)
    a("s_cbranch_scc1 L_k1_nofin")
    stats_finish(a, c)
    a("s_cmp_lg_u32 s%d, 0" % S_LW)
    a("s_cbranch_scc1 L_k1_nofin")
    a("s_cmp_gt_i32 s%d, 0" % S_SHIFT)
    a("s_cselect_b32 s%d, 0, 15" % S_T0)
    a("s_cmp_lg_u32 s%d, s%d" % (S_T0, S_RB))
    a("s_cbranch_scc1 L_k1_nofin")
    a("s_cmp_gt_i32 s%d, 0" % S_SHIFT)
    a("s_cselect_b32 s%d, 0, 2046" % S_T0)
    a("s_cselect_b32 s%d, s%d, 0" % (S_T1, S_SHIFT))
    a("v_lshrrev_b32 v3, 5, v1")
    a("v_add_u32 v3, s%d, v3" % S_T0)
    a("v_and_b32 v4, 31, v1")
    a("v_lshlrev_b32 v4, 4, v4")
    a("v_lshl_add_u32 v4, v3, 11, v4")
    a("s_lshl_b32 s%d, s%d, 1" % (S_T2, S_COL0))
    a("v_add_u32 v4, s%d, v4" % S_T2)
    a("s_add_u32 s%d, s%d, 2048" % (S_T2, S_SHIFT))
    a("s_cmp_gt_i32 s%d, 0" % S_SHIFT)
    a("s_cselect_b32 s%d, 0, s%d" % (S_T2, S_T2))
    a("s_cselect_b32 s%d, s%d, 2048" % (S_T1, S_SHIFT))
    a("v_cmp_le_u32 vcc, s%d, v3" % S_T2)
    a("v_cmp_gt_u32 s[%d:%d], s%d, v3" % (S_C0 + 2, S_C0 + 3, S_T1))
    a("v_mov_b32 v8, 0")
    a("v_mov_b32 v9, 0")
    a("v_mov_b32 v10, 0")
    a("v_mov_b32 v11, 0")
    a("s_and_b64 vcc, vcc, s[%d:%d]" % (S_C0 + 2, S_C0 + 3))
    a("s_and_saveexec_b64 s[%d:%d], vcc" % (S_EXEC, S_EXEC + 1))
    a("buffer_store_dwordx4 v[8:11], v4, s[%d:%d], 0 offen sc1" % (SRD_C, SRD_C + 3))
    a("s_mov_b64 exec, s[%d:%d]" % (S_EXEC, S_EXEC + 1))
    a.label("L_k1_nofin")
    a("s_barrier")
    a("s_sub_u32 s%d, s%d, 4" % (S_C0, S_CT))
    a("s_lshl_b32 s%d, s%d, 4" % (S_C0, S_C0))
    a("s_add_u32 s%d, s%d, s%d" % (S_C0, S_C0, S_RB))
    a("s_lshl_b32 s%d, s%d, 2" % (S_C0, S_C0))
    a("s_add_u32 s%d, s%d, s%d" % (S_C0, S_C0, S_LW))
    a("s_cmp_lg_u32 s%d, 0" % S_TYPE)
    a("s_cbranch_scc1 L_m_loader2")
    a("s_lshl_b32 s%d, s%d, 5" % (S_C0, S_CT))
    a("s_add_u32 s%d, s%d, s%d" % (S_C0, S_C0, S_ROW0))
    a("s_lshl_b32 s%d, s%d, 3" % (S_T0, S_LW))
    a("s_add_u32 s%d, s%d, s%d" % (S_C0, S_C0, S_T0))
    a("s_branch L_m_loader2")


def small_tile_decode(a):
    a("s_and_b32 s%d, s%d, 3" % (S_T0, S_XCD))
    a("s_lshl_b32 s%d, s%d, 2" % (S_T0, S_T0))
    a("s_and_b32 s%d, s%d, 3" % (S_T1, S_J))
    a("s_add_u32 s%d, s%d, s%d" % (S_RB, S_T0, S_T1))
    a("s_lshr_b32 s%d, s%d, 2" % (S_T0, S_XCD))
    a("s_lshl_b32 s%d, s%d, 3" % (S_T0, S_T0))
    a("s_lshr_b32 s%d, s%d, 2" % (S_T1, S_J))
    a("s_add_u32 s%d, s%d, s%d" % (S_CT, S_T0, S_T1))
    a("s_lshl_b32 s%d, s%d, 7" % (S_ROW0, S_RB))
    a("s_lshl_b32 s%d, s%d, 6" % (S_COL0, S_CT))


def load_resid(a, c, dst, vaddr, srd, fl=""):
    for g in range(4):
        a("buffer_load_dwordx2 v[%d:%d], v%d, s[%d:%d], 0 offen offset:%d%s" % (dst + 2 * g, dst + 2 * g + 1, vaddr, srd, srd + 3, 16 * g, fl))


def unpack_bf16(a, dst, src, n):
    for p in range(n):
        a("v_lshlrev_b32 v%d, 16, v%d" % (dst + 2 * p, src + p))
        a("v_and_b32 v%d, 0xffff0000, v%d" % (dst + 2 * p + 1, src + p))


def round_regs_bf16(a, regs, n, tmp):
    for p in range(n // 2):
        a("v_cvt_pk_bf16_f32 v%d, v%d, v%d" % (tmp + p, regs + 2 * p, regs + 2 * p + 1))
    unpack_bf16(a, regs, tmp, n // 2)


def kv_reduce(a):
    make_srd(a, SRD_E, P_WS, WS_KVP, 2 * MB)
    make_srd(a, SRD_F, P_WS, WS_KVB, 65536)
    a("s_lshl_b32 s%d, s%d, 3" % (S_T2, S_CT))
    a("s_add_u32 s%d, s%d, s%d" % (S_T2, S_T2, S_WAVE))
    a("v_and_b32 v2, 31, v1")
    a("v_lshrrev_b32 v3, 5, v1")
    a("v_lshlrev_b32 v3, 20, v3")
    a("v_lshl_add_u32 v3, v2, 4, v3")
    a("s_lshl_b32 s%d, s%d, 9" % (S_T0, S_T2))
    a("v_add_u32 v3, s%d, v3" % S_T0)
    for r in range(8):
        a("s_mov_b32 s%d, 0x%x" % (S_T1, r * 131072))
        a("buffer_load_dwordx4 v[%d:%d], v3, s[%d:%d], s%d offen%s" % (16 + 4 * r, 19 + 4 * r, SRD_E, SRD_E + 3, S_T1, HO))
    make_srd(a, SRD_E, P_WS, WS_ZP, 65536)
    a("v_and_b32 v4, 7, v1")
    a("v_lshrrev_b32 v5, 3, v1")
    a("v_lshlrev_b32 v5, 12, v5")
    a("v_lshl_add_u32 v5, v4, 4, v5")
    a("s_lshl_b32 s%d, s%d, 7" % (S_T0, S_CT))
    a("v_add_u32 v5, s%d, v5" % S_T0)
    a("s_mov_b32 s%d, 0x8000" % S_T1)
    a("buffer_load_dwordx4 v[48:51], v5, s[%d:%d], 0 offen%s" % (SRD_E, SRD_E + 3, HO))
    a("buffer_load_dwordx4 v[52:55], v5, s[%d:%d], s%d offen%s" % (SRD_E, SRD_E + 3, S_T1, HO))
    a("s_waitcnt vmcnt(2)")
    for r in range(1, 8):
        a("v_pk_add_f32 v[16:17], v[16:17], v[%d:%d]" % (16 + 4 * r, 17 + 4 * r))
        a("v_pk_add_f32 v[18:19], v[18:19], v[%d:%d]" % (18 + 4 * r, 19 + 4 * r))
    for r in range(4):
        a("v_mov_b32 v%d, v%d" % (20 + r, 16 + r))
    a("s_nop 1")
    for r in range(4):
        a("v_permlane32_swap_b32 v%d, v%d" % (16 + r, 20 + r))
    a("s_nop 1")
    a("v_pk_add_f32 v[16:17], v[16:17], v[20:21]")
    a("v_pk_add_f32 v[18:19], v[18:19], v[22:23]")
    a("v_cvt_pk_bf16_f32 v16, v16, v17")
    a("v_cvt_pk_bf16_f32 v17, v18, v19")
    a("s_lshl_b32 s%d, s%d, 8" % (S_T0, S_T2))
    a("v_lshlrev_b32 v2, 3, v2")
    a("v_add_u32 v2, s%d, v2" % S_T0)
    a("s_mov_b32 exec_hi, 0")
    a("buffer_store_dwordx2 v[16:17], v2, s[%d:%d], 0 offen%s" % (SRD_F, SRD_F + 3, HO))
    a("s_mov_b64 exec, -1")
    ldone = a.newlabel("zdone")
    a("s_cmp_lg_u32 s%d, 0" % S_WAVE)
    a("s_cbranch_scc1 %s" % ldone)
    make_srd(a, SRD_F, P_WS, WS_ZB, 2048)
    a("s_waitcnt vmcnt(1)")
    a("v_pk_add_f32 v[48:49], v[48:49], v[52:53]")
    a("v_pk_add_f32 v[50:51], v[50:51], v[54:55]")
    for pat in (0x201F, 0x401F):
        for r in range(4):
            a("ds_swizzle_b32 v%d, v%d offset:0x%x" % (52 + r, 48 + r, pat))
        a("s_waitcnt lgkmcnt(0)")
        a("v_pk_add_f32 v[48:49], v[48:49], v[52:53]")
        a("v_pk_add_f32 v[50:51], v[50:51], v[54:55]")
    for r in range(4):
        a("v_mov_b32 v%d, v%d" % (52 + r, 48 + r))
    a("s_nop 1")
    for r in range(4):
        a("v_permlane32_swap_b32 v%d, v%d" % (48 + r, 52 + r))
    a("s_nop 1")
    a("v_pk_add_f32 v[48:49], v[48:49], v[52:53]")
    a("v_pk_add_f32 v[50:51], v[50:51], v[54:55]")
    a("v_cvt_pk_bf16_f32 v48, v48, v49")
    a("v_cvt_pk_bf16_f32 v49, v50, v51")
    a("s_lshl_b32 s%d, s%d, 6" % (S_T0, S_CT))
    a("v_lshlrev_b32 v4, 3, v4")
    a("v_add_u32 v4, s%d, v4" % S_T0)
    a("s_mov_b64 exec, 0xff")
    a("buffer_store_dwordx2 v[48:49], v4, s[%d:%d], 0 offen%s" % (SRD_F, SRD_F + 3, HO))
    a("s_mov_b64 exec, -1")
    a.label(ldone)
    a("s_waitcnt vmcnt(0)")


def colsum_job(a, s_job, R=128):
    AC, TM, DT = R, R + 8, R + 16
    make_srd(a, SRD_E, P_W3, 0, D * F * 2)
    make_srd(a, SRD_F, P_WS, WS_CSP, 8 * F * 4)
    a("s_mul_i32 s%d, s%d, 1171" % (S_T1, s_job))
    a("s_lshr_b32 s%d, s%d, 16" % (S_T1, S_T1))
    a("s_mul_i32 s%d, s%d, 56" % (S_T2, S_T1))
    a("s_sub_u32 s%d, s%d, s%d" % (S_T2, s_job, S_T2))
    a("v_lshrrev_b32 v3, 3, v1")
    a("s_lshl_b32 s%d, s%d, 7" % (S_T0, S_T1))
    a("v_add_u32 v3, s%d, v3" % S_T0)
    a("s_mov_b32 s%d, %d" % (S_T0, F * 2))
    a("v_mul_lo_u32 v3, v3, s%d" % S_T0)
    a("v_and_b32 v2, 7, v1")
    a("v_lshl_add_u32 v3, v2, 4, v3")
    a("s_lshl_b32 s%d, s%d, 7" % (S_T0, S_T2))
    a("v_add_u32 v3, s%d, v3" % S_T0)
    for t in range(16):
        a("s_mov_b32 s%d, %d" % (S_T0, t * 8 * F * 2))
        a("buffer_load_dwordx4 v[%d:%d], v3, s[%d:%d], s%d offen" % (DT + 4 * t, DT + 3 + 4 * t, SRD_E, SRD_E + 3, S_T0))
    for r in range(8):
        a("v_mov_b32 v%d, 0" % (AC + r))
    add = lambda: [a("v_pk_add_f32 v[%d:%d], v[%d:%d], v[%d:%d]" % (AC + 2 * q, AC + 1 + 2 * q, AC + 2 * q, AC + 1 + 2 * q, TM + 2 * q, TM + 1 + 2 * q)) for q in range(4)]
    for t in range(16):
        a("s_waitcnt vmcnt(%d)" % (15 - t))
        unpack_bf16(a, TM, DT + 4 * t, 4)
        add()
    for pat in (0x201F, 0x401F):
        for r in range(8):
            a("ds_swizzle_b32 v%d, v%d offset:0x%x" % (TM + r, AC + r, pat))
        a("s_waitcnt lgkmcnt(0)")
        add()
    for r in range(8):
        a("v_mov_b32 v%d, v%d" % (TM + r, AC + r))
    a("s_nop 1")
    for r in range(8):
        a("v_permlane32_swap_b32 v%d, v%d" % (AC + r, TM + r))
    a("s_nop 1")
    add()
    a("s_mul_i32 s%d, s%d, %d" % (S_T0, S_T1, F * 4))
    a("s_lshl_b32 s%d, s%d, 8" % (S_T2, S_T2))
    a("s_add_u32 s%d, s%d, s%d" % (S_T0, S_T0, S_T2))
    a("v_lshlrev_b32 v2, 5, v2")
    a("v_add_u32 v2, s%d, v2" % S_T0)
    a("s_mov_b64 exec, 0xff")
    a("buffer_store_dwordx4 v[%d:%d], v2, s[%d:%d], 0 offen%s" % (AC, AC + 3, SRD_F, SRD_F + 3, HO))
    a("buffer_store_dwordx4 v[%d:%d], v2, s[%d:%d], 0 offen offset:16%s" % (AC + 4, AC + 7, SRD_F, SRD_F + 3, HO))
    a("s_mov_b64 exec, -1")


def gen_k2(a):
    name = "k2_kernel"
    c = Cfg(64, 6)
    kernel_header(a, name, 256)
    small_tile_decode(a)
    a("s_waitcnt lgkmcnt(0)")
    make_srd(a, SRD_A, P_WS, WS_HS, S * D * 2)
    make_srd(a, SRD_B, P_W2, 0, D * D * 2)
    make_srd(a, SRD_C, P_WS, WS_X1, S * D * 2)
    make_srd(a, SRD_D, P_X, 0, S * D * 2)
    a("s_cmp_ge_u32 s%d, 4" % S_WAVE)
    a("s_cbranch_scc1 L_k2_loader")
    kv_reduce(a)
    VST, VLD, VX = 200, 204, 208
    epi_store_addr(a, c, 2048, VST, 2)
    a("v_lshrrev_b32 v3, 5, v1")
    a("v_lshlrev_b32 v3, 3, v3")
    for i in range(2):
        a("v_sub_u32 v%d, v%d, v3" % (VLD + i, VST + i))
    for i in range(2):
        load_resid(a, c, VX + 8 * i, VLD + i, SRD_D)
    compute_addr_setup(a, c)
    zero_acc(a, V_ACC, 32)
    pf = None
    if "nopf" not in EXP:
        pf = pf_stream_setup(a, [(P_WO, D * D * 2, w, 4) for w in range(4)], 16)
    compute_start(a, c)
    compute_loop(a, c, 16, V_ACC, True, pf)
    stamp(a, 2)
    a("s_waitcnt vmcnt(0) lgkmcnt(0)")
    a("s_nop 15")
    for i in range(2):
        acc = V_ACC + 16 * i
        round_regs_bf16(a, acc, 16, 16)
        unpack_bf16(a, 32, VX + 8 * i, 8)
        for p in range(8):
            a("v_pk_add_f32 v[%d:%d], v[%d:%d], v[%d:%d]" % (acc + 2 * p, acc + 2 * p + 1, acc + 2 * p, acc + 2 * p + 1, 32 + 2 * p, 33 + 2 * p))
        pack_swap_store(a, acc, 48 + 8 * i, VST + i, SRD_C, 0)
    make_srd(a, SRD_E, P_WS, WS_XS, S * 256)
    a("v_mov_b32 v64, 0x3f803f80")
    for i in range(2):
        for r in range(4):
            a("v_mov_b32 v%d, 0" % (68 + 4 * i + r))
    for p in range(8):
        for i in range(2):
            b = 68 + 4 * i + 2 * (p & 1)
            a("v_dot2_f32_bf16 v%d, v%d, v64, v%d" % (b, 48 + 8 * i + p, b))
            a("v_dot2_f32_bf16 v%d, v%d, v%d, v%d" % (b + 1, 48 + 8 * i + p, 48 + 8 * i + p, b + 1))
    a("s_lshl_b32 s%d, s%d, 1" % (S_T0, S_CT))
    a("s_and_b32 s%d, s%d, 1" % (S_T1, S_WAVE))
    a("s_add_u32 s%d, s%d, s%d" % (S_T0, S_T0, S_T1))
    a("s_lshl_b32 s%d, s%d, 3" % (S_T0, S_T0))
    a("s_nop 1")
    for i in range(2):
        b = 68 + 4 * i
        a("v_pk_add_f32 v[%d:%d], v[%d:%d], v[%d:%d]" % (b, b + 1, b, b + 1, b + 2, b + 3))
        a("v_mov_b32 v%d, v%d" % (b + 2, b))
        a("v_mov_b32 v%d, v%d" % (b + 3, b + 1))
        a("s_nop 1")
        a("v_permlane32_swap_b32 v%d, v%d" % (b, b + 2))
        a("v_permlane32_swap_b32 v%d, v%d" % (b + 1, b + 3))
        a("s_nop 1")
        a("v_pk_add_f32 v[%d:%d], v[%d:%d], v[%d:%d]" % (b, b + 1, b, b + 1, b + 2, b + 3))
        a("v_lshrrev_b32 v3, 11, v%d" % (VST + i))
        a("v_lshlrev_b32 v3, 8, v3")
        a("v_add_u32 v3, s%d, v3" % S_T0)
        a("buffer_store_dwordx2 v[%d:%d], v3, s[%d:%d], 0 offen" % (b, b + 1, SRD_E, SRD_E + 3))
    a("s_branch L_%s_cdone" % name)
    a.label("L_k2_loader")
    a("s_sub_u32 s%d, s%d, 4" % (S_LW, S_WAVE))
    loader_a_offsets(a, V_LA, 2048)
    loader_b_offsets_small(a, V_LB, 2048)
    loader_loop(a, c, [(16, SRD_A, SRD_B, V_LA, V_LB, 64 * 2048)], None)
    kernel_footer(a, name, 1)
    descriptor(a, name)
    return name, 256, c.LDS_TOTAL


def k3_stats_from_partials(a, c):
    k3_stats_issue(a, c, S_WAVE)
    k3_stats_fin(a, c, S_WAVE)


def k3_stats_issue(a, c, S_WAVE):
    make_srd(a, SRD_D, P_WS, WS_XS, 256 * 1024)
    make_srd(a, SRD_E, P_WS, WS_CSP, 8 * F * 4)
    a("v_and_b32 v2, 31, v1")
    a("s_lshl_b32 s%d, s%d, 8" % (S_T0, S_WAVE))
    a("s_lshl_b32 s%d, s%d, 14" % (S_T1, S_RB))
    a("s_add_u32 s%d, s%d, s%d" % (S_T0, S_T0, S_T1))
    a("v_lshlrev_b32 v2, 3, v2")
    a("v_add_u32 v2, s%d, v2" % S_T0)
    a("v_lshrrev_b32 v3, 5, v1")
    a("v_lshl_add_u32 v2, v3, 13, v2")
    a("v_add_u32 v4, 4096, v2")
    for t in range(8):
        a("buffer_load_dwordx2 v[%d:%d], v%d, s[%d:%d], 0 offen offset:%d%s" % (64 + 2 * t, 65 + 2 * t, 2 if t < 4 else 4, SRD_D, SRD_D + 3, 1024 * (t & 3), HO))
    a("s_lshl_b32 s%d, s%d, 6" % (S_T0, S_WAVE))
    a("s_add_u32 s%d, s%d, s%d" % (S_T0, S_T0, S_COL0))
    a("v_add_u32 v3, s%d, v1" % S_T0)
    a("v_lshlrev_b32 v3, 2, v3")
    for t in range(8):
        a("s_mov_b32 s%d, %d" % (S_T1, t * F * 4))
        a("buffer_load_dword v%d, v3, s[%d:%d], s%d offen%s" % (96 + t, SRD_E, SRD_E + 3, S_T1, HO))


def k3_stats_fin(a, c, S_WAVE):
    a("s_waitcnt vmcnt(0)")
    for t in range(1, 8):
        a("v_pk_add_f32 v[64:65], v[64:65], v[%d:%d]" % (64 + 2 * t, 65 + 2 * t))
    for t in range(1, 8):
        a("v_add_f32 v96, v96, v%d" % (96 + t))
    a("v_mov_b32 v%d, v64" % V_SUM)
    a("v_mov_b32 v%d, v65" % V_SQ)
    a("v_mov_b32 v%d, v96" % V_CS0)
    for r in (V_SUM2, V_SQ2, V_CS1):
        a("v_mov_b32 v%d, 0" % r)
    stats_finish(a, c, S_WAVE)


def gen_k3(a):
    name = "k3_kernel"
    c = Cfg(256, 3)
    kernel_header(a, name, 256)
    a("s_cmp_ge_u32 s%d, 28" % S_J)
    a("s_cbranch_scc1 L_k3_owg")
    a("s_and_b32 s%d, s%d, 3" % (S_T0, S_XCD))
    a("s_lshl_b32 s%d, s%d, 2" % (S_T0, S_T0))
    a("s_and_b32 s%d, s%d, 3" % (S_T1, S_J))
    a("s_add_u32 s%d, s%d, s%d" % (S_RB, S_T0, S_T1))
    a("s_lshr_b32 s%d, s%d, 2" % (S_T0, S_XCD))
    a("s_mul_i32 s%d, s%d, 7" % (S_T0, S_T0))
    a("s_lshr_b32 s%d, s%d, 2" % (S_T1, S_J))
    a("s_add_u32 s%d, s%d, s%d" % (S_CT, S_T0, S_T1))
    a("s_lshl_b32 s%d, s%d, 7" % (S_ROW0, S_RB))
    a("s_lshl_b32 s%d, s%d, 8" % (S_COL0, S_CT))
    a("s_waitcnt lgkmcnt(0)")
    make_srd(a, SRD_A, P_WS, WS_X1, S * D * 2)
    make_srd(a, SRD_B, P_W3, 0, D * F * 2)
    make_srd(a, SRD_C, P_WS, WS_ACT, S * F * 2)
    a("s_mov_b32 s%d, %d" % (S_LDB, F * 2))
    a("s_mov_b32 s%d, 32" % S_SA)
    a("s_mov_b32 s%d, 64" % S_SB)
    a("s_cmp_ge_u32 s%d, 4" % S_WAVE)
    a("s_cbranch_scc1 L_k3_loader")
    k3_stats_from_partials(a, c)
    compute_addr_setup(a, c)
    zero_acc(a, V_ACC, 128)
    pf = None
    if "nopf" not in EXP:
        pf = pf_stream_setup(a, [(P_W4, D * F * 2, w, 4) for w in range(4)], 16)
    compute_start(a, c)
    compute_loop(a, c, 16, V_ACC, True, pf)
    stamp(a, 2)
    a("s_waitcnt lgkmcnt(0)")
    xfer_send(a)
    a("s_waitcnt lgkmcnt(0)")
    a("s_barrier")
    a.label("L_k3_epi")
    epi_ln_gelu(a, c, SRD_C, F * 2, None)
    a("s_branch L_%s_cdone" % name)
    a.label("L_k3_loader")
    a("s_sub_u32 s%d, s%d, 4" % (S_LW, S_WAVE))
    loader_a_offsets(a, V_LA, 2048)
    loader_b_offsets_big(a, V_LB)
    loader_loop(a, c, [(16, SRD_A, SRD_B, V_LA, V_LB, 64 * F * 2)], None)
    a("s_barrier")
    if NI_EPI == 2:
        xfer_recv(a)
        a("s_branch L_k3_epi")
    else:
        a("s_branch L_%s_ldone" % name)
    a.label("L_k3_owg")
    gen_owg(a)
    a("s_branch L_%s_cdone" % name)
    kernel_footer(a, name, 2)
    descriptor(a, name)
    return name, 256, c.LDS_TOTAL


def gen_owg(a):
    S_HEAD = S_CT
    a("s_sub_u32 s%d, s%d, 28" % (S_T0, S_J))
    a("s_lshl_b32 s%d, s%d, 2" % (S_T1, S_XCD))
    a("s_add_u32 s%d, s%d, s%d" % (S_HEAD, S_T0, S_T1))
    a("s_waitcnt lgkmcnt(0)")
    make_srd(a, SRD_A, P_WS, WS_KVB, 65536)
    make_srd(a, SRD_B, P_WS, WS_ZB, 2048)
    make_srd(a, SRD_C, P_WS, WS_PQ, S * D * 2)
    make_srd(a, SRD_D, P_WS, WS_O, S * D * 2)
    make_srd(a, SRD_E, P_X, 0, S * D * 2)
    make_srd(a, SRD_A2, P_WS, WS_G, 8192)
    a("v_and_b32 v2, 31, v1")
    a("v_lshrrev_b32 v3, 5, v1")
    a("v_lshlrev_b32 v3, 4, v3")
    a("v_lshlrev_b32 v4, 5, v3")
    a("v_lshl_add_u32 v4, v2, 3, v4")
    a("s_lshl_b32 s%d, s%d, 13" % (S_T0, S_WAVE))
    a("v_add_u32 v4, s%d, v4" % S_T0)
    a("s_lshl_b32 s%d, s%d, 8" % (S_T0, S_WAVE))
    a("v_add_u32 v5, s%d, v3" % S_T0)
    a("s_lshl_b32 s%d, s%d, 6" % (S_T1, S_HEAD))
    a("v_add_u32 v6, s%d, v2" % S_T1)
    a("v_lshlrev_b32 v6, 11, v6")
    a("v_add3_u32 v6, v6, v3, s%d" % S_T0)
    a("v_add_u32 v7, 0x10000, v6")
    KVB, ZB, PQ = 16, 48, 80
    for h in range(4):
        for m in range(2):
            for q in range(2):
                a("buffer_load_dwordx2 v[%d:%d], v%d, s[%d:%d], 0 offen offset:%d%s" % (KVB + 8 * h + 4 * m + 2 * q, KVB + 8 * h + 4 * m + 2 * q + 1, 4 if h < 2 else 8, SRD_A, SRD_A + 3, 2048 * (h & 1) + 1024 * m + 256 * q, HO))
        if h == 1:
            a("v_add_u32 v8, 4096, v4")
    for h in range(4):
        for m in range(2):
            a("buffer_load_dwordx4 v[%d:%d], v5, s[%d:%d], 0 offen offset:%d%s" % (ZB + 8 * h + 4 * m, ZB + 8 * h + 4 * m + 3, SRD_B, SRD_B + 3, 64 * h + 32 * m, HO))
    for rb in range(2):
        for h in range(4):
            for m in range(2):
                b = PQ + 32 * rb + 8 * h + 4 * m
                a("buffer_load_dwordx4 v[%d:%d], v%d, s[%d:%d], 0 offen offset:%d%s" % (b, b + 3, 6 + rb, SRD_C, SRD_C + 3, 64 * h + 32 * m, HO))
    a("s_waitcnt vmcnt(0)")
    NUM = 144
    t = 0
    OVST, OVW, OVR, OVAT, OVD = 9, 240, 10, 244, 16
    a("s_lshl_b32 s%d, s%d, 6" % (S_T2, S_HEAD))
    a("s_lshl_b32 s%d, s%d, 8" % (S_T3, S_WAVE))
    line_store_setup(a, 2048, OVST, OVW, OVR, S_T2, S_T3, 65536)
    for rb in range(2):
        for h in range(4):
            nb = NUM + 48 * (t & 1)
            db = nb + 16
            tp = nb + 32
            for m in range(2):
                cin_n = "0" if m == 0 else "v[%d:%d]" % (nb, nb + 15)
                cin_d = "0" if m == 0 else "v[%d:%d]" % (db, db + 15)
                b = PQ + 32 * rb + 8 * h + 4 * m
                a("v_mfma_f32_32x32x16_bf16 v[%d:%d], v[%d:%d], v[%d:%d], %s" % (nb, nb + 15, KVB + 8 * h + 4 * m, KVB + 8 * h + 4 * m + 3, b, b + 3, cin_n))
                a("v_mfma_f32_32x32x16_bf16 v[%d:%d], v[%d:%d], v[%d:%d], %s" % (db, db + 15, ZB + 8 * h + 4 * m, ZB + 8 * h + 4 * m + 3, b, b + 3, cin_d))
            a("s_nop 15")
            a("s_nop 3")
            bf16_round(a, db, db)
            a("v_add_f32 v%d, %s, v%d" % (db, f32(1e-6), db))
            bf16_round(a, db, db)
            a("v_rcp_f32 v%d, v%d" % (db, db))
            round_regs_bf16(a, nb, 16, tp)
            for p in range(8):
                a("v_pk_mul_f32 v[%d:%d], v[%d:%d], v[%d:%d] op_sel:[0,0] op_sel_hi:[1,0]" % (nb + 2 * p, nb + 2 * p + 1, nb + 2 * p, nb + 2 * p + 1, db, db + 1))
            off = 4096 * ((t >> 1) & 1)
            line_pack_write(a, nb, tp + 8, OVW, h & 1, off)
            if h & 1:
                vd = PQ + 32 * rb + 16 * (h >> 1)
                line_read(a, vd, OVR, off)
                a("s_waitcnt lgkmcnt(0)")
                line_store(a, vd, OVST, OVAT, SRD_D, 2048, rb, HO, 128 * (h >> 1))
            t += 1
    if "nopf" not in EXP:
        a("v_lshlrev_b32 v%d, 7, v1" % 14)
        prefetch_jobs(a, [(P_W4, D * F * 2)], 14, 15)


def gate_job(a, s_row, R=128):
    GW, AC, TM, RS, XD = R, R + 8, R + 16, R + 24, R + 32
    make_srd(a, SRD_F, P_GATE, 0, 2048)
    make_srd(a, SRD_E, P_X, 0, S * D * 2)
    a("v_lshlrev_b32 v2, 4, v1")
    a("buffer_load_dwordx4 v[%d:%d], v2, s[%d:%d], 0 offen" % (GW, GW + 3, SRD_F, SRD_F + 3))
    a("buffer_load_dwordx4 v[%d:%d], v2, s[%d:%d], 0 offen offset:1024" % (GW + 4, GW + 7, SRD_F, SRD_F + 3))
    a("s_lshl_b32 s%d, s%d, 11" % (S_T0, s_row))
    for t in range(8):
        a("buffer_load_dwordx4 v[%d:%d], v2, s[%d:%d], s%d offen" % (XD + 8 * t, XD + 3 + 8 * t, SRD_E, SRD_E + 3, S_T0))
        a("buffer_load_dwordx4 v[%d:%d], v2, s[%d:%d], s%d offen offset:1024" % (XD + 4 + 8 * t, XD + 7 + 8 * t, SRD_E, SRD_E + 3, S_T0))
        a("s_add_u32 s%d, s%d, 2048" % (S_T0, S_T0))
    for t in range(8):
        a("v_mov_b32 v%d, 0" % (AC + t))
    a("s_waitcnt vmcnt(0)")
    make_srd(a, SRD_F, P_WS, WS_G, 8192)
    for r in range(8):
        for t in range(8):
            a("v_dot2_f32_bf16 v%d, v%d, v%d, v%d" % (AC + t, XD + 8 * t + r, GW + r, AC + t))
    a("s_nop 3")
    for pat in (0x041F, 0x081F, 0x101F, 0x201F, 0x401F):
        for t in range(8):
            a("ds_swizzle_b32 v%d, v%d offset:0x%x" % (TM + t, AC + t, pat))
        a("s_waitcnt lgkmcnt(0)")
        for t in range(8):
            a("v_add_f32 v%d, v%d, v%d" % (AC + t, AC + t, TM + t))
    for t in range(8):
        a("v_mov_b32 v%d, v%d" % (TM + t, AC + t))
    a("s_nop 1")
    for t in range(8):
        a("v_permlane32_swap_b32 v%d, v%d" % (AC + t, TM + t))
    a("s_nop 1")
    for t in range(8):
        a("v_add_f32 v%d, v%d, v%d" % (AC + t, AC + t, TM + t))
    a("v_mov_b32 v%d, v%d" % (RS, AC))
    for t in range(1, 8):
        a("v_cmp_eq_u32 vcc, %d, v1" % t)
        a("s_nop 1")
        a("v_cndmask_b32 v%d, v%d, v%d, vcc" % (RS, RS, AC + t))
    bf16_round(a, RS, RS)
    a("v_mul_f32 v%d, %s, v%d" % (RS, f32(-LOG2E), RS))
    a("v_exp_f32 v%d, v%d" % (RS, RS))
    a("s_nop 0")
    a("v_add_f32 v%d, 1.0, v%d" % (RS, RS))
    a("v_rcp_f32 v%d, v%d" % (RS, RS))
    a("s_nop 0")
    bf16_round(a, RS, RS)
    a("v_add_u32 v3, s%d, v1" % s_row)
    a("v_lshlrev_b32 v3, 2, v3")
    a("s_mov_b64 exec, 0xff")
    a("buffer_store_dword v%d, v3, s[%d:%d], 0 offen%s" % (RS, SRD_F, SRD_F + 3, HO))
    a("s_mov_b64 exec, -1")


def gen_k4(a):
    name = "k4_kernel"
    c = Cfg(64, 6)
    kernel_header(a, name, 256)
    small_tile_decode(a)
    a("s_waitcnt lgkmcnt(0)")
    make_srd(a, SRD_A, P_WS, WS_O, S * D * 2)
    make_srd(a, SRD_B, P_WO, 0, D * D * 2)
    make_srd(a, SRD_A2, P_WS, WS_ACT, S * F * 2)
    make_srd(a, SRD_B2, P_W4, 0, F * D * 2)
    make_srd(a, SRD_C, P_OUT, 0, S * D * 2)
    make_srd(a, SRD_D, P_WS, WS_X1, S * D * 2)
    make_srd(a, SRD_E, P_WS, WS_G, 8192)
    a("s_cmp_ge_u32 s%d, 4" % S_WAVE)
    a("s_cbranch_scc1 L_k4_loader")
    VST, VLD, VX, VG = 200, 204, 208, 224
    epi_store_addr(a, c, 2048, VST, 2)
    a("v_lshrrev_b32 v3, 5, v1")
    a("v_lshlrev_b32 v3, 3, v3")
    for i in range(2):
        a("v_sub_u32 v%d, v%d, v3" % (VLD + i, VST + i))
    for i in range(2):
        load_resid(a, c, VX + 8 * i, VLD + i, SRD_D)
    for i in range(2):
        a("v_lshrrev_b32 v3, 11, v%d" % (VST + i))
        a("v_lshlrev_b32 v3, 2, v3")
        a("buffer_load_dword v%d, v3, s[%d:%d], 0 offen" % (VG + 2 * i, SRD_E, SRD_E + 3))
    compute_addr_setup(a, c)
    zero_acc(a, V_ACC, 64)
    compute_start(a, c)
    compute_loop(a, c, 16, V_ACC, True)
    compute_loop(a, c, 56, V_ACC + 32, True)
    stamp(a, 2)
    a("s_waitcnt vmcnt(0) lgkmcnt(0)")
    a("s_nop 15")
    for i in range(2):
        aa = V_ACC + 16 * i
        bb = V_ACC + 32 + 16 * i
        g = VG + 2 * i
        a("v_sub_f32 v%d, 1.0, v%d" % (g + 1, g))
        bf16_round(a, g + 1, g + 1)
        round_regs_bf16(a, aa, 16, 16)
        round_regs_bf16(a, bb, 16, 24)
        unpack_bf16(a, 32, VX + 8 * i, 8)
        for p in range(8):
            a("v_pk_add_f32 v[%d:%d], v[%d:%d], v[%d:%d]" % (bb + 2 * p, bb + 2 * p + 1, bb + 2 * p, bb + 2 * p + 1, 32 + 2 * p, 33 + 2 * p))
        round_regs_bf16(a, bb, 16, 24)
        for p in range(8):
            a("v_pk_mul_f32 v[%d:%d], v[%d:%d], v[%d:%d] op_sel:[0,0] op_sel_hi:[1,0]" % (aa + 2 * p, aa + 2 * p + 1, aa + 2 * p, aa + 2 * p + 1, g, g + 1))
        for p in range(8):
            a("v_pk_mul_f32 v[%d:%d], v[%d:%d], v[%d:%d] op_sel:[0,1] op_sel_hi:[1,1]" % (bb + 2 * p, bb + 2 * p + 1, bb + 2 * p, bb + 2 * p + 1, g, g + 1))
        round_regs_bf16(a, aa, 16, 16)
        round_regs_bf16(a, bb, 16, 24)
        for p in range(8):
            a("v_pk_add_f32 v[%d:%d], v[%d:%d], v[%d:%d]" % (aa + 2 * p, aa + 2 * p + 1, aa + 2 * p, aa + 2 * p + 1, bb + 2 * p, bb + 2 * p + 1))
        pack_swap_store(a, aa, 48 + 8 * i, VST + i, SRD_C, 0)
    a("s_branch L_%s_cdone" % name)
    a.label("L_k4_loader")
    a("s_sub_u32 s%d, s%d, 4" % (S_LW, S_WAVE))
    loader_a_offsets(a, V_LA, 2048)
    loader_b_offsets_small(a, V_LB, 2048)
    loader_a_offsets(a, V_LA2, F * 2)
    loader_loop(a, c, [(16, SRD_A, SRD_B, V_LA, V_LB, 64 * 2048), (56, SRD_A2, SRD_B2, V_LA2, V_LB, 64 * 2048)], None)
    kernel_footer(a, name, 3)
    descriptor(a, name)
    return name, 256, c.LDS_TOTAL


SRD_FL = SRD_B2


def flag_srd(a):
    make_srd(a, SRD_FL, P_WS, WS_FLAG, 8192)


def flag_signal(a, base, idx_sgpr):
    flag_srd(a)
    if idx_sgpr is None:
        a("v_mov_b32 v2, %d" % base)
    else:
        a("s_lshl_b32 s%d, s%d, 7" % (S_T0, idx_sgpr))
        a("s_add_u32 s%d, s%d, %d" % (S_T0, S_T0, base))
        a("v_mov_b32 v2, s%d" % S_T0)
    a("v_mov_b32 v3, 1")
    a("s_mov_b64 exec, 1")
    a("buffer_atomic_add v3, v2, s[%d:%d], 0 offen sc1" % (SRD_FL, SRD_FL + 3))
    a("s_mov_b64 exec, -1")


def flag_poll(a, base, idx_sgpr, target):
    flag_srd(a)
    if idx_sgpr is None:
        a("v_mov_b32 v2, %d" % base)
    else:
        a("s_lshl_b32 s%d, s%d, 7" % (S_T0, idx_sgpr))
        a("s_add_u32 s%d, s%d, %d" % (S_T0, S_T0, base))
        a("v_mov_b32 v2, s%d" % S_T0)
    poll_loop(a, target)


def flag_poll_multi(a, items, vt=125):
    flag_srd(a)
    a("v_mov_b32 v2, %d" % FL_RED)
    a("v_mov_b32 v%d, 0" % vt)
    for n, (base, idx, target) in enumerate(items):
        if idx is None:
            a("s_mov_b32 s%d, %d" % (S_T0, base))
        else:
            a("s_lshl_b32 s%d, s%d, 7" % (S_T0, idx))
            a("s_add_u32 s%d, s%d, %d" % (S_T0, S_T0, base))
        a("v_writelane_b32 v2, s%d, %d" % (S_T0, n))
        a("s_mov_b32 s%d, %d" % (S_T0, target))
        a("v_writelane_b32 v%d, s%d, %d" % (vt, S_T0, n))
    lp, ld = a.newlabel("poll"), a.newlabel("polld")
    a("s_mov_b32 s%d, 0x400000" % S_T1)
    a.label(lp)
    a("buffer_load_dword v3, v2, s[%d:%d], 0 offen sc1" % (SRD_FL, SRD_FL + 3))
    a("s_waitcnt vmcnt(0)")
    a("v_cmp_lt_u32 vcc, v3, v%d" % vt)
    a("s_sub_u32 s%d, s%d, 1" % (S_T1, S_T1))
    a("s_cmp_eq_u32 s%d, 0" % S_T1)
    a("s_cbranch_scc1 %s" % ld)
    a("s_cmp_eq_u64 vcc, 0")
    a("s_cbranch_scc1 %s" % ld)
    a("s_sleep 1")
    a("s_branch %s" % lp)
    a.label(ld)


def poll_loop(a, target):
    lp, ld = a.newlabel("poll"), a.newlabel("polld")
    a("s_mov_b32 s%d, 0x400000" % S_T1)
    a.label(lp)
    a("buffer_load_dword v3, v2, s[%d:%d], 0 offen sc1" % (SRD_FL, SRD_FL + 3))
    a("s_waitcnt vmcnt(0)")
    a("v_readfirstlane_b32 s%d, v3" % S_T0)
    a("s_sub_u32 s%d, s%d, 1" % (S_T1, S_T1))
    a("s_cmp_eq_u32 s%d, 0" % S_T1)
    a("s_cbranch_scc1 %s" % ld)
    a("s_cmp_ge_u32 s%d, %d" % (S_T0, target))
    a("s_cbranch_scc1 %s" % ld)
    a("s_sleep 1")
    a("s_branch %s" % lp)
    a.label(ld)


def wave0(a, fn):
    l = a.newlabel("w0")
    a("s_cmp_lg_u32 s%d, 0" % S_WAVE)
    a("s_cbranch_scc1 %s" % l)
    fn()
    a.label(l)


def p2_decode(a):
    small_tile_decode(a)
    make_srd(a, SRD_A, P_WS, WS_HS, S * D * 2)
    make_srd(a, SRD_B, P_W2, 0, D * D * 2)
    make_srd(a, SRD_C, P_WS, WS_X1, S * D * 2)
    make_srd(a, SRD_D, P_X, 0, S * D * 2)


def p3_decode(a):
    a("s_lshr_b32 s%d, s%d, 2" % (S_T0, S_XCD))
    a("s_mul_i32 s%d, s%d, 7" % (S_T0, S_T0))
    a("s_lshr_b32 s%d, s%d, 2" % (S_T1, S_J))
    a("s_add_u32 s%d, s%d, s%d" % (S_CT, S_T0, S_T1))
    a("s_lshl_b32 s%d, s%d, 8" % (S_COL0, S_CT))
    make_srd(a, SRD_A, P_WS, WS_X1, S * D * 2)
    make_srd(a, SRD_B, P_W3, 0, D * F * 2)
    make_srd(a, SRD_C, P_WS, WS_ACT, S * F * 2)
    a("s_mov_b32 s%d, %d" % (S_LDB, F * 2))
    a("s_mov_b32 s%d, 32" % S_SA)
    a("s_mov_b32 s%d, 64" % S_SB)


def p4_decode(a):
    a("s_lshr_b32 s%d, s2, 3" % S_J)
    a("s_bfe_u32 s%d, s%d, 0x20002" % (S_T0, S_J))
    a("s_xor_b32 s%d, s%d, 16" % (S_T1, S_J))
    a("s_cmp_eq_u32 s%d, 3" % S_T0)
    a("s_cselect_b32 s%d, s%d, s%d" % (S_J, S_T1, S_J))
    small_tile_decode(a)
    make_srd(a, SRD_A, P_WS, WS_O, S * D * 2)
    make_srd(a, SRD_B, P_WO, 0, D * D * 2)
    make_srd(a, SRD_A2, P_WS, WS_ACT, S * F * 2)
    make_srd(a, SRD_C, P_OUT, 0, S * D * 2)
    make_srd(a, SRD_D, P_WS, WS_X1, S * D * 2)
    make_srd(a, SRD_E, P_WS, WS_G, 8192)


def small_epi_setup(a, VLD, VST, VW, VR):
    a("s_lshl_b32 s%d, s%d, 5" % (S_T2, S_WAVE))
    a("s_add_u32 s%d, s%d, s%d" % (S_T2, S_T2, S_ROW0))
    a("s_lshl_b32 s%d, s%d, 1" % (S_T3, S_COL0))
    line_store_setup(a, 2048, VST, VW, VR, S_T2, S_T3, 98304)
    a("v_and_b32 v2, 31, v1")
    a("v_add_u32 v2, s%d, v2" % S_T2)
    a("v_lshrrev_b32 v3, 5, v1")
    a("v_lshlrev_b32 v3, 3, v3")
    a("v_lshl_add_u32 v2, v2, 11, v3")
    a("v_add_u32 v%d, s%d, v2" % (VLD, S_T3))


def load_resid2(a, dst, vaddr, srd, fl=""):
    for j in range(2):
        for g in range(4):
            a("buffer_load_dwordx2 v[%d:%d], v%d, s[%d:%d], 0 offen offset:%d%s" % (dst + 8 * j + 2 * g, dst + 8 * j + 2 * g + 1, vaddr, srd, srd + 3, 64 * j + 16 * g, fl))


def dbgstamp(a, slot, back):
    if "dbg" not in EXP:
        return
    l = a.newlabel("dbg")
    a("s_cmp_lg_u32 s2, 5")
    a("s_cbranch_scc1 %s" % l)
    a("s_cmp_lg_u32 s%d, 0" % S_WAVE)
    a("s_cbranch_scc1 %s" % l)
    a("s_memrealtime s[%d:%d]" % (S_TS, S_TS + 1))
    a("s_add_u32 s%d, s%d, %d" % (S_TS + 4, P_DBG, 0))
    a("s_addc_u32 s%d, s%d, 0" % (S_TS + 5, P_DBG + 1))
    a("s_mov_b32 s%d, 256" % (S_TS + 6))
    a("s_mov_b32 s%d, 0x20000" % (S_TS + 7))
    a("s_waitcnt lgkmcnt(0)")
    a("v_mov_b32 v2, %d" % (slot * 4))
    a("v_mov_b32 v3, s%d" % S_TS)
    a("buffer_store_dword v3, v2, s[%d:%d], 0 offen" % (S_TS + 4, S_TS + 7))
    a("s_nop 1")
    a.label(l)


def mstamp(a, name):
    order = ["E1", "G2", "P2", "L2", "E2", "G3", "P3", "L3", "E3", "G4", "P4", "M4", "L4"]
    dbgstamp(a, 2 + order.index(name), True)
    sets = {"st0": ["G2", "G3", "G4", "L4"], "st1": ["E1", "G2", "P2", "L2"], "stA": ["P2", "L2", "E2", "G3"], "stB": ["G3", "P3", "L3", "E3"], "stC": ["G4", "P4", "M4", "L4"]}
    cur = "st0"
    for k in sets:
        if k in EXP:
            cur = k
    if name in sets[cur]:
        stamp(a, 1 + sets[cur].index(name))


def gen_k234(a):
    global INSTR
    name = MAIN
    cs2 = Cfg(64, 6)
    cs2.aflag = HO
    cb = Cfg(256, 3)
    cb.aflag = HO
    cs4 = Cfg(64, 6)
    cs4.aflag = HO
    gen_k1(a)
    a.label("L_m_e1c")
    a("s_waitcnt vmcnt(0)")
    mstamp(a, "E1")
    a("s_barrier")

    def sig1():
        lq, lk, ld = a.newlabel("s1q"), a.newlabel("s1k"), a.newlabel("s1d")
        a("s_cmp_eq_u32 s%d, 0" % S_TYPE)
        a("s_cbranch_scc1 %s" % lq)
        a("s_cmp_eq_u32 s%d, 1" % S_TYPE)
        a("s_cbranch_scc1 %s" % lk)
        flag_signal(a, FL_H, S_RB)
        a("s_branch %s" % ld)
        a.label(lq)
        flag_signal(a, FL_Q, S_RB)
        a("s_branch %s" % ld)
        a.label(lk)
        flag_signal(a, FL_KV, None)
        a.label(ld)
        small_tile_decode(a)
        a("s_max_u32 s%d, s%d, 1" % (S_T2, S_RB))
        a("s_sub_u32 s%d, s%d, 1" % (S_T2, S_T2))
        a("s_min_u32 s%d, s%d, 14" % (S_T3, S_RB))
        a("s_add_u32 s%d, s%d, 1" % (S_T3, S_T3))
        flag_poll_multi(a, [(FL_H, S_RB, 4), (FL_H, S_T2, 4), (FL_H, S_T3, 4)])
    wave0(a, sig1)
    a("s_barrier")
    mstamp(a, "G2")
    p2_decode(a)
    c = cs2
    VST, VLD, VW, VR, VX, VAT = 200, 201, 204, 202, 208, 228
    small_epi_setup(a, VLD, VST, VW, VR)
    load_resid2(a, VX, VLD, SRD_D)
    compute_addr_setup(a, c)
    zero_acc(a, V_ACC, 32)
    pf = pf_stream_setup(a, [(P_WO, D * D * 2, w, 4) for w in range(4)], 16)
    a("s_barrier")
    mstamp(a, "P2")
    for r in frag_reads(c, 0, 0):
        a(r)
    compute_loop(a, c, 16, V_ACC, True, pf)
    mstamp(a, "L2")
    a("s_waitcnt vmcnt(0) lgkmcnt(0)")
    a("s_nop 15")
    for j in range(2):
        acc = V_ACC + 16 * j
        round_regs_bf16(a, acc, 16, 16)
        unpack_bf16(a, 32, VX + 8 * j, 8)
        for p in range(8):
            a("v_pk_add_f32 v[%d:%d], v[%d:%d], v[%d:%d]" % (acc + 2 * p, acc + 2 * p + 1, acc + 2 * p, acc + 2 * p + 1, 32 + 2 * p, 33 + 2 * p))
        line_pack_write(a, acc, 48 + 8 * j, VW, j, 0)
    line_read(a, 80, VR, 0)
    make_srd(a, SRD_E, P_WS, WS_XS, 256 * 1024)
    a("v_mov_b32 v64, 0x3f803f80")
    for r in range(4):
        a("v_mov_b32 v%d, 0" % (68 + r))
    for p in range(16):
        b = 68 + 2 * (p & 1)
        a("v_dot2_f32_bf16 v%d, v%d, v64, v%d" % (b, 48 + p, b))
        a("v_dot2_f32_bf16 v%d, v%d, v%d, v%d" % (b + 1, 48 + p, 48 + p, b + 1))
    a("s_waitcnt lgkmcnt(0)")
    line_store(a, 80, VST, VAT, SRD_C, 2048, 0, HO)
    a("s_lshl_b32 s%d, s%d, 4" % (S_T0, S_RB))
    a("s_add_u32 s%d, s%d, s%d" % (S_T0, S_T0, S_CT))
    a("s_lshl_b32 s%d, s%d, 10" % (S_T0, S_T0))
    a("s_lshl_b32 s%d, s%d, 8" % (S_T1, S_WAVE))
    a("s_add_u32 s%d, s%d, s%d" % (S_T0, S_T0, S_T1))
    a("v_pk_add_f32 v[68:69], v[68:69], v[70:71]")
    a("v_mov_b32 v70, v68")
    a("v_mov_b32 v71, v69")
    a("s_nop 1")
    a("v_permlane32_swap_b32 v68, v70")
    a("v_permlane32_swap_b32 v69, v71")
    a("s_nop 1")
    a("v_pk_add_f32 v[68:69], v[68:69], v[70:71]")
    a("v_lshlrev_b32 v3, 3, v1")
    a("v_add_u32 v3, s%d, v3" % S_T0)
    a("s_mov_b32 exec_hi, 0")
    a("buffer_store_dwordx2 v[68:69], v3, s[%d:%d], 0 offen%s" % (SRD_E, SRD_E + 3, HO))
    a("s_mov_b64 exec, -1")
    a("s_waitcnt vmcnt(0)")
    mstamp(a, "E2")
    a("s_barrier")

    def sig2():
        l, l2, l3 = a.newlabel("slow"), a.newlabel("sigd"), a.newlabel("isowg")
        a("s_and_b32 s%d, s%d, 7" % (S_T2, S_CT))
        a("s_cmp_eq_u32 s%d, 3" % S_T2)
        a("s_cbranch_scc1 %s" % l)
        flag_signal(a, FL_X1, S_RB)
        a("s_branch %s" % l2)
        a.label(l)
        flag_signal(a, FL_X1S, S_RB)
        a.label(l2)
        a("s_cmp_ge_u32 s%d, 28" % S_J)
        a("s_cbranch_scc1 %s" % l3)
        flag_poll(a, FL_X1, S_RB, 14)
        a("s_branch %s_d" % l3)
        a.label(l3)
        a("s_sub_u32 s%d, s%d, 28" % (S_T2, S_J))
        a("s_lshl_b32 s%d, s%d, 2" % (S_T3, S_XCD))
        a("s_add_u32 s%d, s%d, s%d" % (S_T2, S_T2, S_T3))
        a("s_lshr_b32 s%d, s%d, 1" % (S_T2, S_T2))
        flag_poll_multi(a, [(FL_KV, None, 128), (FL_Q, S_T2, 4)])
        a.label(l3 + "_d")
    wave0(a, sig2)
    a("s_barrier")
    mstamp(a, "G3")
    a("s_cmp_ge_u32 s%d, 28" % S_J)
    a("s_cbranch_scc1 L_m_owg")
    c = cb
    p3_decode(a)
    compute_addr_setup(a, c)
    zero_acc(a, V_ACC, 128)
    pf = pf_stream_setup(a, [(P_W4, D * F * 2, w, 4) for w in range(4)], 16)
    a("s_barrier")
    mstamp(a, "P3")
    for r in frag_reads(c, 0, 0):
        a(r)
    compute_loop(a, c, 11, V_ACC, True, pf)

    def poll3():
        flag_poll_multi(a, [(FL_X1S, S_RB, 2), (FL_KV, None, 128)])
    wave0(a, poll3)
    compute_loop(a, c, 5, V_ACC, True, pf)
    mstamp(a, "L3")
    a("s_waitcnt lgkmcnt(0)")
    a("s_mov_b32 s%d, 0" % S_STOFF)
    a("s_nop 15")
    epi_ln_gelu(a, c, SRD_C, F * 2, None)
    a("s_waitcnt vmcnt(0)")
    mstamp(a, "E3")
    a("s_barrier")
    wave0(a, lambda: flag_signal(a, FL_ACT, S_RB))
    a.label("L_m_c4")
    def poll4():
        flag_poll_multi(a, [(FL_O, S_RB, 2), (FL_X1, S_RB, 14), (FL_X1S, S_RB, 2), (FL_Q, S_RB, 4)])
    wave0(a, poll4)
    a("s_barrier")
    mstamp(a, "G4")
    c = cs4
    p4_decode(a)
    VST, VLD, VW, VR, VX, VAT, VG = 200, 201, 204, 202, 208, 228, 224
    small_epi_setup(a, VLD, VST, VW, VR)
    load_resid2(a, VX, VLD, SRD_D, HO)
    a("v_lshrrev_b32 v3, 11, v%d" % VLD)
    a("v_lshlrev_b32 v3, 2, v3")
    a("buffer_load_dword v%d, v3, s[%d:%d], 0 offen%s" % (VG, SRD_E, SRD_E + 3, HO))
    compute_addr_setup(a, c)
    zero_acc(a, V_ACC, 64)
    a("s_barrier")
    mstamp(a, "P4")
    for r in frag_reads(c, 0, 0):
        a(r)
    compute_loop(a, c, 10, V_ACC, True)
    wave0(a, lambda: flag_poll(a, FL_ACT, S_RB, 14))
    compute_loop(a, c, 6, V_ACC, True)
    mstamp(a, "M4")
    compute_loop(a, c, 56, V_ACC + 32, True)
    mstamp(a, "L4")
    a("s_waitcnt vmcnt(0) lgkmcnt(0)")
    a("s_nop 15")
    g = VG
    a("v_sub_f32 v%d, 1.0, v%d" % (g + 1, g))
    bf16_round(a, g + 1, g + 1)
    for j in range(2):
        aa = V_ACC + 16 * j
        bb = V_ACC + 32 + 16 * j
        round_regs_bf16(a, aa, 16, 16)
        round_regs_bf16(a, bb, 16, 24)
        unpack_bf16(a, 32, VX + 8 * j, 8)
        for p in range(8):
            a("v_pk_add_f32 v[%d:%d], v[%d:%d], v[%d:%d]" % (bb + 2 * p, bb + 2 * p + 1, bb + 2 * p, bb + 2 * p + 1, 32 + 2 * p, 33 + 2 * p))
        round_regs_bf16(a, bb, 16, 24)
        for p in range(8):
            a("v_pk_mul_f32 v[%d:%d], v[%d:%d], v[%d:%d] op_sel:[0,0] op_sel_hi:[1,0]" % (aa + 2 * p, aa + 2 * p + 1, aa + 2 * p, aa + 2 * p + 1, g, g + 1))
        for p in range(8):
            a("v_pk_mul_f32 v[%d:%d], v[%d:%d], v[%d:%d] op_sel:[0,1] op_sel_hi:[1,1]" % (bb + 2 * p, bb + 2 * p + 1, bb + 2 * p, bb + 2 * p + 1, g, g + 1))
        round_regs_bf16(a, aa, 16, 16)
        round_regs_bf16(a, bb, 16, 24)
        for p in range(8):
            a("v_pk_add_f32 v[%d:%d], v[%d:%d], v[%d:%d]" % (aa + 2 * p, aa + 2 * p + 1, aa + 2 * p, aa + 2 * p + 1, bb + 2 * p, bb + 2 * p + 1))
        line_pack_write(a, aa, 48 + 8 * j, VW, j, 0)
    line_read(a, 80, VR, 0)
    a("s_waitcnt lgkmcnt(0)")
    line_store(a, 80, VST, VAT, SRD_C, 2048, 0, "")
    if "dbg" in EXP:
        a("s_waitcnt vmcnt(0)")
    dbgstamp(a, 15, True)
    if INSTR:
        a("s_waitcnt vmcnt(0)")
        stamp_flush(a, 0, 5)
    a("s_branch L_%s_end" % name)
    a.label("L_m_owg")
    a("s_sub_u32 s%d, s%d, 28" % (S_T0, S_J))
    a("s_lshl_b32 s%d, s%d, 2" % (S_T1, S_XCD))
    a("s_add_u32 s%d, s%d, s%d" % (S_CT, S_T0, S_T1))
    kv_reduce(a)
    a("s_barrier")

    def sigr():
        flag_signal(a, FL_RED, None)
        flag_poll(a, FL_RED, None, 32)
    wave0(a, sigr)
    a("s_barrier")
    gen_owg(a)
    a("s_waitcnt vmcnt(0)")
    mstamp(a, "E3")
    a("s_barrier")
    a("s_cmp_ge_u32 s%d, 4" % S_WAVE)
    a("s_cbranch_scc1 L_m_loader4o")

    def sigo():
        a("s_lshr_b32 s%d, s%d, 1" % (S_T2, S_CT))
        flag_signal(a, FL_O, S_T2)
    wave0(a, sigo)
    a("s_branch L_m_c4")
    a.label("L_m_loader2")
    keep = INSTR
    INSTR = False
    p2_decode(a)
    loader_a_offsets(a, V_LA, 2048)
    loader_b_offsets_small(a, V_LB, 2048)

    def gate2():
        l, lg = a.newlabel("nocs"), a.newlabel("gjob")
        a("s_cmp_eq_u32 s%d, 0" % S_TYPE)
        a("s_cbranch_scc1 %s" % lg)
        a("s_cmp_lg_u32 s%d, 1" % S_TYPE)
        a("s_cbranch_scc1 %s" % l)
        a("s_cmp_ge_u32 s%d, 448" % S_C0)
        a("s_cbranch_scc1 %s" % l)
        colsum_job(a, S_C0)
        a("s_branch %s" % l)
        a.label(lg)
        gate_job(a, S_C0)
        a.label(l)
        a("s_waitcnt vmcnt(0)")
        a("s_barrier")
        a("s_barrier")
    loader_loop(a, cs2, [(16, SRD_A, SRD_B, V_LA, V_LB, 64 * 2048)], None, gate2)
    a("s_cmp_lt_u32 s%d, 28" % S_J)
    a("s_cbranch_scc1 L_m_loader3")
    a("s_barrier")
    a("s_barrier")
    a("s_branch L_m_owg")
    a.label("L_m_loader3")
    p3_decode(a)
    loader_b_offsets_big(a, V_LB)

    def gate3():
        a("s_barrier")
        a("s_barrier")
    kb3 = 64 * F * 2
    loader_loop(a, cb, [(n, SRD_A, SRD_B, V_LA, V_LB, kb3, c0) for n, c0 in ((3, 0), (7, 4), (4, 12), (1, 3), (1, 11))], None, gate3,
                (lambda: k3_stats_issue(a, cb, S_LW), 16, lambda: k3_stats_fin(a, cb, S_LW)))
    p4_decode(a)
    make_srd(a, SRD_B2, P_W4, 0, F * D * 2)
    loader_b_offsets_small(a, V_LB, 2048)
    loader_a_offsets(a, V_LA2, F * 2)
    a("s_mov_b32 s%d, 1" % S_C0)
    a("s_branch L_m_loader4")
    a.label("L_m_loader4o")
    p4_decode(a)
    make_srd(a, SRD_B2, P_W4, 0, F * D * 2)
    loader_a_offsets(a, V_LA, 2048)
    loader_b_offsets_small(a, V_LB, 2048)
    loader_a_offsets(a, V_LA2, F * 2)
    a("s_mov_b32 s%d, 0" % S_C0)
    a.label("L_m_loader4")

    def gate4():
        l = a.newlabel("noe3")
        a("s_cmp_eq_u32 s%d, 0" % S_C0)
        a("s_cbranch_scc1 %s" % l)
        a("s_barrier")
        a.label(l)
        a("s_barrier")
    loader_loop(a, cs4, [(16, SRD_A, SRD_B, V_LA, V_LB, 64 * 2048), (56, SRD_A2, SRD_B2, V_LA2, V_LB, 64 * 2048)], None, gate4)
    INSTR = keep
    a.label("L_%s_end" % name)
    a("s_endpgm")
    a.label("L_code_end")
    descriptor(a, name)
    return name, 256, cb.LDS_TOTAL


def main():
    global INSTR
    if "--instr" in sys.argv:
        INSTR = True
        sys.argv.remove("--instr")
    for x in list(sys.argv):
        if x.startswith("--exp="):
            EXP.update(x[6:].split(","))
            sys.argv.remove(x)
    body = Asm()
    launches = []
    for g in (gen_k234,):
        launches.append(g(body))
    hdr = []
    for name, nwg, lds in launches:
        hdr.append("; @launch grid=(%d,1,1) block=(512,1,1) lds=%d" % (nwg, lds))
    hdr.append('.amdgcn_target "amdgcn-amd-amdhsa--gfx950"')
    hdr.append(".text")
    out = "\n".join(hdr + body.lines) + "\n"
    path = sys.argv[1] if len(sys.argv) > 1 else "gated_mix__linear_attn_block__mixer_s_mlp__prompt.s"
    open(path, "w").write(out)
    print("wrote", path, len(out), "bytes")


if __name__ == "__main__":
    main()
```

```python
import struct, sys

MB = 1 << 20
WS_PQ = 0 * MB
WS_HS = 4 * MB
WS_X1 = 8 * MB
WS_O = 12 * MB
WS_ACT = 16 * MB
WS_KVP = 32 * MB
WS_ZP = 34 * MB
WS_G = 35 * MB
WS_XS = 37 * MB
WS_FLAG = 39 * MB
WS_PX = 48 * MB
FL_PX = 24576
FLAG_BYTES = 32768
WS_XST = 38 * MB + 512 * 1024
WS_CS1 = 38 * MB + 768 * 1024
FL_X1, FL_ACT, FL_O, FL_RED, FL_X1S = 0, 2048, 6144, 20480, 8192
FL_H, FL_Q, FL_KV = 10240, 12288, 20480 + 128
FL_XS, FL_CS1 = 14336, 20480 + 256
MAIN = "gated_mix__linear_attn_block__mixer_s_mlp__prompt_kernel"
MERGED = True
HO = " sc1"
WS_CSP = 38 * MB
WS_KVB = 36 * MB
WS_ZB = 36 * MB + 65536

S, D, F = 2048, 1024, 3584


def f32(x):
    return "0x%08x" % struct.unpack("<I", struct.pack("<f", x))[0]


LOG2E = 1.4426950408889634
GC0 = -2.0 * 0.7978845608028654 * LOG2E
GC1 = GC0 * 0.044715


class Asm:
    def __init__(self):
        self.lines = []
        self.uid = 0

    def __call__(self, s):
        for ln in s.strip("\n").split("\n"):
            self.lines.append("    " + ln.strip())

    def label(self, l):
        self.lines.append(l + ":")

    def newlabel(self, base):
        self.uid += 1
        return "L_%s_%d" % (base, self.uid)

    def raw(self, s):
        self.lines.append(s)


def vr(a, n=1):
    return "v%d" % a if n == 1 else "v[%d:%d]" % (a, a + n - 1)


def sr(a, n=1):
    return "s%d" % a if n == 1 else "s[%d:%d]" % (a, a + n - 1)


P_X, P_WQKV, P_WO, P_W1, P_W2, P_W3, P_W4, P_GATE, P_OUT, P_DBG, P_WS = 4, 6, 8, 12, 14, 16, 18, 20, 22, 24, 26
SRD_A, SRD_B, SRD_C, SRD_D, SRD_A2, SRD_B2, SRD_E, SRD_F = 28, 32, 36, 40, 44, 48, 52, 56
S_WAVE, S_ROW0, S_COL0, S_TYPE, S_LDB, S_SA, S_SB, S_CNT = 60, 61, 62, 63, 64, 65, 66, 67
S_KA, S_KB, S_BUF, S_T0, S_T1, S_T2, S_T3, S_LW = 68, 69, 70, 71, 72, 73, 74, 75
S_SHIFT, S_RB, S_CT, S_XCD, S_J, S_KBSTEP = 76, 77, 78, 79, 80, 81
S_EXEC = 82
S_C0 = 84


def make_srd(a, srd, ptr, off, nbytes):
    if off:
        a("s_add_u32 s%d, s%d, 0x%x" % (srd, ptr, off))
        a("s_addc_u32 s%d, s%d, 0" % (srd + 1, ptr + 1))
    else:
        a("s_mov_b32 s%d, s%d" % (srd, ptr))
        a("s_mov_b32 s%d, s%d" % (srd + 1, ptr + 1))
    a("s_mov_b32 s%d, 0x%x" % (srd + 2, nbytes))
    a("s_mov_b32 s%d, 0x20000" % (srd + 3))


def kernel_header(a, name, nwg):
    a.raw(".globl %s" % name)
    a.raw(".p2align 8")
    a.raw(".type %s,@function" % name)
    a.label(name)
    a("s_cmp_ge_u32 s2, %d" % nwg)
    a("s_cbranch_scc1 L_%s_end" % name)
    if INSTR:
        a("s_memrealtime s[%d:%d]" % (S_TS + 12, S_TS + 13))
    stamp(a, 0)
    a("s_load_dwordx16 s[4:19], s[0:1], 0")
    a("s_load_dwordx8 s[20:27], s[0:1], 64")
    a("v_lshrrev_b32 v2, 6, v0")
    a("v_and_b32 v1, 63, v0")
    a("s_and_b32 s%d, s2, 7" % S_XCD)
    a("v_readfirstlane_b32 s%d, v2" % S_WAVE)
    a("s_lshr_b32 s%d, s2, 3" % S_J)
    if INSTR:
        a("s_nop 3")
        a("s_mov_b32 s3, s%d" % S_WAVE)


def kernel_footer(a, name, kidx=0):
    a.label("L_%s_ldone" % name)
    if INSTR:
        stamp(a, 4)
        stamp_flush(a, kidx, 5)
    a("s_branch L_%s_end" % name)
    a.label("L_%s_cdone" % name)
    if "dbg" in EXP:
        a("s_waitcnt vmcnt(0)")
    dbgstamp(a, 2, False)
    stamp(a, 3)
    if INSTR:
        a("s_waitcnt vmcnt(0)")
    stamp(a, 4)
    stamp_flush(a, kidx, 5)
    a.label("L_%s_end" % name)
    a("s_endpgm")


def descriptor(a, name, vgprs=256):
    a.raw(".section .rodata,\"a\"")
    a.raw(".p2align 6")
    a.raw(".amdhsa_kernel %s" % name)
    a.raw("  .amdhsa_next_free_vgpr %d" % vgprs)
    a.raw("  .amdhsa_next_free_sgpr 102")
    a.raw("  .amdhsa_accum_offset %d" % vgprs)
    a.raw("  .amdhsa_group_segment_fixed_size 0")
    a.raw("  .amdhsa_kernarg_size 96")
    a.raw("  .amdhsa_user_sgpr_count 2")
    a.raw("  .amdhsa_user_sgpr_kernarg_segment_ptr 1")
    a.raw("  .amdhsa_system_sgpr_workgroup_id_x 1")
    a.raw(".end_amdhsa_kernel")
    a.raw(".text")


INSTR = False
EXP = set()
WS_DBGT = 40 * MB
S_TS = 88


def stamp(a, n):
    if not INSTR:
        return
    a("s_memtime s[%d:%d]" % (S_TS + 2 * n, S_TS + 2 * n + 1))
    a("s_waitcnt lgkmcnt(0)")


def stamp_flush(a, kidx, nst):
    if not INSTR:
        return
    a("s_memrealtime s[%d:%d]" % (S_TS + 2 * nst, S_TS + 2 * nst + 1))
    a("s_waitcnt lgkmcnt(0)")
    make_srd(a, SRD_F, P_WS, WS_DBGT + kidx * 65536, 65536)
    a("s_lshl_b32 s%d, s2, 8" % S_T0)
    a("s_lshl_b32 s%d, s3, 5" % (S_T1,))
    a("s_add_u32 s%d, s%d, s%d" % (S_T0, S_T0, S_T1))
    a("v_mov_b32 v2, s%d" % S_T0)
    for n in range(nst + 2):
        a("v_mov_b32 v3, s%d" % (S_TS + 2 * n))
        a("buffer_store_dword v3, v2, s[%d:%d], 0 offen offset:%d" % (SRD_F, SRD_F + 3, 4 * n))
        a("s_nop 1")


class Cfg:
    def __init__(self, BN, NBUF):
        self.BN = BN
        self.NBUF = NBUF
        self.STAGE = 16384 + BN * 128
        self.big = BN == 256
        self.mid = BN == 128
        self.MI = 4 if self.big else (2 if self.mid else 1)
        self.NI = 2
        self.LA = 4
        self.LB = BN // 32
        self.LPS = self.LA + self.LB
        self.NSUB = 4 if self.big else (2 if self.mid else 1)
        self.KPS = 4 // self.NSUB
        self.INIT = 2
        self.aflag = ""
        self.RAMP = 1 if self.big else 2
        for e in EXP:
            if e.startswith("initb") and self.big: self.INIT = int(e[5:])
            if e.startswith("inits") and not self.big: self.INIT = int(e[5:])
            if e.startswith("rampb") and self.big: self.RAMP = int(e[5:])
            if e.startswith("ramps") and not self.big: self.RAMP = int(e[5:])
        self.LDS_STATS = self.NBUF * self.STAGE
        self.LDS_CS = self.LDS_STATS + 1024
        self.LDS_TOTAL = self.LDS_CS + 1024 + 64


V_LA = 16
V_LB = 20
V_LA2 = 28
V_LB2 = 32
V_SA = 40
V_SAB = 44
V_SB = 48
V_SBB = 49
V_SUM, V_SQ, V_CS0, V_CS1, V_ONES = 50, 51, 52, 53, 54
V_SUM2, V_SQ2 = 55, 56
V_SD = 64


def loader_a_offsets(a, vdst, lda, xor_sgpr=None):
    a("v_lshrrev_b32 v3, 3, v1")
    a("v_and_b32 v4, 7, v1")
    a("v_lshrrev_b32 v5, 4, v1")
    a("v_xor_b32 v4, v4, v5")
    if xor_sgpr is None:
        a("s_lshl_b32 s%d, s%d, 5" % (S_T0, S_LW))
    else:
        a("s_xor_b32 s%d, s%d, s%d" % (S_T0, S_LW, xor_sgpr))
        a("s_lshl_b32 s%d, s%d, 5" % (S_T0, S_T0))
    a("s_add_u32 s%d, s%d, s%d" % (S_T0, S_T0, S_ROW0))
    a("v_add_u32 v3, s%d, v3" % S_T0)
    a("s_mov_b32 s%d, %d" % (S_T1, lda))
    a("v_mul_lo_u32 v3, v3, s%d" % S_T1)
    for j in range(4):
        if j & 1:
            a("v_xor_b32 v5, 4, v4")
        else:
            a("v_mov_b32 v5, v4")
        a("v_lshl_add_u32 v5, v5, 4, v3")
        a("v_add_u32 v%d, 0x%x, v5" % (vdst + j, 8 * j * lda - 1024 * j))


def loader_b_offsets_big(a, vdst):
    a("v_lshrrev_b32 v3, 5, v1")
    a("v_and_b32 v4, 31, v1")
    a("s_lshl_b32 s%d, s%d, 4" % (S_T0, S_LW))
    a("v_add_u32 v6, s%d, v3" % S_T0)
    a("v_mul_lo_u32 v6, v6, s%d" % S_LDB)
    for par in range(2):
        a("v_or_b32 v5, %d, v3" % (par << 1))
        a("v_lshlrev_b32 v5, 2, v5")
        a("v_xor_b32 v5, v5, v4")
        a("v_bfe_u32 v7, v5, 2, 1")
        a("v_mul_lo_u32 v7, v7, s%d" % S_SA)
        a("v_lshrrev_b32 v8, 3, v5")
        a("v_mul_lo_u32 v8, v8, s%d" % S_SB)
        a("v_and_b32 v9, 3, v5")
        a("v_lshlrev_b32 v9, 3, v9")
        a("v_add3_u32 v7, v7, v8, v9")
        a("v_add_u32 v7, s%d, v7" % S_COL0)
        a("v_lshl_add_u32 v%d, v7, 1, v6" % (10 + par))
    for j in range(8):
        a("s_mul_i32 s%d, s%d, %d" % (S_T0, S_LDB, 2 * j))
        a("s_sub_u32 s%d, s%d, %d" % (S_T0, S_T0, 1024 * (j & 3)))
        a("v_add_u32 v%d, s%d, v%d" % (vdst + j, S_T0, 10 + (j & 1)))


def loader_b_offsets_small(a, vdst, ldb):
    a("v_lshrrev_b32 v3, 3, v1")
    a("s_lshl_b32 s%d, s%d, 4" % (S_T0, S_LW))
    a("v_add_u32 v3, s%d, v3" % S_T0)
    a("s_mov_b32 s%d, %d" % (S_T1, ldb))
    a("v_mul_lo_u32 v3, v3, s%d" % S_T1)
    a("v_and_b32 v4, 7, v1")
    a("v_bfe_u32 v5, v1, 4, 1")
    a("v_lshlrev_b32 v5, 2, v5")
    a("v_xor_b32 v4, v4, v5")
    a("v_lshl_add_u32 v3, v4, 4, v3")
    a("s_lshl_b32 s%d, s%d, 1" % (S_T0, S_COL0))
    a("v_add_u32 v3, s%d, v3" % S_T0)
    for j in range(2):
        a("v_add_u32 v%d, 0x%x, v3" % (vdst + j, 8 * j * ldb - 1024 * j))


def loader_b_offsets_mid(a, vdst, ldb):
    a("v_lshrrev_b32 v5, 4, v1")
    a("s_lshl_b32 s%d, s%d, 4" % (S_T0, S_LW))
    a("v_add_u32 v3, s%d, v5" % S_T0)
    a("s_mov_b32 s%d, %d" % (S_T1, ldb))
    a("v_mul_lo_u32 v3, v3, s%d" % S_T1)
    a("v_and_b32 v4, 15, v1")
    a("v_lshlrev_b32 v5, 2, v5")
    a("v_xor_b32 v4, v4, v5")
    a("v_lshl_add_u32 v3, v4, 4, v3")
    a("s_lshl_b32 s%d, s%d, 1" % (S_T0, S_COL0))
    a("v_add_u32 v3, s%d, v3" % S_T0)
    for j in range(4):
        a("v_add_u32 v%d, 0x%x, v3" % (vdst + j, 4 * j * ldb - 1024 * j))


def loader_issue(a, c, srda, srdb, vla, vlb, part="AB"):
    if "nodma" in EXP:
        return
    if "A" in part:
        a("s_lshl_b32 s%d, s%d, 12" % (S_T0, S_LW))
        a("s_add_u32 m0, s%d, s%d" % (S_BUF, S_T0))
        a("s_nop 0")
        for j in range(4):
            a("buffer_load_dwordx4 v%d, s[%d:%d], s%d offen offset:%d%s lds" % (vla + j, srda, srda + 3, S_KA, 1024 * j, c.aflag))
    if "B" not in part:
        pass
    elif c.mid:
        a("s_lshl_b32 s%d, s%d, 12" % (S_T0, S_LW))
        a("s_add_u32 s%d, s%d, s%d" % (S_T0, S_T0, S_BUF))
        a("s_add_u32 m0, s%d, 16384" % S_T0)
        a("s_nop 0")
        for j in range(4):
            a("buffer_load_dwordx4 v%d, s[%d:%d], s%d offen offset:%d lds" % (vlb + j, srdb, srdb + 3, S_KB, 1024 * j))
    elif c.big:
        a("s_lshl_b32 s%d, s%d, 13" % (S_T0, S_LW))
        a("s_add_u32 s%d, s%d, s%d" % (S_T0, S_T0, S_BUF))
        a("s_add_u32 m0, s%d, 16384" % S_T0)
        a("s_nop 0")
        for j in range(4):
            a("buffer_load_dwordx4 v%d, s[%d:%d], s%d offen offset:%d lds" % (vlb + j, srdb, srdb + 3, S_KB, 1024 * j))
        a("s_add_u32 m0, s%d, %d" % (S_T0, 16384 + 4096))
        a("s_nop 0")
        for j in range(4, 8):
            a("buffer_load_dwordx4 v%d, s[%d:%d], s%d offen offset:%d lds" % (vlb + j, srdb, srdb + 3, S_KB, 1024 * (j & 3)))
    else:
        a("s_lshl_b32 s%d, s%d, 11" % (S_T0, S_LW))
        a("s_add_u32 s%d, s%d, s%d" % (S_T0, S_T0, S_BUF))
        a("s_add_u32 m0, s%d, 16384" % S_T0)
        a("s_nop 0")
        for j in range(2):
            a("buffer_load_dwordx4 v%d, s[%d:%d], s%d offen offset:%d lds" % (vlb + j, srdb, srdb + 3, S_KB, 1024 * j))
    if "A" in part:
        a("s_add_u32 s%d, s%d, 128" % (S_KA, S_KA))
    if "B" in part:
        a("s_add_u32 s%d, s%d, s%d" % (S_KB, S_KB, S_KBSTEP))
    a("s_add_u32 s%d, s%d, %d" % (S_BUF, S_BUF, c.STAGE))
    a("s_cmp_eq_u32 s%d, %d" % (S_BUF, c.STAGE * c.NBUF))
    a("s_cselect_b32 s%d, 0, s%d" % (S_BUF, S_BUF))


def stats_setup(a, c):
    a("v_and_b32 v3, 31, v1")
    a("s_lshl_b32 s%d, s%d, 5" % (S_T0, S_LW))
    a("v_add_u32 v3, s%d, v3" % S_T0)
    a("v_lshlrev_b32 v3, 7, v3")
    a("v_bfe_u32 v4, v1, 1, 3")
    a("v_lshrrev_b32 v5, 5, v1")
    a("v_lshlrev_b32 v5, 2, v5")
    a("v_xor_b32 v4, v4, v5")
    for t in range(4):
        a("v_xor_b32 v5, %d, v4" % t)
        a("v_lshl_add_u32 v%d, v5, 4, v3" % (V_SAB + t))
        a("v_mov_b32 v%d, v%d" % (V_SA + t, V_SAB + t))
    a("v_bfe_u32 v3, v1, 2, 2")
    a("v_and_b32 v4, 3, v1")
    a("v_lshrrev_b32 v5, 4, v1")
    a("v_lshlrev_b32 v5, 1, v5")
    a("v_lshrrev_b32 v6, 1, v4")
    a("v_add_u32 v5, v5, v6")
    a("s_lshl_b32 s%d, s%d, 3" % (S_T0, S_LW))
    a("v_add_u32 v5, s%d, v5" % S_T0)
    a("v_lshlrev_b32 v6, 2, v3")
    a("v_xor_b32 v5, v5, v6")
    a("v_lshlrev_b32 v5, 4, v5")
    a("v_lshl_add_u32 v5, v3, 9, v5")
    a("v_and_b32 v4, 1, v4")
    a("v_lshl_add_u32 v5, v4, 3, v5")
    a("v_add_u32 v%d, 16384, v5" % V_SBB)
    a("v_mov_b32 v%d, v%d" % (V_SB, V_SBB))
    for r in (V_SUM, V_SQ, V_CS0, V_CS1, V_SUM2, V_SQ2):
        a("v_mov_b32 v%d, 0" % r)
    a("v_mov_b32 v%d, 0x3f803f80" % V_ONES)
    a("s_mov_b32 s%d, 0" % S_T3)


def stats_step(a, c):
    for t in range(4):
        a("ds_read_b128 v[%d:%d], v%d" % (V_SD + 4 * t, V_SD + 4 * t + 3, V_SA + t))
    for m in range(16):
        a("ds_read_b64_tr_b16 v[%d:%d], v%d offset:%d" % (V_SD + 16 + 2 * m, V_SD + 17 + 2 * m, V_SB, 2048 * m))
    a("s_add_u32 s%d, s%d, %d" % (S_T3, S_T3, c.STAGE))
    a("s_cmp_eq_u32 s%d, %d" % (S_T3, c.STAGE * c.NBUF))
    a("s_cselect_b32 s%d, 0, s%d" % (S_T3, S_T3))
    a("s_waitcnt lgkmcnt(15)")
    for t in range(16):
        s, q = (V_SUM, V_SQ) if t & 1 else (V_SUM2, V_SQ2)
        a("v_dot2_f32_bf16 v%d, v%d, v%d, v%d" % (s, V_SD + t, V_ONES, s))
        a("v_dot2_f32_bf16 v%d, v%d, v%d, v%d" % (q, V_SD + t, V_SD + t, q))
    a("s_waitcnt lgkmcnt(0)")
    for t in range(4):
        a("v_add_u32 v%d, s%d, v%d" % (V_SA + t, S_T3, V_SAB + t))
    a("v_add_u32 v%d, s%d, v%d" % (V_SB, S_T3, V_SBB))
    for m in range(32):
        cs = V_CS0 if m & 1 else V_CS1
        a("v_dot2_f32_bf16 v%d, v%d, v%d, v%d" % (cs, V_SD + 16 + m, V_ONES, cs))


def bf16_round(a, dst, src):
    a("v_cvt_pk_bf16_f32 v%d, v%d, v%d" % (dst, src, src))
    a("v_lshlrev_b32 v%d, 16, v%d" % (dst, dst))


def stats_finish(a, c, S_LW=S_LW):
    a("s_nop 3")
    a("v_add_f32 v%d, v%d, v%d" % (V_SUM, V_SUM, V_SUM2))
    a("v_add_f32 v%d, v%d, v%d" % (V_SQ, V_SQ, V_SQ2))
    a("v_add_f32 v%d, v%d, v%d" % (V_CS0, V_CS0, V_CS1))
    a("v_mov_b32 v3, v%d" % V_SUM)
    a("v_mov_b32 v4, v%d" % V_SUM)
    a("v_mov_b32 v5, v%d" % V_SQ)
    a("v_mov_b32 v6, v%d" % V_SQ)
    a("s_nop 1")
    a("v_permlane32_swap_b32 v3, v4")
    a("v_permlane32_swap_b32 v5, v6")
    a("s_nop 1")
    a("v_add_f32 v3, v3, v4")
    a("v_add_f32 v5, v5, v6")
    a("v_mul_f32 v3, %s, v3" % f32(1.0 / 1024))
    a("v_mul_f32 v5, %s, v5" % f32(1.0 / 1024))
    a("v_fma_f32 v5, -v3, v3, v5")
    a("v_max_f32 v5, 0, v5")
    bf16_round(a, 3, 3)
    bf16_round(a, 5, 5)
    a("v_add_f32 v5, %s, v5" % f32(1e-5))
    bf16_round(a, 5, 5)
    a("v_sqrt_f32 v5, v5")
    a("s_nop 0")
    bf16_round(a, 5, 5)
    a("v_rcp_f32 v6, v5")
    a("s_nop 0")
    a("v_mul_f32 v7, v3, v6")
    a("v_sub_f32 v7, 0, v7")
    a("v_and_b32 v3, 31, v1")
    a("s_lshl_b32 s%d, s%d, 5" % (S_T0, S_LW))
    a("v_add_u32 v3, s%d, v3" % S_T0)
    a("v_lshlrev_b32 v3, 3, v3")
    a("v_add_u32 v3, %d, v3" % c.LDS_STATS)
    a("ds_write_b64 v3, v[6:7]")
    a("s_lshl_b32 s%d, s%d, 6" % (S_T0, S_LW))
    a("v_add_u32 v3, s%d, v1" % S_T0)
    a("v_lshlrev_b32 v3, 2, v3")
    a("v_add_u32 v3, %d, v3" % c.LDS_CS)
    a("ds_write_b32 v3, v%d" % V_CS0)
    a("s_waitcnt lgkmcnt(0)")


def loader_loop(a, c, phases, stats, gate=None, tail=None, post=None):
    NIT = sum(p[0] for p in phases)
    NBUF, LPS = c.NBUF, c.LPS
    starts = []
    t = 0
    for p in phases:
        starts.append(t)
        t += p[0]

    def phase_of(s):
        k = 0
        for i, st in enumerate(starts):
            if s >= st:
                k = i
        return k

    def set_phase(k):
        c0 = phases[k][6] if len(phases[k]) > 6 else 0
        if isinstance(c0, tuple):
            a("s_mul_i32 s%d, s%d, %d" % (S_KA, c0[0], c0[1] * 128))
            a("s_mul_i32 s%d, s%d, %d" % (S_KB, c0[0], c0[1] * phases[k][5]))
        else:
            a("s_mov_b32 s%d, %d" % (S_KA, c0 * 128))
            a("s_mov_b32 s%d, %d" % (S_KB, c0 * phases[k][5] if c0 else 0))
        kb = phases[k][5]
        if isinstance(kb, int):
            a("s_mov_b32 s%d, %d" % (S_KBSTEP, kb))
        else:
            a(kb)

    def issue(s):
        k = phase_of(s)
        if s == starts[k]:
            set_phase(k)
        p = phases[k]
        loader_issue(a, c, p[1], p[2], p[3], p[4])

    def do_stats():
        if stats is None:
            return
        if stats == 'always':
            stats_step(a, c)
        else:
            l = a.newlabel("nostat")
            a("s_cmp_eq_u32 s%d, 0" % stats)
            a("s_cbranch_scc1 %s" % l)
            stats_step(a, c)
            a.label(l)

    a("s_mov_b32 s%d, 0" % S_BUF)
    init = c.INIT
    issued = 0
    if gate is None:
        for s in range(init):
            issue(s)
            issued += 1
    else:
        set_phase(0)
        p = phases[0]
        for s in range(init):
            loader_issue(a, c, p[1], p[2], p[3], p[4], "B")
        gate()
        a("s_mov_b32 s%d, 0" % S_BUF)
        for s in range(init):
            loader_issue(a, c, p[1], p[2], p[3], p[4], "A")
            issued += 1
        if post is not None:
            post()
    if stats is not None:
        stats_setup(a, c)
    a("s_waitcnt vmcnt(%d)" % ((issued - 1) * (LPS if gate is None else c.LA)))
    a("s_barrier")
    it = 0
    b = -1
    while True:
        n = 0
        while issued <= b + NBUF and issued < NIT and n < c.RAMP:
            issue(issued)
            issued += 1
            n += 1
        if issued == b + NBUF + 1 or issued == NIT:
            break
        do_stats()
        a("s_waitcnt vmcnt(%d)" % ((issued - (it + 2)) * LPS))
        a("s_barrier")
        b = it
        it += 1
    while it < NIT:
        s = it + NBUF
        if s < NIT:
            k = phase_of(s)
            end_s = starts[k] + phases[k][0]
            n = end_s - s
            if s == starts[k]:
                set_phase(k)
            p = phases[k]
            lbl = a.newlabel("ld")
            if n > 1:
                a("s_mov_b32 s%d, %d" % (S_CNT, n))
                a.label(lbl)
            do_stats()
            a("s_waitcnt vmcnt(%d)" % ((NBUF - 2) * LPS))
            a("s_barrier")
            loader_issue(a, c, p[1], p[2], p[3], p[4])
            if n > 1:
                a("s_sub_u32 s%d, s%d, 1" % (S_CNT, S_CNT))
                a("s_cmp_lg_u32 s%d, 0" % S_CNT)
                a("s_cbranch_scc1 %s" % lbl)
            it += n
        else:
            do_stats()
            if tail is not None and s == NIT:
                tail[0]()
            rem = max(0, min(NBUF - 2, NIT - 2 - it))
            if tail is not None and it == NIT - 1:
                tail[2]()
            else:
                a("s_waitcnt vmcnt(%d)" % (rem * LPS + (tail[1] if tail is not None else 0)))
            a("s_barrier")
            it += 1


V_AA = 4
V_AB = 8
V_BA = 12
V_BB = 14
V_F = 16
V_ACC = 128


def compute_addr_setup(a, c):
    a("v_and_b32 v2, 31, v1")
    if c.mid:
        a("s_lshr_b32 s%d, s%d, 1" % (S_T0, S_WAVE))
        a("s_lshl_b32 s%d, s%d, 6" % (S_T0, S_T0))
        a("v_add_u32 v2, s%d, v2" % S_T0)
    elif not c.big:
        a("s_lshl_b32 s%d, s%d, 5" % (S_T0, S_WAVE))
        a("v_add_u32 v2, s%d, v2" % S_T0)
    a("v_lshlrev_b32 v2, 7, v2")
    a("v_bfe_u32 v3, v1, 1, 3")
    a("v_lshrrev_b32 v16, 5, v1")
    a("v_xor_b32 v3, v3, v16")
    for kk in range(4):
        a("v_xor_b32 v17, %d, v3" % (2 * kk))
        a("v_lshl_add_u32 v%d, v17, 4, v2" % (V_AB + kk))
        a("v_mov_b32 v%d, v%d" % (V_AA + kk, V_AB + kk))
    a("v_bfe_u32 v2, v1, 2, 2")
    a("v_and_b32 v3, 3, v1")
    a("v_bfe_u32 v17, v1, 4, 1")
    a("v_lshlrev_b32 v17, 1, v17")
    a("v_lshrrev_b32 v18, 1, v3")
    a("v_add_u32 v17, v17, v18")
    a("v_lshl_add_u32 v18, v16, 3, v2")
    a("v_and_b32 v3, 1, v3")
    a("v_lshlrev_b32 v3, 3, v3")
    if c.big or c.mid:
        if c.mid:
            a("s_and_b32 s%d, s%d, 1" % (S_T0, S_WAVE))
            a("s_lshl_b32 s%d, s%d, 3" % (S_T0, S_T0))
        else:
            a("s_lshl_b32 s%d, s%d, 3" % (S_T0, S_WAVE))
        a("v_add_u32 v17, s%d, v17" % S_T0)
        a("v_lshl_add_u32 v3, v18, %d, v3" % (8 if c.mid else 9))
        a("v_lshlrev_b32 v2, 2, v2")
        for j in range(2):
            a("v_add_u32 v19, %d, v17" % (4 * j))
            a("v_xor_b32 v19, v19, v2")
            a("v_lshl_add_u32 v19, v19, 4, v3")
            a("v_add_u32 v%d, 16384, v19" % (V_BB + j))
            a("v_mov_b32 v%d, v%d" % (V_BA + j, V_BB + j))
    else:
        a("v_lshl_add_u32 v3, v18, 7, v3")
        a("v_lshrrev_b32 v2, 1, v2")
        a("v_lshlrev_b32 v2, 2, v2")
        for j in range(2):
            a("v_add_u32 v19, %d, v17" % (4 * j))
            a("v_xor_b32 v19, v19, v2")
            a("v_lshl_add_u32 v19, v19, 4, v3")
            a("v_add_u32 v%d, 16384, v19" % (V_BB + j))
            a("v_mov_b32 v%d, v%d" % (V_BA + j, V_BB + j))
    a("s_mov_b32 s%d, 0" % S_BUF)


def frag_regs(c, fset, kq):
    per_kk = (c.MI + c.NI) * 4
    base = V_F + fset * per_kk * c.KPS + kq * per_kk
    A = [base + 4 * i for i in range(c.MI)]
    B = [base + 4 * c.MI + 4 * j for j in range(c.NI)]
    return A, B


def frag_reads(c, fset, sub):
    out = []
    if "noread" in EXP:
        return out
    for kq in range(c.KPS):
        kk = sub * c.KPS + kq
        A, B = frag_regs(c, fset, kq)
        for j in range(c.NI):
            for q in range(2):
                off = (kk * 16 + q * 4) * c.BN * 2
                out.append("ds_read_b64_tr_b16 v[%d:%d], v%d offset:%d" % (B[j] + 2 * q, B[j] + 2 * q + 1, V_BA + j, off))
        for i in range(c.MI):
            out.append("ds_read_b128 v[%d:%d], v%d offset:%d" % (A[i], A[i] + 3, V_AA + kk, 4096 * i))
    return out


def mfma_list(c, fset, acc, swapped):
    out = []
    if "nomfma" in EXP:
        return ["s_nop 0"]
    for kq in range(c.KPS):
        A, B = frag_regs(c, fset, kq)
        for i in range(c.MI):
            for j in range(c.NI):
                d = acc + 16 * (i * c.NI + j)
                x, w = "v[%d:%d]" % (A[i], A[i] + 3), "v[%d:%d]" % (B[j], B[j] + 3)
                if swapped:
                    x, w = w, x
                if "mfma16" in EXP:
                    out.append("v_mfma_f32_16x16x32_bf16 v[%d:%d], %s, %s, v[%d:%d]" % (d, d + 3, x, w, d, d + 3))
                    out.append("v_mfma_f32_16x16x32_bf16 v[%d:%d], %s, %s, v[%d:%d]" % (d + 4, d + 7, w, x, d + 4, d + 7))
                else:
                    out.append("v_mfma_f32_32x32x16_bf16 v[%d:%d], %s, %s, v[%d:%d]" % (d, d + 15, x, w, d, d + 15))
    return out


def addr_update(c):
    out = []
    out.append("s_add_u32 s%d, s%d, %d" % (S_BUF, S_BUF, c.STAGE))
    out.append("s_cmp_eq_u32 s%d, %d" % (S_BUF, c.STAGE * c.NBUF))
    out.append("s_cselect_b32 s%d, 0, s%d" % (S_BUF, S_BUF))
    for kk in range(4):
        out.append("v_add_u32 v%d, s%d, v%d" % (V_AA + kk, S_BUF, V_AB + kk))
    for j in range(c.NI):
        out.append("v_add_u32 v%d, s%d, v%d" % (V_BA + j, S_BUF, V_BB + j))
    return out


def emit_interleaved(a, mfmas, others, per_gap, lead=0):
    oi = 0
    if "mfma16" in EXP:
        per_gap = 1
    for n, m in enumerate(mfmas):
        a(m)
        if n >= lead:
            for _ in range(per_gap):
                if oi < len(others):
                    a(others[oi])
                    oi += 1
    while oi < len(others):
        a(others[oi])
        oi += 1


def compute_iter(a, c, acc, swapped, fs0, pf=None):
    fs = fs0
    for sub in range(c.NSUB):
        last = sub == c.NSUB - 1
        m = mfma_list(c, fs, acc, swapped)
        a("s_waitcnt lgkmcnt(0)")
        if last:
            if c.NSUB == 1:
                upd = addr_update(c)
                for u in upd:
                    a(u)
                a("s_barrier")
                emit_interleaved(a, m, frag_reads(c, fs ^ 1, 0) + (pf_step(pf) if pf else []), 3)
            else:
                a(m[0])
                a("s_barrier")
                emit_interleaved(a, m[1:], frag_reads(c, fs ^ 1, 0), 3)
        else:
            others = frag_reads(c, fs ^ 1, sub + 1)
            if sub == c.NSUB - 2:
                others = others + addr_update(c)
            if sub == 0 and pf:
                others = others + pf_step(pf)
            emit_interleaved(a, m, others, 2)
        fs ^= 1
    return fs


def compute_loop(a, c, nit, acc, swapped, pf=None):
    unroll = 1 if c.NSUB % 2 == 0 else 2
    assert nit % unroll == 0
    lbl = a.newlabel("cl")
    a("s_mov_b32 s%d, %d" % (S_CNT, nit // unroll))
    a.label(lbl)
    fs = 0
    for u in range(unroll):
        fs = compute_iter(a, c, acc, swapped, fs, pf)
    assert fs == 0
    a("s_sub_u32 s%d, s%d, 1" % (S_CNT, S_CNT))
    a("s_cmp_lg_u32 s%d, 0" % S_CNT)
    a("s_cbranch_scc1 %s" % lbl)


V_PF, V_PFD = 126, 127


def prefetch_jobs(a, jobs, vpf=V_PF, vpfd=V_PFD):
    n = 0
    per_wave = [[] for _ in range(4)]
    for ptr, total in jobs:
        share = total // 256
        for off in range(0, share, 8192):
            per_wave[n % 4].append((ptr, total, share, off))
            n += 1
    done = a.newlabel("pfdone")
    for w in range(4):
        nxt = a.newlabel("pfw")
        a("s_cmp_lg_u32 s%d, %d" % (S_WAVE, w))
        a("s_cbranch_scc1 %s" % nxt)
        for ptr, total, share, off in per_wave[w]:
            make_srd(a, SRD_F, ptr, 0, total)
            a("s_mul_i32 s%d, s2, %d" % (S_T0, share))
            a("s_add_u32 s%d, s%d, %d" % (S_T0, S_T0, off))
            if share - off < 8192:
                a("s_add_u32 s%d, s%d, %d" % (SRD_F + 2, S_T0, share - off))
            a("buffer_load_dword v%d, v%d, s[%d:%d], s%d offen" % (vpfd, vpf, SRD_F, SRD_F + 3, S_T0))
        a("s_branch %s" % done)
        a.label(nxt)
    a.label(done)


S_PFO = 85
S_PFST = 87


def pf_stream_setup(a, assign, nit):
    steps = [1]
    for e in assign:
        if callable(e):
            continue
        ptr, total, part, nparts = e
        lines = total // 256 // 128
        per = -(-lines // nparts)
        steps.append(-(-per // nit))
    L = max(steps)
    done = a.newlabel("pfs")
    a("v_lshlrev_b32 v%d, 7, v1" % V_PF)
    a("v_mov_b32 v2, 0x40000000")
    a("v_cmp_gt_u32 vcc, %d, v1" % L)
    a("s_mov_b32 s%d, %d" % (S_PFST, L * 128))
    a("s_nop 0")
    a("v_cndmask_b32 v%d, v2, v%d, vcc" % (V_PF, V_PF))
    for w, e in enumerate(assign):
        nxt = a.newlabel("pfsw")
        a("s_cmp_lg_u32 s%d, %d" % (S_WAVE, w))
        a("s_cbranch_scc1 %s" % nxt)
        if callable(e):
            e()
        else:
            ptr, total, part, nparts = e
            share = total // 256
            lines = share // 128
            per = -(-lines // nparts)
            beg = part * per * 128
            end = min(share, (part + 1) * per * 128)
            make_srd(a, SRD_F, ptr, 0, total)
            a("s_mul_i32 s%d, s2, %d" % (S_PFO, share))
            a("s_add_u32 s%d, s%d, %d" % (SRD_F + 2, S_PFO, end))
            a("s_add_u32 s%d, s%d, %d" % (S_PFO, S_PFO, beg))
        a("s_branch %s" % done)
        a.label(nxt)
    a.label(done)
    return 1


def pfB_setup(a, srd, s_ldb, ngroup, big, first, dist):
    rows = 64 // ngroup
    for q in range(4):
        a("s_mov_b32 s%d, s%d" % (SRD_F + q, srd + q))
    a("s_and_b32 s%d, s%d, %d" % (S_T0, S_RB, ngroup - 1))
    a("s_mul_i32 s%d, s%d, %d" % (S_T0, S_T0, rows))
    if big:
        a("v_lshrrev_b32 v2, 2, v1")
        a("v_add_u32 v2, s%d, v2" % S_T0)
        a("v_mul_lo_u32 v2, v2, s%d" % s_ldb)
        a("v_and_b32 v3, 1, v1")
        a("v_lshl_add_u32 v2, v3, 7, v2")
        a("s_movk_i32 s%d, 256" % S_T1)
        a("s_cmp_eq_u32 s%d, 1024" % S_SA)
        a("s_cselect_b32 s%d, 2048, s%d" % (S_T1, S_T1))
        a("v_bfe_u32 v3, v1, 1, 1")
        a("v_mul_lo_u32 v3, v3, s%d" % S_T1)
        a("v_add_u32 v2, v2, v3")
        nl = rows * 4
    else:
        a("v_add_u32 v2, s%d, v1" % S_T0)
        a("v_mul_lo_u32 v2, v2, s%d" % s_ldb)
        nl = rows
    a("s_lshl_b32 s%d, s%d, 1" % (S_T0, S_COL0))
    a("v_add_u32 v2, s%d, v2" % S_T0)
    a("v_mov_b32 v3, 0x40000000")
    a("v_cmp_gt_u32 vcc, %d, v1" % nl)
    a("s_lshl_b32 s%d, s%d, 6" % (S_PFST, s_ldb))
    a("s_mul_i32 s%d, s%d, %d" % (S_PFO, S_PFST, first))
    a("v_cndmask_b32 v%d, v3, v2, vcc" % V_PF)
    for st in range(first, dist):
        for x in pf_step(1):
            a(x)


def pfA_setup(a, srd, lda, ngroup, first, dist):
    rows = 128 // ngroup
    for q in range(4):
        a("s_mov_b32 s%d, s%d" % (SRD_F + q, srd + q))
    a("s_and_b32 s%d, s%d, %d" % (S_T0, S_CT, ngroup - 1))
    a("s_mul_i32 s%d, s%d, %d" % (S_T0, S_T0, rows))
    a("s_add_u32 s%d, s%d, s%d" % (S_T0, S_T0, S_ROW0))
    a("v_add_u32 v2, s%d, v1" % S_T0)
    a("s_mov_b32 s%d, %d" % (S_T1, lda))
    a("v_mul_lo_u32 v2, v2, s%d" % S_T1)
    a("v_mov_b32 v3, 0x40000000")
    a("v_cmp_gt_u32 vcc, %d, v1" % rows)
    a("s_movk_i32 s%d, 128" % S_PFST)
    a("s_mov_b32 s%d, %d" % (S_PFO, 128 * first))
    a("v_cndmask_b32 v%d, v3, v2, vcc" % V_PF)
    for st in range(first, dist):
        for x in pf_step(1):
            a(x)


def pf_none(a):
    make_srd(a, SRD_F, P_X, 0, 0)
    a("s_mov_b32 s%d, 0" % S_PFO)
    a("s_mov_b32 s%d, 0" % S_PFST)


def pf_step(step):
    return ["buffer_load_dword v%d, v%d, s[%d:%d], s%d offen" % (V_PFD, V_PF, SRD_F, SRD_F + 3, S_PFO),
            "s_add_u32 s%d, s%d, s%d" % (S_PFO, S_PFO, S_PFST)]


def code_prefetch(a, first, last):
    if "nocpf" in EXP:
        return
    here = a.newlabel("pc")
    a("s_getpc_b64 s[%d:%d]" % (SRD_F, SRD_F + 1))
    a.label(here)
    a("s_add_u32 s%d, s%d, %s-%s" % (SRD_F, SRD_F, first, here))
    a("s_addc_u32 s%d, s%d, -1" % (SRD_F + 1, SRD_F + 1) if False else "s_addc_u32 s%d, s%d, (%s-%s)>>32" % (SRD_F + 1, SRD_F + 1, first, here))
    a("s_mov_b32 s%d, %s-%s" % (SRD_F + 2, last, first))
    a("s_mov_b32 s%d, 0x20000" % (SRD_F + 3))
    a("v_lshlrev_b32 v2, 7, v1")
    a("s_lshl_b32 s%d, s%d, 13" % (S_T0, S_J))
    a("buffer_load_dword v%d, v2, s[%d:%d], s%d offen" % (V_PFD, SRD_F, SRD_F + 3, S_T0))


def zero_acc(a, acc, n):
    for r in range(acc, acc + n):
        a("v_mov_b32 v%d, 0" % r)


def compute_start(a, c):
    a("s_barrier")
    dbgstamp(a, 1, False)
    for r in frag_reads(c, 0, 0):
        a(r)


def pack_swap_store(a, src, tmp, vaddr, srd, imm, flags=""):
    if "st_sc1" in EXP: flags = " sc1"
    if "st_sc01" in EXP: flags = " sc0 sc1"
    if "st_nt" in EXP: flags = " nt"
    if "st_ntsc1" in EXP: flags = " sc1 nt"
    for p in range(8):
        a("v_cvt_pk_bf16_f32 v%d, v%d, v%d" % (tmp + p, src + 2 * p, src + 2 * p + 1))
    a("s_nop 1")
    for gp in range(2):
        b = tmp + 4 * gp
        a("v_permlane32_swap_b32 v%d, v%d" % (b, b + 2))
        a("v_permlane32_swap_b32 v%d, v%d" % (b + 1, b + 3))
    for gp in range(2):
        b = tmp + 4 * gp
        a("buffer_store_dwordx4 v[%d:%d], v%d, s[%d:%d], 0 offen offset:%d%s" % (b, b + 3, vaddr, srd, srd + 3, imm + 32 * gp, flags))


def line_store_setup(a, ld, vst, VW, VR, s_row, s_colb, ldsbase=65536):
    a("s_lshl_b32 s%d, s%d, 13" % (S_T0, S_WAVE))
    a("s_add_u32 s%d, s%d, %d" % (S_T0, S_T0, ldsbase))
    a("v_and_b32 v2, 31, v1")
    a("v_lshrrev_b32 v3, 5, v1")
    a("v_and_b32 v%d, 7, v2" % VR)
    a("v_xor_b32 v3, v3, v%d" % VR)
    a("v_lshlrev_b32 v2, 7, v2")
    a("v_add_u32 v2, s%d, v2" % S_T0)
    for q in range(4):
        a("v_xor_b32 v%d, %d, v3" % (VW + q, 2 * q))
        a("v_lshl_add_u32 v%d, v%d, 4, v2" % (VW + q, VW + q))
    a("v_lshrrev_b32 v2, 3, v1")
    a("v_and_b32 v3, 7, v1")
    a("v_xor_b32 v%d, v3, v2" % VR)
    a("v_lshlrev_b32 v%d, 4, v%d" % (VR, VR))
    a("v_lshl_add_u32 v%d, v2, 7, v%d" % (VR, VR))
    a("v_add_u32 v%d, s%d, v%d" % (VR, S_T0, VR))
    a("v_add_u32 v2, s%d, v2" % s_row)
    a("s_mov_b32 s%d, %d" % (S_T1, ld))
    a("v_mul_lo_u32 v2, v2, s%d" % S_T1)
    a("v_lshl_add_u32 v2, v3, 4, v2")
    a("v_add_u32 v%d, s%d, v2" % (vst, s_colb))


def line_pack_write(a, src, tmp, VW, j, ldsoff):
    for p in range(8):
        a("v_cvt_pk_bf16_f32 v%d, v%d, v%d" % (tmp + p, src + 2 * p, src + 2 * p + 1))
    a("s_nop 1")
    for gp in range(2):
        b = tmp + 4 * gp
        a("v_permlane32_swap_b32 v%d, v%d" % (b, b + 2))
        a("v_permlane32_swap_b32 v%d, v%d" % (b + 1, b + 3))
    for gp in range(2):
        b = tmp + 4 * gp
        a("ds_write_b128 v%d, v[%d:%d] offset:%d" % (VW + 2 * j + gp, b, b + 3, ldsoff))


def line_read(a, dst, VR, ldsoff):
    for t in range(4):
        a("ds_read_b128 v[%d:%d], v%d offset:%d" % (dst + 4 * t, dst + 4 * t + 3, VR, ldsoff + 1024 * t))


def line_store(a, src, vst, vtmp, srd, ld, i, flags=" sc1", extra=0):
    for t in range(4):
        a("v_add_u32 v%d, 0x%x, v%d" % (vtmp + t, (32 * i + 8 * t) * ld + extra, vst))
    for t in range(4):
        a("buffer_store_dwordx4 v[%d:%d], v%d, s[%d:%d], 0 offen%s" % (src + 4 * t, src + 4 * t + 3, vtmp + t, srd, srd + 3, flags))


def epi_lines(a, c, srd, ld, shift_sgpr, mathfn, VP, VD, VW, VR, VST, VAT):
    if shift_sgpr is not None:
        a("s_add_u32 s%d, s%d, s%d" % (S_T2, S_ROW0, shift_sgpr))
    else:
        a("s_mov_b32 s%d, s%d" % (S_T2, S_ROW0))
    a("s_lshl_b32 s%d, s%d, 6" % (S_T3, S_WAVE))
    a("s_add_u32 s%d, s%d, s%d" % (S_T3, S_T3, S_COL0))
    a("s_lshl_b32 s%d, s%d, 1" % (S_T3, S_T3))
    line_store_setup(a, ld, VST, VW, VR, S_T2, S_T3)
    for i in range(4):
        off = 4096 * (i & 1)
        for j in range(2):
            acc = V_ACC + 16 * (i * 2 + j)
            mathfn(i, j, acc)
            if j == 0 and i > 0:
                a("s_waitcnt lgkmcnt(0)")
                line_store(a, VD, VST, VAT, srd, ld, i - 1)
            line_pack_write(a, acc, VP + 8 * j, VW, j, off)
        line_read(a, VD, VR, off)
    a("s_waitcnt lgkmcnt(0)")
    line_store(a, VD, VST, VAT, srd, ld, 3)


def phi_inplace(a, regs, tmp, vconst):
    n = len(regs)
    for p in range(n):
        a("v_pk_mul_f32 v[%d:%d], v[%d:%d], v[%d:%d] op_sel:[0,0] op_sel_hi:[1,0]" % (tmp + 2 * p, tmp + 2 * p + 1, regs[p], regs[p] + 1, vconst, vconst + 1))
    for p in range(n):
        a("v_exp_f32 v%d, v%d clamp" % (tmp + 2 * p, tmp + 2 * p))
        a("v_exp_f32 v%d, v%d clamp" % (tmp + 2 * p + 1, tmp + 2 * p + 1))
    for p in range(n):
        a("v_max_f32 v%d, 0, v%d" % (regs[p], regs[p]))
        a("v_max_f32 v%d, 0, v%d" % (regs[p] + 1, regs[p] + 1))
    for p in range(n):
        a("v_pk_add_f32 v[%d:%d], v[%d:%d], v[%d:%d] op_sel:[0,1] op_sel_hi:[1,1]" % (tmp + 2 * p, tmp + 2 * p + 1, tmp + 2 * p, tmp + 2 * p + 1, vconst, vconst + 1))
    for p in range(n):
        a("v_pk_add_f32 v[%d:%d], v[%d:%d], v[%d:%d]" % (regs[p], regs[p] + 1, regs[p], regs[p] + 1, tmp + 2 * p, tmp + 2 * p + 1))


def ln_gelu_inplace(a, regs, tmp, vstat, vcs, vconst):
    n = len(regs)
    P = lambda r: "v[%d:%d]" % (r, r + 1)
    for p in range(n):
        a("v_pk_mul_f32 %s, %s, %s op_sel:[0,0] op_sel_hi:[1,0]" % (P(regs[p]), P(regs[p]), P(vstat)))
    for p in range(n):
        a("v_pk_fma_f32 %s, %s, %s, %s op_sel:[0,1,0] op_sel_hi:[1,1,1]" % (P(regs[p]), P(vcs + 2 * p), P(vstat), P(regs[p])))
    for p in range(n):
        a("v_pk_mul_f32 %s, %s, %s" % (P(tmp + 2 * p), P(regs[p]), P(regs[p])))
    for p in range(n):
        a("v_pk_fma_f32 %s, %s, %s, %s op_sel:[0,0,1] op_sel_hi:[1,0,1]" % (P(tmp + 2 * p), P(tmp + 2 * p), P(vconst), P(vconst)))
    for p in range(n):
        a("v_pk_mul_f32 %s, %s, %s" % (P(tmp + 2 * p), P(tmp + 2 * p), P(regs[p])))
    for p in range(n):
        a("v_exp_f32 v%d, v%d" % (tmp + 2 * p, tmp + 2 * p))
        a("v_exp_f32 v%d, v%d" % (tmp + 2 * p + 1, tmp + 2 * p + 1))
    for p in range(n):
        a("v_pk_add_f32 %s, %s, 1.0 op_sel_hi:[1,0]" % (P(tmp + 2 * p), P(tmp + 2 * p)))
    for p in range(n):
        a("v_rcp_f32 v%d, v%d" % (tmp + 2 * p, tmp + 2 * p))
        a("v_rcp_f32 v%d, v%d" % (tmp + 2 * p + 1, tmp + 2 * p + 1))
    for p in range(n):
        a("v_pk_mul_f32 %s, %s, %s" % (P(regs[p]), P(regs[p]), P(tmp + 2 * p)))


def epi_store_addr(a, c, ld, vdst, n_i, shift_sgpr=None):
    a("v_and_b32 v2, 31, v1")
    a("v_add_u32 v2, s%d, v2" % S_ROW0)
    if shift_sgpr is not None:
        a("v_add_u32 v2, s%d, v2" % shift_sgpr)
    if c.big:
        a("s_lshl_b32 s%d, s%d, 6" % (S_T0, S_WAVE))
    else:
        a("s_lshr_b32 s%d, s%d, 1" % (S_T1, S_WAVE))
        a("s_lshl_b32 s%d, s%d, 6" % (S_T1, S_T1))
        a("v_add_u32 v2, s%d, v2" % S_T1)
        a("s_and_b32 s%d, s%d, 1" % (S_T0, S_WAVE))
        a("s_lshl_b32 s%d, s%d, 5" % (S_T0, S_T0))
    a("s_add_u32 s%d, s%d, s%d" % (S_T0, S_T0, S_COL0))
    a("s_lshl_b32 s%d, s%d, 1" % (S_T0, S_T0))
    a("s_mov_b32 s%d, %d" % (S_T1, ld))
    a("v_mul_lo_u32 v2, v2, s%d" % S_T1)
    a("v_lshrrev_b32 v3, 5, v1")
    a("v_lshl_add_u32 v2, v3, 4, v2")
    a("v_add_u32 v%d, s%d, v2" % (vdst, S_T0))
    for i in range(1, n_i):
        a("v_add_u32 v%d, 0x%x, v%d" % (vdst + i, 32 * ld * i, vdst))


S_STOFF = 86
NI_EPI = 4


def xfer_send(a):
    if NI_EPI == 4:
        a("s_mov_b32 s%d, 0" % S_STOFF)
        a("s_nop 15")
        return
    a("s_lshl_b32 s%d, s%d, 14" % (S_T0, S_WAVE))
    a("v_lshlrev_b32 v2, 4, v1")
    a("v_add_u32 v2, s%d, v2" % S_T0)
    a("s_mov_b32 s%d, 0" % S_STOFF)
    a("s_nop 15")
    for q in range(16):
        a("ds_write_b128 v2, v[%d:%d] offset:%d" % (V_ACC + 64 + 4 * q, V_ACC + 67 + 4 * q, 1024 * q))


def xfer_recv(a):
    a("s_lshl_b32 s%d, s%d, 14" % (S_T0, S_LW))
    a("v_lshlrev_b32 v2, 4, v1")
    a("v_add_u32 v2, s%d, v2" % S_T0)
    for q in range(16):
        a("ds_read_b128 v[%d:%d], v2 offset:%d" % (V_ACC + 4 * q, V_ACC + 3 + 4 * q, 1024 * q))
    a("s_mov_b32 s%d, s%d" % (S_WAVE, S_LW))
    a("s_add_u32 s%d, s%d, 64" % (S_ROW0, S_ROW0))
    a("s_mov_b32 s%d, 512" % S_STOFF)
    a("s_waitcnt lgkmcnt(0)")


def epi_ln_gelu(a, c, srd, ld, shift_sgpr):
    VST, VSTAT, VCS, VC, VT, VP = 4, 8, 16, 48, 64, 96
    epi_store_addr(a, c, ld, VST, NI_EPI, shift_sgpr)
    a("v_and_b32 v2, 31, v1")
    a("v_lshlrev_b32 v2, 3, v2")
    a("v_add_u32 v2, %d, v2" % c.LDS_STATS)
    a("v_add_u32 v2, s%d, v2" % S_STOFF)
    for i in range(NI_EPI):
        a("ds_read_b64 v[%d:%d], v2 offset:%d" % (VSTAT + 2 * i, VSTAT + 2 * i + 1, 256 * i))
    a("v_lshrrev_b32 v3, 5, v1")
    a("v_lshlrev_b32 v3, 4, v3")
    a("s_lshl_b32 s%d, s%d, 8" % (S_T0, S_WAVE))
    a("v_add_u32 v3, s%d, v3" % S_T0)
    a("v_add_u32 v3, %d, v3" % c.LDS_CS)
    for j in range(2):
        for g in range(4):
            a("ds_read_b128 v[%d:%d], v3 offset:%d" % (VCS + 16 * j + 4 * g, VCS + 16 * j + 4 * g + 3, 128 * j + 32 * g))
    a("v_mov_b32 v%d, %s" % (VC, f32(GC1)))
    a("v_mov_b32 v%d, %s" % (VC + 1, f32(GC0)))
    a("s_waitcnt lgkmcnt(0)")
    if "nolines" not in EXP:
        epi_lines(a, c, srd, ld, shift_sgpr,
                  lambda i, j, acc: ln_gelu_inplace(a, [acc + 2 * p for p in range(8)], VT, VSTAT + 2 * i, VCS + 16 * j, VC),
                  96, 80, 52, 56, 57, 58)
        return
    n = 0
    for i in range(NI_EPI):
        for j in range(2):
            acc = V_ACC + 16 * (i * 2 + j)
            ln_gelu_inplace(a, [acc + 2 * p for p in range(8)], VT, VSTAT + 2 * i, VCS + 16 * j, VC)
            pack_swap_store(a, acc, VP + 8 * (n & 1), VST + i, srd, 64 * j)
            n += 1


def epi_phi_q(a, c, srd, ld):
    VST, VC, VT, VP = 4, 48, 64, 96
    epi_store_addr(a, c, ld, VST, NI_EPI)
    a("v_mov_b32 v%d, %s" % (VC, f32(LOG2E)))
    a("v_mov_b32 v%d, %s" % (VC + 1, f32(1e-6)))
    if "nolines" not in EXP:
        epi_lines(a, c, srd, ld, None,
                  lambda i, j, acc: phi_inplace(a, [acc + 2 * p for p in range(8)], VT, VC),
                  96, 80, 52, 56, 57, 58)
        return
    n = 0
    for i in range(NI_EPI):
        for j in range(2):
            acc = V_ACC + 16 * (i * 2 + j)
            phi_inplace(a, [acc + 2 * p for p in range(8)], VT, VC)
            pack_swap_store(a, acc, VP + 8 * (n & 1), VST + i, srd, 64 * j)
            n += 1


def epi_kv(a, c):
    VC, VT, VPK, VV, VONE, VKV, VZ = 48, 64, 16, 24, 32, 80, 96
    a("v_mov_b32 v%d, %s" % (VC, f32(LOG2E)))
    a("v_mov_b32 v%d, %s" % (VC + 1, f32(1e-6)))
    for r in range(4):
        a("v_mov_b32 v%d, 0x3f803f80" % (VONE + r))
    zero_acc(a, VKV, 32)
    for i in range(4):
        kacc = V_ACC + 32 * i
        vacc = kacc + 16
        phi_inplace(a, [kacc + 2 * p for p in range(8)], VT, VC)
        for p in range(8):
            a("v_cvt_pk_bf16_f32 v%d, v%d, v%d" % (VPK + p, kacc + 2 * p, kacc + 2 * p + 1))
        for p in range(8):
            a("v_cvt_pk_bf16_f32 v%d, v%d, v%d" % (VV + p, vacc + 2 * p, vacc + 2 * p + 1))
        a("s_nop 1")
        for m in range(2):
            a("v_mfma_f32_32x32x16_bf16 v[%d:%d], v[%d:%d], v[%d:%d], v[%d:%d]" % (VKV, VKV + 15, VPK + 4 * m, VPK + 4 * m + 3, VV + 4 * m, VV + 4 * m + 3, VKV, VKV + 15))
            a("v_mfma_f32_32x32x16_bf16 v[%d:%d], v[%d:%d], v[%d:%d], v[%d:%d]" % (VZ, VZ + 15, VPK + 4 * m, VPK + 4 * m + 3, VONE, VONE + 3, VZ, VZ + 15))
    a("s_sub_u32 s%d, s%d, 4" % (S_T0, S_CT))
    a("s_lshl_b32 s%d, s%d, 2" % (S_T0, S_T0))
    a("s_add_u32 s%d, s%d, s%d" % (S_T0, S_T0, S_WAVE))
    a("s_lshl_b32 s%d, s%d, 5" % (S_T1, S_RB))
    a("s_add_u32 s%d, s%d, s%d" % (S_T0, S_T0, S_T1))
    a("s_lshl_b32 s%d, s%d, 12" % (S_T1, S_T0))
    a("s_lshl_b32 s%d, s%d, 7" % (S_T2, S_T0))
    a("v_and_b32 v2, 31, v1")
    a("v_lshrrev_b32 v3, 5, v1")
    a("v_lshlrev_b32 v3, 4, v3")
    a("v_lshlrev_b32 v4, 4, v1")
    a("v_add_u32 v4, s%d, v4" % S_T1)
    a("v_add_u32 v5, s%d, v3" % S_T2)
    a("v_cmp_eq_u32 vcc, 0, v2")
    a("s_nop 15")
    for g in range(4):
        a("buffer_store_dwordx4 v[%d:%d], v4, s[%d:%d], 0 offen offset:%d%s" % (VKV + 4 * g, VKV + 4 * g + 3, SRD_D, SRD_D + 3, 1024 * g, HO))
    a("s_and_saveexec_b64 s[%d:%d], vcc" % (S_EXEC, S_EXEC + 1))
    for g in range(4):
        a("buffer_store_dwordx4 v[%d:%d], v5, s[%d:%d], 0 offen offset:%d%s" % (VZ + 4 * g, VZ + 4 * g + 3, SRD_E, SRD_E + 3, 32 * g, HO))
    a("s_mov_b64 exec, s[%d:%d]" % (S_EXEC, S_EXEC + 1))


def gen_k1(a):
    name = MAIN
    c = Cfg(256, 3)
    kernel_header(a, name, 256)
    a("s_and_b32 s%d, s%d, 1" % (S_T0, S_XCD))
    a("s_lshl_b32 s%d, s%d, 3" % (S_T0, S_T0))
    a("s_and_b32 s%d, s%d, 7" % (S_T1, S_J))
    a("s_add_u32 s%d, s%d, s%d" % (S_RB, S_T0, S_T1))
    a("s_lshr_b32 s%d, s%d, 1" % (S_T0, S_XCD))
    a("s_lshl_b32 s%d, s%d, 2" % (S_T0, S_T0))
    a("s_lshr_b32 s%d, s%d, 3" % (S_T1, S_J))
    a("s_add_u32 s%d, s%d, s%d" % (S_CT, S_T0, S_T1))
    a("s_lshl_b32 s%d, s%d, 7" % (S_ROW0, S_RB))
    a("s_waitcnt lgkmcnt(0)")
    make_srd(a, SRD_A, P_X, 0, S * D * 2)
    make_srd(a, SRD_D, P_WS, WS_KVP, 2 * MB)
    make_srd(a, SRD_E, P_WS, WS_ZP, 65536)
    lq, lkv, lw1, ldone = "L_k1_tq", "L_k1_tkv", "L_k1_tw1", "L_k1_tdone"
    a("s_cmp_lt_u32 s%d, 4" % S_CT)
    a("s_cbranch_scc1 %s" % lq)
    a("s_cmp_lt_u32 s%d, 12" % S_CT)
    a("s_cbranch_scc1 %s" % lkv)
    a.label(lw1)
    a("s_mov_b32 s%d, 2" % S_TYPE)
    make_srd(a, SRD_B, P_W1, 0, D * D * 2)
    make_srd(a, SRD_C, P_WS, WS_HS, S * D * 2)
    a("s_mov_b32 s%d, 2048" % S_LDB)
    a("s_sub_u32 s%d, s%d, 12" % (S_T0, S_CT))
    a("s_lshl_b32 s%d, s%d, 8" % (S_COL0, S_T0))
    a("s_mov_b32 s%d, 32" % S_SA)
    a("s_mov_b32 s%d, 64" % S_SB)
    a("s_lshr_b32 s%d, s%d, 1" % (S_T1, S_T0))
    a("s_add_u32 s%d, s%d, 1" % (S_T1, S_T1))
    a("s_sub_u32 s%d, 0, s%d" % (S_T2, S_T1))
    a("s_and_b32 s%d, s%d, 1" % (S_T0, S_T0))
    a("s_cmp_eq_u32 s%d, 0" % S_T0)
    a("s_cselect_b32 s%d, s%d, s%d" % (S_SHIFT, S_T1, S_T2))
    a("s_branch %s" % ldone)
    a.label(lq)
    a("s_mov_b32 s%d, 0" % S_TYPE)
    make_srd(a, SRD_B, P_WQKV, 0, D * 3 * D * 2)
    make_srd(a, SRD_C, P_WS, WS_PQ, S * D * 2)
    a("s_mov_b32 s%d, 6144" % S_LDB)
    a("s_lshl_b32 s%d, s%d, 8" % (S_COL0, S_CT))
    a("s_mov_b32 s%d, 32" % S_SA)
    a("s_mov_b32 s%d, 64" % S_SB)
    a("s_mov_b32 s%d, 0" % S_SHIFT)
    a("s_branch %s" % ldone)
    a.label(lkv)
    a("s_mov_b32 s%d, 1" % S_TYPE)
    make_srd(a, SRD_B, P_WQKV, 0, D * 3 * D * 2)
    make_srd(a, SRD_C, P_WS, WS_PQ, S * D * 2)
    a("s_mov_b32 s%d, 6144" % S_LDB)
    a("s_sub_u32 s%d, s%d, 4" % (S_T0, S_CT))
    a("s_lshl_b32 s%d, s%d, 7" % (S_T0, S_T0))
    a("s_add_u32 s%d, s%d, 1024" % (S_COL0, S_T0))
    a("s_mov_b32 s%d, 1024" % S_SA)
    a("s_mov_b32 s%d, 32" % S_SB)
    a("s_mov_b32 s%d, 0" % S_SHIFT)
    a.label(ldone)
    a("s_cmp_ge_u32 s%d, 4" % S_WAVE)
    a("s_cbranch_scc1 L_k1_loader")
    a("s_or_b32 s%d, s2, s%d" % (S_T0, S_WAVE))
    a("s_cmp_lg_u32 s%d, 0" % S_T0)
    a("s_cbranch_scc1 L_k1_noclr")
    make_srd(a, SRD_F, P_WS, WS_FLAG, FLAG_BYTES)
    a("v_lshlrev_b32 v2, 4, v1")
    for r in range(4):
        a("v_mov_b32 v%d, 0" % (4 + r))
    for blk in range(FLAG_BYTES // 4096):
        for t in range(4):
            a("buffer_store_dwordx4 v[4:7], v2, s[%d:%d], 0 offen offset:%d sc1" % (SRD_F, SRD_F + 3, 1024 * t))
        a("v_add_u32 v2, 4096, v2")
    a("s_waitcnt vmcnt(0)")
    make_srd(a, SRD_F, P_DBG, 0, 256)
    a("v_mov_b32 v2, 252")
    a("v_mov_b32 v3, 1")
    a("s_mov_b64 exec, 1")
    a("buffer_store_dword v3, v2, s[%d:%d], 0 offen sc1" % (SRD_F, SRD_F + 3))
    a("s_mov_b64 exec, -1")
    a.label("L_k1_noclr")
    dbgstamp(a, 0, False)
    a("s_cmp_lg_u32 s%d, 1" % S_WAVE)
    a("s_cbranch_scc1 L_k1_nocpf")
    code_prefetch(a, MAIN, "L_code_end")
    a.label("L_k1_nocpf")
    PF = "nopf" not in EXP
    if PF and "k1nox" not in EXP:
        a("v_lshlrev_b32 v%d, 7, v1" % V_PF)
        prefetch_jobs(a, [(P_X, S * D * 2)])
    a("s_lshl_b32 s%d, s%d, 3" % (S_T3, S_CT))
    a("s_add_u32 s%d, s%d, s%d" % (S_T3, S_T3, S_ROW0))
    a("s_lshl_b32 s%d, s%d, 1" % (S_T0, S_WAVE))
    a("s_add_u32 s%d, s%d, s%d" % (S_T3, S_T3, S_T0))
    gate_job(a, S_T3, 128, SRD_A2, SRD_B2, 2)
    a("s_cmp_lg_u32 s%d, 1" % S_TYPE)
    a("s_cbranch_scc1 L_k1_sjd")
    a("s_cmp_lg_u32 s%d, 3" % S_WAVE)
    a("s_cbranch_scc1 L_k1_sjd")
    a("s_sub_u32 s%d, s%d, 4" % (S_T3, S_CT))
    a("s_lshl_b32 s%d, s%d, 4" % (S_T3, S_T3))
    a("s_add_u32 s%d, s%d, s%d" % (S_T3, S_T3, S_RB))
    a("s_nop 1")
    colsum_job(a, S_T3, 128, True, SRD_A2, SRD_B2)
    a.label("L_k1_sjd")
    a("s_waitcnt vmcnt(0)")
    compute_addr_setup(a, c)
    zero_acc(a, V_ACC, 128)
    pf = None
    PF0 = 0
    for e in EXP:
        if e.startswith("pf0_"): PF0 = int(e[4:])
    if PF and "k1nolate" not in EXP:
        if "pfw2only" in EXP:
            pf = pf_stream_setup(a, [(P_W2, D * D * 2, w, 4) for w in range(4)], 16 - PF0)
        elif "pfhalf" in EXP:
            pf = pf_stream_setup(a, [(P_W2, D * D * 2, 0, 1), (P_W3, D * F * 2, 0, 6), (P_W3, D * F * 2, 1, 6), (P_W3, D * F * 2, 2, 6)], 16 - PF0)
        elif "nopfb" in EXP:
            pf = pf_stream_setup(a, [(P_W2, D * D * 2, 0, 1), (P_W3, D * F * 2, 0, 3), (P_W3, D * F * 2, 1, 3), (P_W3, D * F * 2, 2, 3)], 16 - PF0)
        else:
            dist = 7
            for e in EXP:
                if e.startswith("pbd"): dist = int(e[3:])
            pf = pf_stream_setup(a, [(P_W2, D * D * 2, 0, 1), lambda: pfB_setup(a, SRD_B, S_LDB, 8, True, 2, dist), (P_W3, D * F * 2, 0, 2), (P_W3, D * F * 2, 1, 2)], 16 - PF0)
    def initpoll():
        make_srd(a, SRD_B2, P_DBG, 0, 256)
        a("v_mov_b32 v2, 252")
        poll_loop(a, 1)
    wave0(a, initpoll)
    compute_start(a, c)
    a("s_cmp_eq_u32 s%d, 1" % S_TYPE)
    a("s_cbranch_scc1 L_k1_kvloop")

    wave0(a, lambda: flag_signal(a, FL_XS, S_RB))
    compute_loop(a, c, 11, V_ACC, True, pf)

    def pollxs():
        l = a.newlabel("notw1")
        a("s_cmp_lg_u32 s%d, 2" % S_TYPE)
        a("s_cbranch_scc1 %s" % l)
        flag_poll_multi(a, [(FL_XS, S_RB, 16), (FL_CS1, None, 128)])
        a.label(l)
    wave0(a, pollxs)
    compute_loop(a, c, 5, V_ACC, True, pf)
    a("s_waitcnt lgkmcnt(0)")
    xfer_send(a)
    a("s_waitcnt lgkmcnt(0)")
    a("s_barrier")
    a.label("L_k1_epi")
    a("s_cmp_eq_u32 s%d, 0" % S_TYPE)
    a("s_cbranch_scc1 L_k1_epq")
    epi_ln_gelu(a, c, SRD_C, 2048, S_SHIFT)
    a("s_branch L_m_e1c")
    a.label("L_k1_epq")
    epi_phi_q(a, c, SRD_C, 2048)
    a("s_branch L_m_e1c")
    a.label("L_k1_kvloop")
    def sigkv():
        flag_signal(a, FL_XS, S_RB)
        flag_signal(a, FL_CS1, None)
    wave0(a, sigkv)
    compute_loop(a, c, 16, V_ACC, False, pf)
    a("s_waitcnt lgkmcnt(0)")
    a("s_barrier")
    a("s_nop 15")
    epi_kv(a, c)
    a("s_branch L_m_e1c")
    a.label("L_k1_loader")
    a("s_sub_u32 s%d, s%d, 4" % (S_LW, S_WAVE))
    a("v_mov_b32 v4, %d" % (147456 + 2048))
    a("v_mov_b32 v3, 0")
    a("ds_write_b32 v4, v3")
    loader_a_offsets(a, V_LA, 2048)
    loader_b_offsets_big(a, V_LB)
    a("s_cmp_eq_u32 s%d, 2" % S_TYPE)
    a("s_cselect_b32 s%d, 1, 0" % S_C0)
    a("s_cmp_eq_u32 s%d, 0" % S_C0)
    a("s_cbranch_scc1 L_k1_nofin")
    a("s_cmp_lg_u32 s%d, 0" % S_LW)
    a("s_cbranch_scc1 L_k1_nofin")
    a("s_cmp_gt_i32 s%d, 0" % S_SHIFT)
    a("s_cselect_b32 s%d, 0, 15" % S_T0)
    a("s_cmp_lg_u32 s%d, s%d" % (S_T0, S_RB))
    a("s_cbranch_scc1 L_k1_nofin")
    a("s_cmp_gt_i32 s%d, 0" % S_SHIFT)
    a("s_cselect_b32 s%d, 0, 2046" % S_T0)
    a("s_cselect_b32 s%d, s%d, 0" % (S_T1, S_SHIFT))
    a("v_lshrrev_b32 v3, 5, v1")
    a("v_add_u32 v3, s%d, v3" % S_T0)
    a("v_and_b32 v4, 31, v1")
    a("v_lshlrev_b32 v4, 4, v4")
    a("v_lshl_add_u32 v4, v3, 11, v4")
    a("s_lshl_b32 s%d, s%d, 1" % (S_T2, S_COL0))
    a("v_add_u32 v4, s%d, v4" % S_T2)
    a("s_add_u32 s%d, s%d, 2048" % (S_T2, S_SHIFT))
    a("s_cmp_gt_i32 s%d, 0" % S_SHIFT)
    a("s_cselect_b32 s%d, 0, s%d" % (S_T2, S_T2))
    a("s_cselect_b32 s%d, s%d, 2048" % (S_T1, S_SHIFT))
    a("v_cmp_le_u32 vcc, s%d, v3" % S_T2)
    a("v_cmp_gt_u32 s[%d:%d], s%d, v3" % (S_C0 + 2, S_C0 + 3, S_T1))
    a("v_mov_b32 v8, 0")
    a("v_mov_b32 v9, 0")
    a("v_mov_b32 v10, 0")
    a("v_mov_b32 v11, 0")
    a("s_and_b64 vcc, vcc, s[%d:%d]" % (S_C0 + 2, S_C0 + 3))
    a("s_and_saveexec_b64 s[%d:%d], vcc" % (S_EXEC, S_EXEC + 1))
    a("buffer_store_dwordx4 v[8:11], v4, s[%d:%d], 0 offen sc1" % (SRD_C, SRD_C + 3))
    a("s_mov_b64 exec, s[%d:%d]" % (S_EXEC, S_EXEC + 1))
    a.label("L_k1_nofin")
    loader_loop(a, c, [(16, SRD_A, SRD_B, V_LA, V_LB, "s_lshl_b32 s%d, s%d, 6" % (S_KBSTEP, S_LDB))], None, None,
                (lambda: k1_stats_issue(a, c), 9, lambda: k1_stats_fin(a, c)))
    a("s_barrier")
    a("s_sub_u32 s%d, s%d, 4" % (S_C0, S_CT))
    a("s_lshl_b32 s%d, s%d, 4" % (S_C0, S_C0))
    a("s_add_u32 s%d, s%d, s%d" % (S_C0, S_C0, S_RB))
    a("s_lshl_b32 s%d, s%d, 2" % (S_C0, S_C0))
    a("s_add_u32 s%d, s%d, s%d" % (S_C0, S_C0, S_LW))
    a("s_cmp_lg_u32 s%d, 0" % S_TYPE)
    a("s_cbranch_scc1 L_m_loader2")
    a("s_lshl_b32 s%d, s%d, 5" % (S_C0, S_CT))
    a("s_add_u32 s%d, s%d, s%d" % (S_C0, S_C0, S_ROW0))
    a("s_lshl_b32 s%d, s%d, 3" % (S_T0, S_LW))
    a("s_add_u32 s%d, s%d, s%d" % (S_C0, S_C0, S_T0))
    a("s_branch L_m_loader2")


def small_tile_decode(a):
    a("s_and_b32 s%d, s%d, 3" % (S_T0, S_XCD))
    a("s_lshl_b32 s%d, s%d, 2" % (S_T0, S_T0))
    a("s_and_b32 s%d, s%d, 3" % (S_T1, S_J))
    a("s_add_u32 s%d, s%d, s%d" % (S_RB, S_T0, S_T1))
    a("s_lshr_b32 s%d, s%d, 2" % (S_T0, S_XCD))
    a("s_lshl_b32 s%d, s%d, 3" % (S_T0, S_T0))
    a("s_lshr_b32 s%d, s%d, 2" % (S_T1, S_J))
    a("s_add_u32 s%d, s%d, s%d" % (S_CT, S_T0, S_T1))
    a("s_lshl_b32 s%d, s%d, 7" % (S_ROW0, S_RB))
    a("s_lshl_b32 s%d, s%d, 6" % (S_COL0, S_CT))


def load_resid(a, c, dst, vaddr, srd, fl=""):
    for g in range(4):
        a("buffer_load_dwordx2 v[%d:%d], v%d, s[%d:%d], 0 offen offset:%d%s" % (dst + 2 * g, dst + 2 * g + 1, vaddr, srd, srd + 3, 16 * g, fl))


def unpack_bf16(a, dst, src, n):
    for p in range(n):
        a("v_lshlrev_b32 v%d, 16, v%d" % (dst + 2 * p, src + p))
        a("v_and_b32 v%d, 0xffff0000, v%d" % (dst + 2 * p + 1, src + p))


def round_regs_bf16(a, regs, n, tmp):
    for p in range(n // 2):
        a("v_cvt_pk_bf16_f32 v%d, v%d, v%d" % (tmp + p, regs + 2 * p, regs + 2 * p + 1))
    unpack_bf16(a, regs, tmp, n // 2)


def kv_reduce(a, S_WAVE, doz):
    make_srd(a, SRD_E, P_WS, WS_KVP, 2 * MB)
    make_srd(a, SRD_F, P_WS, WS_KVB, 65536)
    a("s_lshl_b32 s%d, s%d, 3" % (S_T2, S_CT))
    a("s_add_u32 s%d, s%d, s%d" % (S_T2, S_T2, S_WAVE))
    a("v_and_b32 v2, 31, v1")
    a("v_lshrrev_b32 v3, 5, v1")
    a("v_lshlrev_b32 v3, 20, v3")
    a("v_lshl_add_u32 v3, v2, 4, v3")
    a("s_lshl_b32 s%d, s%d, 9" % (S_T0, S_T2))
    a("v_add_u32 v3, s%d, v3" % S_T0)
    for r in range(8):
        a("s_mov_b32 s%d, 0x%x" % (S_T1, r * 131072))
        a("buffer_load_dwordx4 v[%d:%d], v3, s[%d:%d], s%d offen%s" % (16 + 4 * r, 19 + 4 * r, SRD_E, SRD_E + 3, S_T1, HO))
    make_srd(a, SRD_E, P_WS, WS_ZP, 65536)
    a("v_and_b32 v4, 7, v1")
    a("v_lshrrev_b32 v5, 3, v1")
    a("v_lshlrev_b32 v5, 12, v5")
    a("v_lshl_add_u32 v5, v4, 4, v5")
    a("s_lshl_b32 s%d, s%d, 7" % (S_T0, S_CT))
    a("v_add_u32 v5, s%d, v5" % S_T0)
    a("s_mov_b32 s%d, 0x8000" % S_T1)
    a("buffer_load_dwordx4 v[48:51], v5, s[%d:%d], 0 offen%s" % (SRD_E, SRD_E + 3, HO))
    a("buffer_load_dwordx4 v[52:55], v5, s[%d:%d], s%d offen%s" % (SRD_E, SRD_E + 3, S_T1, HO))
    a("s_waitcnt vmcnt(2)")
    for r in range(1, 8):
        a("v_pk_add_f32 v[16:17], v[16:17], v[%d:%d]" % (16 + 4 * r, 17 + 4 * r))
        a("v_pk_add_f32 v[18:19], v[18:19], v[%d:%d]" % (18 + 4 * r, 19 + 4 * r))
    for r in range(4):
        a("v_mov_b32 v%d, v%d" % (20 + r, 16 + r))
    a("s_nop 1")
    for r in range(4):
        a("v_permlane32_swap_b32 v%d, v%d" % (16 + r, 20 + r))
    a("s_nop 1")
    a("v_pk_add_f32 v[16:17], v[16:17], v[20:21]")
    a("v_pk_add_f32 v[18:19], v[18:19], v[22:23]")
    a("v_cvt_pk_bf16_f32 v16, v16, v17")
    a("v_cvt_pk_bf16_f32 v17, v18, v19")
    a("s_lshl_b32 s%d, s%d, 8" % (S_T0, S_T2))
    a("v_lshlrev_b32 v2, 3, v2")
    a("v_add_u32 v2, s%d, v2" % S_T0)
    a("s_mov_b32 exec_hi, 0")
    a("buffer_store_dwordx2 v[16:17], v2, s[%d:%d], 0 offen%s" % (SRD_F, SRD_F + 3, HO))
    a("s_mov_b64 exec, -1")
    ldone = a.newlabel("zdone")
    a("s_cmp_lg_u32 s%d, 0" % S_WAVE)
    a("s_cbranch_scc1 %s" % ldone)
    make_srd(a, SRD_F, P_WS, WS_ZB, 2048)
    a("s_waitcnt vmcnt(1)")
    a("v_pk_add_f32 v[48:49], v[48:49], v[52:53]")
    a("v_pk_add_f32 v[50:51], v[50:51], v[54:55]")
    for pat in (0x201F, 0x401F):
        for r in range(4):
            a("ds_swizzle_b32 v%d, v%d offset:0x%x" % (52 + r, 48 + r, pat))
        a("s_waitcnt lgkmcnt(0)")
        a("v_pk_add_f32 v[48:49], v[48:49], v[52:53]")
        a("v_pk_add_f32 v[50:51], v[50:51], v[54:55]")
    for r in range(4):
        a("v_mov_b32 v%d, v%d" % (52 + r, 48 + r))
    a("s_nop 1")
    for r in range(4):
        a("v_permlane32_swap_b32 v%d, v%d" % (48 + r, 52 + r))
    a("s_nop 1")
    a("v_pk_add_f32 v[48:49], v[48:49], v[52:53]")
    a("v_pk_add_f32 v[50:51], v[50:51], v[54:55]")
    a("v_cvt_pk_bf16_f32 v48, v48, v49")
    a("v_cvt_pk_bf16_f32 v49, v50, v51")
    a("s_lshl_b32 s%d, s%d, 6" % (S_T0, S_CT))
    a("v_lshlrev_b32 v4, 3, v4")
    a("v_add_u32 v4, s%d, v4" % S_T0)
    a("s_mov_b64 exec, 0xff")
    a("buffer_store_dwordx2 v[48:49], v4, s[%d:%d], 0 offen%s" % (SRD_F, SRD_F + 3, HO))
    a("s_mov_b64 exec, -1")
    a.label(ldone)
    a("s_nop 1")


def colsum_job(a, s_job, R=128, w1=False, SRD_E=SRD_E, SRD_F=SRD_F):
    AC, TM, DT = R, R + 8, R + 16
    F = D if w1 else 3584
    make_srd(a, SRD_E, P_W1 if w1 else P_W3, 0, D * F * 2)
    make_srd(a, SRD_F, P_WS, WS_CS1 if w1 else WS_CSP, 8 * F * 4)
    if w1:
        a("s_lshr_b32 s%d, s%d, 4" % (S_T1, s_job))
        a("s_and_b32 s%d, s%d, 15" % (S_T2, s_job))
    else:
        a("s_mul_i32 s%d, s%d, 1171" % (S_T1, s_job))
        a("s_lshr_b32 s%d, s%d, 16" % (S_T1, S_T1))
        a("s_mul_i32 s%d, s%d, 56" % (S_T2, S_T1))
        a("s_sub_u32 s%d, s%d, s%d" % (S_T2, s_job, S_T2))
    a("v_lshrrev_b32 v3, 3, v1")
    a("s_lshl_b32 s%d, s%d, 7" % (S_T0, S_T1))
    a("v_add_u32 v3, s%d, v3" % S_T0)
    a("s_mov_b32 s%d, %d" % (S_T0, F * 2))
    a("v_mul_lo_u32 v3, v3, s%d" % S_T0)
    a("v_and_b32 v2, 7, v1")
    a("v_lshl_add_u32 v3, v2, 4, v3")
    a("s_lshl_b32 s%d, s%d, 7" % (S_T0, S_T2))
    a("v_add_u32 v3, s%d, v3" % S_T0)
    for t in range(16):
        a("s_mov_b32 s%d, %d" % (S_T0, t * 8 * F * 2))
        a("buffer_load_dwordx4 v[%d:%d], v3, s[%d:%d], s%d offen" % (DT + 4 * t, DT + 3 + 4 * t, SRD_E, SRD_E + 3, S_T0))
    for r in range(8):
        a("v_mov_b32 v%d, 0" % (AC + r))
    add = lambda: [a("v_pk_add_f32 v[%d:%d], v[%d:%d], v[%d:%d]" % (AC + 2 * q, AC + 1 + 2 * q, AC + 2 * q, AC + 1 + 2 * q, TM + 2 * q, TM + 1 + 2 * q)) for q in range(4)]
    for t in range(16):
        a("s_waitcnt vmcnt(%d)" % (15 - t))
        unpack_bf16(a, TM, DT + 4 * t, 4)
        add()
    for pat in (0x201F, 0x401F):
        for r in range(8):
            a("ds_swizzle_b32 v%d, v%d offset:0x%x" % (TM + r, AC + r, pat))
        a("s_waitcnt lgkmcnt(0)")
        add()
    for r in range(8):
        a("v_mov_b32 v%d, v%d" % (TM + r, AC + r))
    a("s_nop 1")
    for r in range(8):
        a("v_permlane32_swap_b32 v%d, v%d" % (AC + r, TM + r))
    a("s_nop 1")
    add()
    a("s_mul_i32 s%d, s%d, %d" % (S_T0, S_T1, F * 4))
    a("s_lshl_b32 s%d, s%d, 8" % (S_T2, S_T2))
    a("s_add_u32 s%d, s%d, s%d" % (S_T0, S_T0, S_T2))
    a("v_lshlrev_b32 v2, 5, v2")
    a("v_add_u32 v2, s%d, v2" % S_T0)
    a("s_mov_b64 exec, 0xff")
    a("buffer_store_dwordx4 v[%d:%d], v2, s[%d:%d], 0 offen%s" % (AC, AC + 3, SRD_F, SRD_F + 3, HO))
    a("buffer_store_dwordx4 v[%d:%d], v2, s[%d:%d], 0 offen offset:16%s" % (AC + 4, AC + 7, SRD_F, SRD_F + 3, HO))
    a("s_mov_b64 exec, -1")


def gen_k2(a):
    name = "k2_kernel"
    c = Cfg(64, 6)
    kernel_header(a, name, 256)
    small_tile_decode(a)
    a("s_waitcnt lgkmcnt(0)")
    make_srd(a, SRD_A, P_WS, WS_HS, S * D * 2)
    make_srd(a, SRD_B, P_W2, 0, D * D * 2)
    make_srd(a, SRD_C, P_WS, WS_X1, S * D * 2)
    make_srd(a, SRD_D, P_X, 0, S * D * 2)
    a("s_cmp_ge_u32 s%d, 4" % S_WAVE)
    a("s_cbranch_scc1 L_k2_loader")
    kv_reduce(a)
    VST, VLD, VX = 200, 204, 208
    epi_store_addr(a, c, 2048, VST, 2)
    a("v_lshrrev_b32 v3, 5, v1")
    a("v_lshlrev_b32 v3, 3, v3")
    for i in range(2):
        a("v_sub_u32 v%d, v%d, v3" % (VLD + i, VST + i))
    for i in range(2):
        load_resid(a, c, VX + 8 * i, VLD + i, SRD_D)
    compute_addr_setup(a, c)
    zero_acc(a, V_ACC, 32)
    pf = None
    if "nopf" not in EXP:
        pf = pf_stream_setup(a, [(P_WO, D * D * 2, w, 4) for w in range(4)], 16)
    compute_start(a, c)
    compute_loop(a, c, 16, V_ACC, True, pf)
    stamp(a, 2)
    a("s_waitcnt vmcnt(0) lgkmcnt(0)")
    a("s_nop 15")
    for i in range(2):
        acc = V_ACC + 16 * i
        round_regs_bf16(a, acc, 16, 16)
        unpack_bf16(a, 32, VX + 8 * i, 8)
        for p in range(8):
            a("v_pk_add_f32 v[%d:%d], v[%d:%d], v[%d:%d]" % (acc + 2 * p, acc + 2 * p + 1, acc + 2 * p, acc + 2 * p + 1, 32 + 2 * p, 33 + 2 * p))
        pack_swap_store(a, acc, 48 + 8 * i, VST + i, SRD_C, 0)
    make_srd(a, SRD_E, P_WS, WS_XS, S * 256)
    a("v_mov_b32 v64, 0x3f803f80")
    for i in range(2):
        for r in range(4):
            a("v_mov_b32 v%d, 0" % (68 + 4 * i + r))
    for p in range(8):
        for i in range(2):
            b = 68 + 4 * i + 2 * (p & 1)
            a("v_dot2_f32_bf16 v%d, v%d, v64, v%d" % (b, 48 + 8 * i + p, b))
            a("v_dot2_f32_bf16 v%d, v%d, v%d, v%d" % (b + 1, 48 + 8 * i + p, 48 + 8 * i + p, b + 1))
    a("s_lshl_b32 s%d, s%d, 1" % (S_T0, S_CT))
    a("s_and_b32 s%d, s%d, 1" % (S_T1, S_WAVE))
    a("s_add_u32 s%d, s%d, s%d" % (S_T0, S_T0, S_T1))
    a("s_lshl_b32 s%d, s%d, 3" % (S_T0, S_T0))
    a("s_nop 1")
    for i in range(2):
        b = 68 + 4 * i
        a("v_pk_add_f32 v[%d:%d], v[%d:%d], v[%d:%d]" % (b, b + 1, b, b + 1, b + 2, b + 3))
        a("v_mov_b32 v%d, v%d" % (b + 2, b))
        a("v_mov_b32 v%d, v%d" % (b + 3, b + 1))
        a("s_nop 1")
        a("v_permlane32_swap_b32 v%d, v%d" % (b, b + 2))
        a("v_permlane32_swap_b32 v%d, v%d" % (b + 1, b + 3))
        a("s_nop 1")
        a("v_pk_add_f32 v[%d:%d], v[%d:%d], v[%d:%d]" % (b, b + 1, b, b + 1, b + 2, b + 3))
        a("v_lshrrev_b32 v3, 11, v%d" % (VST + i))
        a("v_lshlrev_b32 v3, 8, v3")
        a("v_add_u32 v3, s%d, v3" % S_T0)
        a("buffer_store_dwordx2 v[%d:%d], v3, s[%d:%d], 0 offen" % (b, b + 1, SRD_E, SRD_E + 3))
    a("s_branch L_%s_cdone" % name)
    a.label("L_k2_loader")
    a("s_sub_u32 s%d, s%d, 4" % (S_LW, S_WAVE))
    loader_a_offsets(a, V_LA, 2048)
    loader_b_offsets_small(a, V_LB, 2048)
    loader_loop(a, c, [(16, SRD_A, SRD_B, V_LA, V_LB, 64 * 2048)], None)
    kernel_footer(a, name, 1)
    descriptor(a, name)
    return name, 256, c.LDS_TOTAL


def k3_stats_from_partials(a, c):
    k3_stats_issue(a, c, S_WAVE)
    k3_stats_fin(a, c, S_WAVE)


def k3_stats_issue(a, c, S_WAVE):
    make_srd(a, SRD_D, P_WS, WS_XS, 256 * 1024)
    make_srd(a, SRD_E, P_WS, WS_CSP, 8 * F * 4)
    a("v_and_b32 v2, 31, v1")
    a("s_lshl_b32 s%d, s%d, 8" % (S_T0, S_WAVE))
    a("s_lshl_b32 s%d, s%d, 14" % (S_T1, S_RB))
    a("s_add_u32 s%d, s%d, s%d" % (S_T0, S_T0, S_T1))
    a("v_lshlrev_b32 v2, 3, v2")
    a("v_add_u32 v2, s%d, v2" % S_T0)
    a("v_lshrrev_b32 v3, 5, v1")
    a("v_lshl_add_u32 v2, v3, 13, v2")
    a("v_add_u32 v4, 4096, v2")
    for t in range(8):
        a("buffer_load_dwordx2 v[%d:%d], v%d, s[%d:%d], 0 offen offset:%d%s" % (64 + 2 * t, 65 + 2 * t, 2 if t < 4 else 4, SRD_D, SRD_D + 3, 1024 * (t & 3), HO))
    a("s_lshl_b32 s%d, s%d, 6" % (S_T0, S_WAVE))
    a("s_add_u32 s%d, s%d, s%d" % (S_T0, S_T0, S_COL0))
    a("v_add_u32 v3, s%d, v1" % S_T0)
    a("v_lshlrev_b32 v3, 2, v3")
    for t in range(8):
        a("s_mov_b32 s%d, %d" % (S_T1, t * F * 4))
        a("buffer_load_dword v%d, v3, s[%d:%d], s%d offen%s" % (96 + t, SRD_E, SRD_E + 3, S_T1, HO))


def k3_stats_fin(a, c, S_WAVE):
    a("s_waitcnt vmcnt(0)")
    for t in range(1, 8):
        a("v_pk_add_f32 v[64:65], v[64:65], v[%d:%d]" % (64 + 2 * t, 65 + 2 * t))
    for t in range(1, 8):
        a("v_add_f32 v96, v96, v%d" % (96 + t))
    a("v_mov_b32 v%d, v64" % V_SUM)
    a("v_mov_b32 v%d, v65" % V_SQ)
    a("v_mov_b32 v%d, v96" % V_CS0)
    for r in (V_SUM2, V_SQ2, V_CS1):
        a("v_mov_b32 v%d, 0" % r)
    stats_finish(a, c, S_WAVE)


def gen_k3(a):
    name = "k3_kernel"
    c = Cfg(256, 3)
    kernel_header(a, name, 256)
    a("s_cmp_ge_u32 s%d, 28" % S_J)
    a("s_cbranch_scc1 L_k3_owg")
    a("s_and_b32 s%d, s%d, 3" % (S_T0, S_XCD))
    a("s_lshl_b32 s%d, s%d, 2" % (S_T0, S_T0))
    a("s_and_b32 s%d, s%d, 3" % (S_T1, S_J))
    a("s_add_u32 s%d, s%d, s%d" % (S_RB, S_T0, S_T1))
    a("s_lshr_b32 s%d, s%d, 2" % (S_T0, S_XCD))
    a("s_mul_i32 s%d, s%d, 7" % (S_T0, S_T0))
    a("s_lshr_b32 s%d, s%d, 2" % (S_T1, S_J))
    a("s_add_u32 s%d, s%d, s%d" % (S_CT, S_T0, S_T1))
    a("s_lshl_b32 s%d, s%d, 7" % (S_ROW0, S_RB))
    a("s_lshl_b32 s%d, s%d, 8" % (S_COL0, S_CT))
    a("s_waitcnt lgkmcnt(0)")
    make_srd(a, SRD_A, P_WS, WS_X1, S * D * 2)
    make_srd(a, SRD_B, P_W3, 0, D * F * 2)
    make_srd(a, SRD_C, P_WS, WS_ACT, S * F * 2)
    a("s_mov_b32 s%d, %d" % (S_LDB, F * 2))
    a("s_mov_b32 s%d, 32" % S_SA)
    a("s_mov_b32 s%d, 64" % S_SB)
    a("s_cmp_ge_u32 s%d, 4" % S_WAVE)
    a("s_cbranch_scc1 L_k3_loader")
    k3_stats_from_partials(a, c)
    compute_addr_setup(a, c)
    zero_acc(a, V_ACC, 128)
    pf = None
    if "nopf" not in EXP:
        pf = pf_stream_setup(a, [(P_W4, D * F * 2, w, 4) for w in range(4)], 16)
    compute_start(a, c)
    compute_loop(a, c, 16, V_ACC, True, pf)
    stamp(a, 2)
    a("s_waitcnt lgkmcnt(0)")
    xfer_send(a)
    a("s_waitcnt lgkmcnt(0)")
    a("s_barrier")
    a.label("L_k3_epi")
    epi_ln_gelu(a, c, SRD_C, F * 2, None)
    a("s_branch L_%s_cdone" % name)
    a.label("L_k3_loader")
    a("s_sub_u32 s%d, s%d, 4" % (S_LW, S_WAVE))
    loader_a_offsets(a, V_LA, 2048)
    loader_b_offsets_big(a, V_LB)
    loader_loop(a, c, [(16, SRD_A, SRD_B, V_LA, V_LB, 64 * F * 2)], None)
    a("s_barrier")
    if NI_EPI == 2:
        xfer_recv(a)
        a("s_branch L_k3_epi")
    else:
        a("s_branch L_%s_ldone" % name)
    a.label("L_k3_owg")
    gen_owg(a)
    a("s_branch L_%s_cdone" % name)
    kernel_footer(a, name, 2)
    descriptor(a, name)
    return name, 256, c.LDS_TOTAL


def gen_owg(a):
    S_HEAD = S_CT
    a("s_sub_u32 s%d, s%d, 28" % (S_T0, S_J))
    a("s_lshl_b32 s%d, s%d, 2" % (S_T1, S_XCD))
    a("s_add_u32 s%d, s%d, s%d" % (S_HEAD, S_T0, S_T1))
    a("s_waitcnt lgkmcnt(0)")
    make_srd(a, SRD_A, P_WS, WS_KVB, 65536)
    make_srd(a, SRD_B, P_WS, WS_ZB, 2048)
    make_srd(a, SRD_C, P_WS, WS_PQ, S * D * 2)
    make_srd(a, SRD_D, P_WS, WS_O, S * D * 2)
    make_srd(a, SRD_E, P_X, 0, S * D * 2)
    make_srd(a, SRD_A2, P_WS, WS_G, 8192)
    a("v_and_b32 v2, 31, v1")
    a("v_lshrrev_b32 v3, 5, v1")
    a("v_lshlrev_b32 v3, 4, v3")
    a("v_lshlrev_b32 v4, 5, v3")
    a("v_lshl_add_u32 v4, v2, 3, v4")
    a("s_lshl_b32 s%d, s%d, 13" % (S_T0, S_WAVE))
    a("v_add_u32 v4, s%d, v4" % S_T0)
    a("s_lshl_b32 s%d, s%d, 8" % (S_T0, S_WAVE))
    a("v_add_u32 v5, s%d, v3" % S_T0)
    a("s_lshl_b32 s%d, s%d, 6" % (S_T1, S_HEAD))
    a("v_add_u32 v6, s%d, v2" % S_T1)
    a("v_lshlrev_b32 v6, 11, v6")
    a("v_add3_u32 v6, v6, v3, s%d" % S_T0)
    a("v_add_u32 v7, 0x10000, v6")
    KVB, ZB, PQ = 16, 48, 80
    for rb in range(2):
        for h in range(4):
            for m in range(2):
                b = PQ + 32 * rb + 8 * h + 4 * m
                a("buffer_load_dwordx4 v[%d:%d], v%d, s[%d:%d], 0 offen offset:%d%s" % (b, b + 3, 6 + rb, SRD_C, SRD_C + 3, 64 * h + 32 * m, HO))
    a("v_mov_b32 v12, v4")
    a("v_mov_b32 v13, v5")
    kv_reduce(a, S_WAVE, True)
    a("s_waitcnt vmcnt(0)")
    a("s_barrier")

    def sigr():
        flag_signal(a, FL_RED, None)
        flag_poll(a, FL_RED, None, 32)
    wave0(a, sigr)
    a("s_barrier")
    a("v_mov_b32 v4, v12")
    a("v_mov_b32 v5, v13")
    mstamp(a, "P3")
    for h in range(4):
        for m in range(2):
            for q in range(2):
                a("buffer_load_dwordx2 v[%d:%d], v%d, s[%d:%d], 0 offen offset:%d%s" % (KVB + 8 * h + 4 * m + 2 * q, KVB + 8 * h + 4 * m + 2 * q + 1, 4 if h < 2 else 8, SRD_A, SRD_A + 3, 2048 * (h & 1) + 1024 * m + 256 * q, HO))
        if h == 1:
            a("v_add_u32 v8, 4096, v4")
    for h in range(4):
        for m in range(2):
            a("buffer_load_dwordx4 v[%d:%d], v5, s[%d:%d], 0 offen offset:%d%s" % (ZB + 8 * h + 4 * m, ZB + 8 * h + 4 * m + 3, SRD_B, SRD_B + 3, 64 * h + 32 * m, HO))
    a("s_waitcnt vmcnt(0)")
    mstamp(a, "L3")
    NUM = 144
    t = 0
    OVST, OVW, OVR, OVAT, OVD = 9, 240, 10, 244, 16
    a("s_lshl_b32 s%d, s%d, 6" % (S_T2, S_HEAD))
    a("s_lshl_b32 s%d, s%d, 8" % (S_T3, S_WAVE))
    line_store_setup(a, 2048, OVST, OVW, OVR, S_T2, S_T3, 65536)
    for rb in range(2):
        for h in range(4):
            nb = NUM + 48 * (t & 1)
            db = nb + 16
            tp = nb + 32
            for m in range(2):
                cin_n = "0" if m == 0 else "v[%d:%d]" % (nb, nb + 15)
                cin_d = "0" if m == 0 else "v[%d:%d]" % (db, db + 15)
                b = PQ + 32 * rb + 8 * h + 4 * m
                a("v_mfma_f32_32x32x16_bf16 v[%d:%d], v[%d:%d], v[%d:%d], %s" % (nb, nb + 15, KVB + 8 * h + 4 * m, KVB + 8 * h + 4 * m + 3, b, b + 3, cin_n))
                a("v_mfma_f32_32x32x16_bf16 v[%d:%d], v[%d:%d], v[%d:%d], %s" % (db, db + 15, ZB + 8 * h + 4 * m, ZB + 8 * h + 4 * m + 3, b, b + 3, cin_d))
            a("s_nop 15")
            a("s_nop 3")
            bf16_round(a, db, db)
            a("v_add_f32 v%d, %s, v%d" % (db, f32(1e-6), db))
            bf16_round(a, db, db)
            a("v_rcp_f32 v%d, v%d" % (db, db))
            round_regs_bf16(a, nb, 16, tp)
            for p in range(8):
                a("v_pk_mul_f32 v[%d:%d], v[%d:%d], v[%d:%d] op_sel:[0,0] op_sel_hi:[1,0]" % (nb + 2 * p, nb + 2 * p + 1, nb + 2 * p, nb + 2 * p + 1, db, db + 1))
            off = 4096 * ((t >> 1) & 1)
            line_pack_write(a, nb, tp + 8, OVW, h & 1, off)
            if h & 1:
                vd = PQ + 32 * rb + 16 * (h >> 1)
                line_read(a, vd, OVR, off)
                a("s_waitcnt lgkmcnt(0)")
                line_store(a, vd, OVST, OVAT, SRD_D, 2048, rb, HO, 128 * (h >> 1))
            t += 1
    if "nopf" not in EXP:
        a("v_lshlrev_b32 v%d, 7, v1" % 14)
        prefetch_jobs(a, [(P_W4, D * F * 2)], 14, 15)


def gate_job(a, s_row, R=128, SRD_E=SRD_E, SRD_F=SRD_F, NR=2):
    GW, AC, TM, RS, XD = R, R + 8, R + 32, R + 56, R + 64
    NA = 3 * NR
    make_srd(a, SRD_F, P_GATE, 0, 2048)
    make_srd(a, SRD_E, P_X, 0, S * D * 2)
    a("v_lshlrev_b32 v2, 4, v1")
    a("buffer_load_dwordx4 v[%d:%d], v2, s[%d:%d], 0 offen" % (GW, GW + 3, SRD_F, SRD_F + 3))
    a("buffer_load_dwordx4 v[%d:%d], v2, s[%d:%d], 0 offen offset:1024" % (GW + 4, GW + 7, SRD_F, SRD_F + 3))
    a("s_lshl_b32 s%d, s%d, 11" % (S_T0, s_row))
    for t in range(NR):
        a("buffer_load_dwordx4 v[%d:%d], v2, s[%d:%d], s%d offen" % (XD + 8 * t, XD + 3 + 8 * t, SRD_E, SRD_E + 3, S_T0))
        a("buffer_load_dwordx4 v[%d:%d], v2, s[%d:%d], s%d offen offset:1024" % (XD + 4 + 8 * t, XD + 7 + 8 * t, SRD_E, SRD_E + 3, S_T0))
        a("s_add_u32 s%d, s%d, 2048" % (S_T0, S_T0))
    for t in range(NA):
        a("v_mov_b32 v%d, 0" % (AC + t))
    a("v_mov_b32 v%d, 0x3f803f80" % (RS + 7))
    a("s_waitcnt vmcnt(0)")
    for r in range(8):
        for t in range(NR):
            x = XD + 8 * t + r
            a("v_dot2_f32_bf16 v%d, v%d, v%d, v%d" % (AC + t, x, GW + r, AC + t))
            a("v_dot2_f32_bf16 v%d, v%d, v%d, v%d" % (AC + NR + t, x, RS + 7, AC + NR + t))
            a("v_dot2_f32_bf16 v%d, v%d, v%d, v%d" % (AC + 2 * NR + t, x, x, AC + 2 * NR + t))
    a("s_nop 3")
    padd = lambda: [a("v_pk_add_f32 v[%d:%d], v[%d:%d], v[%d:%d]" % (AC + 2 * t, AC + 2 * t + 1, AC + 2 * t, AC + 2 * t + 1, TM + 2 * t, TM + 2 * t + 1)) for t in range(NA // 2)]
    for pat in (0x041F, 0x081F, 0x101F, 0x201F, 0x401F):
        for t in range(NA):
            a("ds_swizzle_b32 v%d, v%d offset:0x%x" % (TM + t, AC + t, pat))
        a("s_waitcnt lgkmcnt(0)")
        padd()
    for t in range(NA):
        a("v_mov_b32 v%d, v%d" % (TM + t, AC + t))
    a("s_nop 1")
    for t in range(NA):
        a("v_permlane32_swap_b32 v%d, v%d" % (AC + t, TM + t))
    a("s_nop 1")
    padd()
    for q in range(3):
        a("v_mov_b32 v%d, v%d" % (RS + q, AC + NR * q))
    for t in range(1, NR):
        a("v_cmp_eq_u32 vcc, %d, v1" % t)
        a("s_nop 1")
        for q in range(3):
            a("v_cndmask_b32 v%d, v%d, v%d, vcc" % (RS + q, RS + q, AC + NR * q + t))
    G, SM, SQ = RS, RS + 1, RS + 2
    bf16_round(a, G, G)
    a("v_mul_f32 v%d, %s, v%d" % (G, f32(-LOG2E), G))
    a("v_exp_f32 v%d, v%d" % (G, G))
    a("v_mul_f32 v%d, %s, v%d" % (SM, f32(1.0 / 1024), SM))
    a("v_mul_f32 v%d, %s, v%d" % (SQ, f32(1.0 / 1024), SQ))
    a("v_add_f32 v%d, 1.0, v%d" % (G, G))
    a("v_rcp_f32 v%d, v%d" % (G, G))
    a("v_fma_f32 v%d, -v%d, v%d, v%d" % (SQ, SM, SM, SQ))
    a("v_max_f32 v%d, 0, v%d" % (SQ, SQ))
    bf16_round(a, G, G)
    bf16_round(a, SM, SM)
    bf16_round(a, SQ, SQ)
    a("v_add_f32 v%d, %s, v%d" % (SQ, f32(1e-5), SQ))
    bf16_round(a, SQ, SQ)
    a("v_sqrt_f32 v%d, v%d" % (SQ, SQ))
    a("s_nop 0")
    bf16_round(a, SQ, SQ)
    a("v_rcp_f32 v%d, v%d" % (RS + 4, SQ))
    a("s_nop 0")
    a("v_mul_f32 v%d, v%d, v%d" % (RS + 5, SM, RS + 4))
    a("v_sub_f32 v%d, 0, v%d" % (RS + 5, RS + 5))
    make_srd(a, SRD_F, P_WS, WS_G, 8192)
    make_srd(a, SRD_E, P_WS, WS_XST, 16384)
    a("v_add_u32 v3, s%d, v1" % s_row)
    a("v_lshlrev_b32 v2, 3, v3")
    a("v_lshlrev_b32 v3, 2, v3")
    a("s_mov_b64 exec, %d" % ((1 << NR) - 1))
    a("buffer_store_dword v%d, v3, s[%d:%d], 0 offen%s" % (G, SRD_F, SRD_F + 3, HO))
    a("buffer_store_dwordx2 v[%d:%d], v2, s[%d:%d], 0 offen%s" % (RS + 4, RS + 5, SRD_E, SRD_E + 3, HO))
    a("s_mov_b64 exec, -1")


def k1_stats_issue(a, c):
    make_srd(a, SRD_D, P_WS, WS_XST, 16384)
    make_srd(a, SRD_E, P_WS, WS_CS1, 8 * D * 4)
    a("s_cmp_eq_u32 s%d, 2" % S_TYPE)
    a("s_cselect_b32 s%d, s%d, 0" % (SRD_D + 2, SRD_D + 2))
    a("s_cselect_b32 s%d, s%d, 0" % (SRD_E + 2, SRD_E + 2))
    a("v_and_b32 v2, 31, v1")
    a("s_lshl_b32 s%d, s%d, 5" % (S_T0, S_LW))
    a("s_add_u32 s%d, s%d, s%d" % (S_T0, S_T0, S_ROW0))
    a("v_add_u32 v2, s%d, v2" % S_T0)
    a("v_lshlrev_b32 v2, 3, v2")
    a("buffer_load_dwordx2 v[64:65], v2, s[%d:%d], 0 offen%s" % (SRD_D, SRD_D + 3, HO))
    a("s_lshl_b32 s%d, s%d, 6" % (S_T0, S_LW))
    a("s_add_u32 s%d, s%d, s%d" % (S_T0, S_T0, S_COL0))
    a("v_add_u32 v3, s%d, v1" % S_T0)
    a("v_lshlrev_b32 v3, 2, v3")
    for t in range(8):
        a("s_mov_b32 s%d, %d" % (S_T1, t * D * 4))
        a("buffer_load_dword v%d, v3, s[%d:%d], s%d offen%s" % (96 + t, SRD_E, SRD_E + 3, S_T1, HO))


def k1_stats_fin(a, c):
    a("s_waitcnt vmcnt(0)")
    for t in range(1, 8):
        a("v_add_f32 v96, v96, v%d" % (96 + t))
    a("v_and_b32 v3, 31, v1")
    a("s_lshl_b32 s%d, s%d, 5" % (S_T0, S_LW))
    a("v_add_u32 v3, s%d, v3" % S_T0)
    a("v_lshlrev_b32 v3, 3, v3")
    a("v_add_u32 v3, %d, v3" % c.LDS_STATS)
    a("ds_write_b64 v3, v[64:65]")
    a("s_lshl_b32 s%d, s%d, 6" % (S_T0, S_LW))
    a("v_add_u32 v3, s%d, v1" % S_T0)
    a("v_lshlrev_b32 v3, 2, v3")
    a("v_add_u32 v3, %d, v3" % c.LDS_CS)
    a("ds_write_b32 v3, v96")
    a("s_waitcnt lgkmcnt(0)")


def gen_k4(a):
    name = "k4_kernel"
    c = Cfg(64, 6)
    kernel_header(a, name, 256)
    small_tile_decode(a)
    a("s_waitcnt lgkmcnt(0)")
    make_srd(a, SRD_A, P_WS, WS_O, S * D * 2)
    make_srd(a, SRD_B, P_WO, 0, D * D * 2)
    make_srd(a, SRD_A2, P_WS, WS_ACT, S * F * 2)
    make_srd(a, SRD_B2, P_W4, 0, F * D * 2)
    make_srd(a, SRD_C, P_OUT, 0, S * D * 2)
    make_srd(a, SRD_D, P_WS, WS_X1, S * D * 2)
    make_srd(a, SRD_E, P_WS, WS_G, 8192)
    a("s_cmp_ge_u32 s%d, 4" % S_WAVE)
    a("s_cbranch_scc1 L_k4_loader")
    VST, VLD, VX, VG = 200, 204, 208, 224
    epi_store_addr(a, c, 2048, VST, 2)
    a("v_lshrrev_b32 v3, 5, v1")
    a("v_lshlrev_b32 v3, 3, v3")
    for i in range(2):
        a("v_sub_u32 v%d, v%d, v3" % (VLD + i, VST + i))
    for i in range(2):
        load_resid(a, c, VX + 8 * i, VLD + i, SRD_D)
    for i in range(2):
        a("v_lshrrev_b32 v3, 11, v%d" % (VST + i))
        a("v_lshlrev_b32 v3, 2, v3")
        a("buffer_load_dword v%d, v3, s[%d:%d], 0 offen" % (VG + 2 * i, SRD_E, SRD_E + 3))
    compute_addr_setup(a, c)
    zero_acc(a, V_ACC, 64)
    compute_start(a, c)
    compute_loop(a, c, 16, V_ACC, True)
    compute_loop(a, c, 56, V_ACC + 32, True)
    stamp(a, 2)
    a("s_waitcnt vmcnt(0) lgkmcnt(0)")
    a("s_nop 15")
    for i in range(2):
        aa = V_ACC + 16 * i
        bb = V_ACC + 32 + 16 * i
        g = VG + 2 * i
        a("v_sub_f32 v%d, 1.0, v%d" % (g + 1, g))
        bf16_round(a, g + 1, g + 1)
        round_regs_bf16(a, aa, 16, 16)
        round_regs_bf16(a, bb, 16, 24)
        unpack_bf16(a, 32, VX + 8 * i, 8)
        for p in range(8):
            a("v_pk_add_f32 v[%d:%d], v[%d:%d], v[%d:%d]" % (bb + 2 * p, bb + 2 * p + 1, bb + 2 * p, bb + 2 * p + 1, 32 + 2 * p, 33 + 2 * p))
        round_regs_bf16(a, bb, 16, 24)
        for p in range(8):
            a("v_pk_mul_f32 v[%d:%d], v[%d:%d], v[%d:%d] op_sel:[0,0] op_sel_hi:[1,0]" % (aa + 2 * p, aa + 2 * p + 1, aa + 2 * p, aa + 2 * p + 1, g, g + 1))
        for p in range(8):
            a("v_pk_mul_f32 v[%d:%d], v[%d:%d], v[%d:%d] op_sel:[0,1] op_sel_hi:[1,1]" % (bb + 2 * p, bb + 2 * p + 1, bb + 2 * p, bb + 2 * p + 1, g, g + 1))
        round_regs_bf16(a, aa, 16, 16)
        round_regs_bf16(a, bb, 16, 24)
        for p in range(8):
            a("v_pk_add_f32 v[%d:%d], v[%d:%d], v[%d:%d]" % (aa + 2 * p, aa + 2 * p + 1, aa + 2 * p, aa + 2 * p + 1, bb + 2 * p, bb + 2 * p + 1))
        pack_swap_store(a, aa, 48 + 8 * i, VST + i, SRD_C, 0)
    a("s_branch L_%s_cdone" % name)
    a.label("L_k4_loader")
    a("s_sub_u32 s%d, s%d, 4" % (S_LW, S_WAVE))
    loader_a_offsets(a, V_LA, 2048)
    loader_b_offsets_small(a, V_LB, 2048)
    loader_a_offsets(a, V_LA2, F * 2)
    loader_loop(a, c, [(16, SRD_A, SRD_B, V_LA, V_LB, 64 * 2048), (56, SRD_A2, SRD_B2, V_LA2, V_LB, 64 * 2048)], None)
    kernel_footer(a, name, 3)
    descriptor(a, name)
    return name, 256, c.LDS_TOTAL


SRD_FL = SRD_B2


def POLL_SLEEP():
    for e in EXP:
        if e.startswith("slp"):
            return int(e[3:])
    return 4


def flag_srd(a):
    make_srd(a, SRD_FL, P_WS, WS_FLAG, FLAG_BYTES)


def flag_signal(a, base, idx_sgpr):
    flag_srd(a)
    if idx_sgpr is None:
        a("v_mov_b32 v2, %d" % base)
    else:
        a("s_lshl_b32 s%d, s%d, 7" % (S_T0, idx_sgpr))
        a("s_add_u32 s%d, s%d, %d" % (S_T0, S_T0, base))
        a("v_mov_b32 v2, s%d" % S_T0)
    a("v_mov_b32 v3, 1")
    a("s_mov_b64 exec, 1")
    a("buffer_atomic_add v3, v2, s[%d:%d], 0 offen sc1" % (SRD_FL, SRD_FL + 3))
    a("s_mov_b64 exec, -1")


def flag_signal_raw(a, base, off_sgpr):
    flag_srd(a)
    a("s_add_u32 s%d, s%d, %d" % (S_T0, off_sgpr, base))
    a("v_mov_b32 v2, s%d" % S_T0)
    a("v_mov_b32 v3, 1")
    a("s_mov_b64 exec, 1")
    a("buffer_atomic_add v3, v2, s[%d:%d], 0 offen sc1" % (SRD_FL, SRD_FL + 3))
    a("s_mov_b64 exec, -1")


def flag_poll_raw(a, base, off_sgpr, target):
    flag_srd(a)
    a("s_add_u32 s%d, s%d, %d" % (S_T0, off_sgpr, base))
    a("v_mov_b32 v2, s%d" % S_T0)
    poll_loop(a, target)


def flag_poll(a, base, idx_sgpr, target):
    flag_srd(a)
    if idx_sgpr is None:
        a("v_mov_b32 v2, %d" % base)
    else:
        a("s_lshl_b32 s%d, s%d, 7" % (S_T0, idx_sgpr))
        a("s_add_u32 s%d, s%d, %d" % (S_T0, S_T0, base))
        a("v_mov_b32 v2, s%d" % S_T0)
    poll_loop(a, target)


def flag_poll_multi(a, items, vt=125):
    flag_srd(a)
    a("v_mov_b32 v2, %d" % FL_RED)
    a("v_mov_b32 v%d, 0" % vt)
    for n, (base, idx, target) in enumerate(items):
        if idx is None:
            a("s_mov_b32 s%d, %d" % (S_T0, base))
        else:
            a("s_lshl_b32 s%d, s%d, 7" % (S_T0, idx))
            a("s_add_u32 s%d, s%d, %d" % (S_T0, S_T0, base))
        a("v_writelane_b32 v2, s%d, %d" % (S_T0, n))
        a("s_mov_b32 s%d, %d" % (S_T0, target))
        a("v_writelane_b32 v%d, s%d, %d" % (vt, S_T0, n))
    lp, ld = a.newlabel("poll"), a.newlabel("polld")
    a("s_mov_b32 s%d, 0x400000" % S_T1)
    a.label(lp)
    a("buffer_load_dword v3, v2, s[%d:%d], 0 offen sc1" % (SRD_FL, SRD_FL + 3))
    a("s_waitcnt vmcnt(0)")
    a("v_cmp_lt_u32 vcc, v3, v%d" % vt)
    a("s_sub_u32 s%d, s%d, 1" % (S_T1, S_T1))
    a("s_cmp_eq_u32 s%d, 0" % S_T1)
    a("s_cbranch_scc1 %s" % ld)
    a("s_cmp_eq_u64 vcc, 0")
    a("s_cbranch_scc1 %s" % ld)
    a("s_sleep %d" % POLL_SLEEP())
    a("s_branch %s" % lp)
    a.label(ld)


def poll_loop(a, target):
    lp, ld = a.newlabel("poll"), a.newlabel("polld")
    a("s_mov_b32 s%d, 0x400000" % S_T1)
    a.label(lp)
    a("buffer_load_dword v3, v2, s[%d:%d], 0 offen sc1" % (SRD_FL, SRD_FL + 3))
    a("s_waitcnt vmcnt(0)")
    a("v_readfirstlane_b32 s%d, v3" % S_T0)
    a("s_sub_u32 s%d, s%d, 1" % (S_T1, S_T1))
    a("s_cmp_eq_u32 s%d, 0" % S_T1)
    a("s_cbranch_scc1 %s" % ld)
    a("s_cmp_ge_u32 s%d, %d" % (S_T0, target))
    a("s_cbranch_scc1 %s" % ld)
    a("s_sleep %d" % POLL_SLEEP())
    a("s_branch %s" % lp)
    a.label(ld)


LDS_GO = 147456 + 2048


def loader_gate(a, seq, pollfn):
    lo, ld, lp = a.newlabel("lgo"), a.newlabel("lgd"), a.newlabel("lgp")
    a("v_mov_b32 v4, %d" % LDS_GO)
    a("s_cmp_lg_u32 s%d, 0" % S_LW)
    a("s_cbranch_scc1 %s" % lo)
    pollfn()
    a("v_mov_b32 v3, %d" % seq)
    a("ds_write_b32 v4, v3")
    a("s_waitcnt lgkmcnt(0)")
    a("s_branch %s" % ld)
    a.label(lo)
    a("s_mov_b32 s%d, 0x1000000" % S_T1)
    a.label(lp)
    a("s_sleep 1")
    a("ds_read_b32 v3, v4")
    a("s_waitcnt lgkmcnt(0)")
    a("v_readfirstlane_b32 s%d, v3" % S_T0)
    a("s_sub_u32 s%d, s%d, 1" % (S_T1, S_T1))
    a("s_cmp_eq_u32 s%d, 0" % S_T1)
    a("s_cbranch_scc1 %s" % ld)
    a("s_cmp_lg_u32 s%d, %d" % (S_T0, seq))
    a("s_cbranch_scc1 %s" % lp)
    a.label(ld)


def wave0(a, fn):
    l = a.newlabel("w0")
    a("s_cmp_lg_u32 s%d, 0" % S_WAVE)
    a("s_cbranch_scc1 %s" % l)
    fn()
    a.label(l)


def p2_decode(a):
    small_tile_decode(a)
    make_srd(a, SRD_A, P_WS, WS_HS, S * D * 2)
    make_srd(a, SRD_B, P_W2, 0, D * D * 2)
    make_srd(a, SRD_C, P_WS, WS_X1, S * D * 2)
    make_srd(a, SRD_D, P_X, 0, S * D * 2)


def p3_decode(a):
    a("s_lshr_b32 s%d, s%d, 2" % (S_T0, S_XCD))
    a("s_mul_i32 s%d, s%d, 7" % (S_T0, S_T0))
    a("s_lshr_b32 s%d, s%d, 2" % (S_T1, S_J))
    a("s_add_u32 s%d, s%d, s%d" % (S_CT, S_T0, S_T1))
    a("s_lshl_b32 s%d, s%d, 8" % (S_COL0, S_CT))
    make_srd(a, SRD_A, P_WS, WS_X1, S * D * 2)
    make_srd(a, SRD_B, P_W3, 0, D * F * 2)
    make_srd(a, SRD_C, P_WS, WS_ACT, S * F * 2)
    a("s_mov_b32 s%d, %d" % (S_LDB, F * 2))
    a("s_mov_b32 s%d, 32" % S_SA)
    a("s_mov_b32 s%d, 64" % S_SB)


S_P = S_SHIFT


def p4_decode(a):
    small_tile_decode(a)
    a("s_lshr_b32 s%d, s%d, 2" % (S_CT, S_J))
    a("s_xor_b32 s%d, s%d, 6" % (S_T1, S_CT))
    a("s_cmp_eq_u32 s%d, 1" % S_CT)
    a("s_cselect_b32 s%d, s%d, s%d" % (S_T0, S_T1, S_CT))
    a("s_cmp_eq_u32 s%d, 7" % S_CT)
    a("s_cselect_b32 s%d, s%d, s%d" % (S_CT, S_T1, S_T0))
    a("s_lshl_b32 s%d, s%d, 7" % (S_COL0, S_CT))
    a("s_lshr_b32 s%d, s%d, 2" % (S_P, S_XCD))
    make_srd(a, SRD_A, P_WS, WS_O, S * D * 2)
    make_srd(a, SRD_B, P_WO, 0, D * D * 2)
    make_srd(a, SRD_A2, P_WS, WS_ACT, S * F * 2)
    make_srd(a, SRD_C, P_OUT, 0, S * D * 2)
    make_srd(a, SRD_D, P_WS, WS_X1, S * D * 2)
    make_srd(a, SRD_E, P_WS, WS_G, 8192)


def small_epi_setup(a, VLD, VST, VW, VR, preset=False):
    if not preset:
        a("s_lshl_b32 s%d, s%d, 5" % (S_T2, S_WAVE))
        a("s_add_u32 s%d, s%d, s%d" % (S_T2, S_T2, S_ROW0))
        a("s_lshl_b32 s%d, s%d, 1" % (S_T3, S_COL0))
    line_store_setup(a, 2048, VST, VW, VR, S_T2, S_T3, 98304)
    a("v_and_b32 v2, 31, v1")
    a("v_add_u32 v2, s%d, v2" % S_T2)
    a("v_lshrrev_b32 v3, 5, v1")
    a("v_lshlrev_b32 v3, 3, v3")
    a("v_lshl_add_u32 v2, v2, 11, v3")
    a("v_add_u32 v%d, s%d, v2" % (VLD, S_T3))


def load_resid2(a, dst, vaddr, srd, fl=""):
    for j in range(2):
        for g in range(4):
            a("buffer_load_dwordx2 v[%d:%d], v%d, s[%d:%d], 0 offen offset:%d%s" % (dst + 8 * j + 2 * g, dst + 8 * j + 2 * g + 1, vaddr, srd, srd + 3, 64 * j + 16 * g, fl))


def dbgstamp(a, slot, back):
    if "dbg" not in EXP:
        return
    l = a.newlabel("dbg")
    a("s_cmp_lg_u32 s2, 5")
    a("s_cbranch_scc1 %s" % l)
    a("s_cmp_lg_u32 s%d, 0" % S_WAVE)
    a("s_cbranch_scc1 %s" % l)
    a("s_memrealtime s[%d:%d]" % (S_TS, S_TS + 1))
    a("s_add_u32 s%d, s%d, %d" % (S_TS + 4, P_DBG, 0))
    a("s_addc_u32 s%d, s%d, 0" % (S_TS + 5, P_DBG + 1))
    a("s_mov_b32 s%d, 256" % (S_TS + 6))
    a("s_mov_b32 s%d, 0x20000" % (S_TS + 7))
    a("s_waitcnt lgkmcnt(0)")
    a("v_mov_b32 v2, %d" % (slot * 4))
    a("v_mov_b32 v3, s%d" % S_TS)
    a("buffer_store_dword v3, v2, s[%d:%d], 0 offen" % (S_TS + 4, S_TS + 7))
    a("s_nop 1")
    a.label(l)


def mstamp(a, name):
    order = ["E1", "G2", "P2", "L2", "E2", "G3", "P3", "L3", "E3", "G4", "P4", "M4", "L4"]
    dbgstamp(a, 2 + order.index(name), True)
    sets = {"st0": ["G2", "G3", "G4", "L4"], "st1": ["E1", "G2", "P2", "L2"], "stA": ["P2", "L2", "E2", "G3"], "stB": ["G3", "P3", "L3", "E3"], "stC": ["G4", "P4", "M4", "L4"]}
    cur = "st0"
    for k in sets:
        if k in EXP:
            cur = k
    if name in sets[cur]:
        stamp(a, 1 + sets[cur].index(name))


def gen_k234(a):
    global INSTR
    name = MAIN
    cs2 = Cfg(64, 6)
    cs2.aflag = HO
    cb = Cfg(256, 3)
    cb.aflag = HO
    cs4 = Cfg(128, 4)
    cs4.aflag = HO
    gen_k1(a)
    a.label("L_m_e1c")
    a("s_waitcnt vmcnt(0)")
    mstamp(a, "E1")
    a("s_barrier")

    def sig1():
        lq, lk, ld = a.newlabel("s1q"), a.newlabel("s1k"), a.newlabel("s1d")
        a("s_cmp_eq_u32 s%d, 0" % S_TYPE)
        a("s_cbranch_scc1 %s" % lq)
        a("s_cmp_eq_u32 s%d, 1" % S_TYPE)
        a("s_cbranch_scc1 %s" % lk)
        flag_signal(a, FL_H, S_RB)
        a("s_branch %s" % ld)
        a.label(lq)
        flag_signal(a, FL_Q, S_RB)
        a("s_branch %s" % ld)
        a.label(lk)
        flag_signal(a, FL_KV, None)
        a.label(ld)
        small_tile_decode(a)
        a("s_max_u32 s%d, s%d, 1" % (S_T2, S_RB))
        a("s_sub_u32 s%d, s%d, 1" % (S_T2, S_T2))
        a("s_min_u32 s%d, s%d, 14" % (S_T3, S_RB))
        a("s_add_u32 s%d, s%d, 1" % (S_T3, S_T3))
        flag_poll_multi(a, [(FL_H, S_RB, 4), (FL_H, S_T2, 4), (FL_H, S_T3, 4)])
    wave0(a, sig1)
    a("s_barrier")
    mstamp(a, "G2")
    p2_decode(a)
    c = cs2
    VST, VLD, VW, VR, VX, VAT = 200, 201, 204, 202, 208, 228
    small_epi_setup(a, VLD, VST, VW, VR)
    load_resid2(a, VX, VLD, SRD_D)
    compute_addr_setup(a, c)
    zero_acc(a, V_ACC, 32)
    a("s_movk_i32 s%d, 2048" % S_LDB)
    if "now4split" not in EXP:
        pf = pf_stream_setup(a, [(P_WO, D * D * 2, 0, 1)] + [(P_W4, D * F * 2, w, 6) for w in range(3)], 16)
    elif "w4early" in EXP:
        pf = pf_stream_setup(a, [(P_WO, D * D * 2, 0, 1)] + [(P_W4, D * F * 2, w, 3) for w in range(3)], 16)
    elif "pf2" not in EXP:
        pf = pf_stream_setup(a, [(P_WO, D * D * 2, w, 4) for w in range(4)], 16)
    else:
        pf = pf_stream_setup(a, [(P_WO, D * D * 2, 0, 3), lambda: pfB_setup(a, SRD_B, S_LDB, 4, False, 4, 12), (P_WO, D * D * 2, 1, 3), (P_WO, D * D * 2, 2, 3)], 16)
    a("s_barrier")
    mstamp(a, "P2")
    for r in frag_reads(c, 0, 0):
        a(r)
    compute_loop(a, c, 16, V_ACC, True, pf)
    mstamp(a, "L2")
    a("s_waitcnt vmcnt(0) lgkmcnt(0)")
    a("s_nop 15")
    for j in range(2):
        acc = V_ACC + 16 * j
        round_regs_bf16(a, acc, 16, 16)
        unpack_bf16(a, 32, VX + 8 * j, 8)
        for p in range(8):
            a("v_pk_add_f32 v[%d:%d], v[%d:%d], v[%d:%d]" % (acc + 2 * p, acc + 2 * p + 1, acc + 2 * p, acc + 2 * p + 1, 32 + 2 * p, 33 + 2 * p))
        line_pack_write(a, acc, 48 + 8 * j, VW, j, 0)
    line_read(a, 80, VR, 0)
    make_srd(a, SRD_E, P_WS, WS_XS, 256 * 1024)
    a("v_mov_b32 v64, 0x3f803f80")
    for r in range(4):
        a("v_mov_b32 v%d, 0" % (68 + r))
    for p in range(16):
        b = 68 + 2 * (p & 1)
        a("v_dot2_f32_bf16 v%d, v%d, v64, v%d" % (b, 48 + p, b))
        a("v_dot2_f32_bf16 v%d, v%d, v%d, v%d" % (b + 1, 48 + p, 48 + p, b + 1))
    a("s_waitcnt lgkmcnt(0)")
    line_store(a, 80, VST, VAT, SRD_C, 2048, 0, HO)
    a("s_lshl_b32 s%d, s%d, 4" % (S_T0, S_RB))
    a("s_add_u32 s%d, s%d, s%d" % (S_T0, S_T0, S_CT))
    a("s_lshl_b32 s%d, s%d, 10" % (S_T0, S_T0))
    a("s_lshl_b32 s%d, s%d, 8" % (S_T1, S_WAVE))
    a("s_add_u32 s%d, s%d, s%d" % (S_T0, S_T0, S_T1))
    a("v_pk_add_f32 v[68:69], v[68:69], v[70:71]")
    a("v_mov_b32 v70, v68")
    a("v_mov_b32 v71, v69")
    a("s_nop 1")
    a("v_permlane32_swap_b32 v68, v70")
    a("v_permlane32_swap_b32 v69, v71")
    a("s_nop 1")
    a("v_pk_add_f32 v[68:69], v[68:69], v[70:71]")
    a("v_lshlrev_b32 v3, 3, v1")
    a("v_add_u32 v3, s%d, v3" % S_T0)
    a("s_mov_b32 exec_hi, 0")
    a("buffer_store_dwordx2 v[68:69], v3, s[%d:%d], 0 offen%s" % (SRD_E, SRD_E + 3, HO))
    a("s_mov_b64 exec, -1")
    a("s_waitcnt vmcnt(0)")
    mstamp(a, "E2")
    a("s_barrier")

    def sig2():
        l, l2, l3 = a.newlabel("slow"), a.newlabel("sigd"), a.newlabel("isowg")
        a("s_and_b32 s%d, s%d, 7" % (S_T2, S_CT))
        a("s_cmp_eq_u32 s%d, 3" % S_T2)
        a("s_cbranch_scc1 %s" % l)
        flag_signal(a, FL_X1, S_RB)
        a("s_branch %s" % l2)
        a.label(l)
        flag_signal(a, FL_X1S, S_RB)
        a.label(l2)
        a("s_cmp_ge_u32 s%d, 28" % S_J)
        a("s_cbranch_scc1 %s" % l3)
        flag_poll(a, FL_X1, S_RB, 14)
        a("s_branch %s_d" % l3)
        a.label(l3)
        a("s_sub_u32 s%d, s%d, 28" % (S_T2, S_J))
        a("s_lshl_b32 s%d, s%d, 2" % (S_T3, S_XCD))
        a("s_add_u32 s%d, s%d, s%d" % (S_T2, S_T2, S_T3))
        a("s_lshr_b32 s%d, s%d, 1" % (S_T2, S_T2))
        flag_poll_multi(a, [(FL_KV, None, 128), (FL_Q, S_T2, 4)])
        a.label(l3 + "_d")
    wave0(a, sig2)
    a("s_barrier")
    mstamp(a, "G3")
    a("s_cmp_ge_u32 s%d, 28" % S_J)
    a("s_cbranch_scc1 L_m_owg")
    c = cb
    p3_decode(a)
    compute_addr_setup(a, c)
    zero_acc(a, V_ACC, 128)
    if "now4split" not in EXP:
        pf = pf_stream_setup(a, [(P_W4, D * F * 2, 4 + w, 8) for w in range(4)], 16)
    elif "w4early" in EXP:
        pf = None
    elif "pf3" not in EXP:
        pf = pf_stream_setup(a, [(P_W4, D * F * 2, w, 4) for w in range(4)], 16)
    else:
        pf = pf_stream_setup(a, [(P_W4, D * F * 2, 0, 3), lambda: pfB_setup(a, SRD_B, S_LDB, 4, True, 2, 7), (P_W4, D * F * 2, 1, 3), (P_W4, D * F * 2, 2, 3)], 16)
    a("s_barrier")
    mstamp(a, "P3")
    for r in frag_reads(c, 0, 0):
        a(r)
    compute_loop(a, c, 11, V_ACC, True, pf)

    def poll3():
        flag_poll_multi(a, [(FL_X1S, S_RB, 2), (FL_KV, None, 128), (FL_XS, S_RB, 16)])
    wave0(a, poll3)
    compute_loop(a, c, 5, V_ACC, True, pf)
    mstamp(a, "L3")
    a("s_waitcnt lgkmcnt(0)")
    a("s_mov_b32 s%d, 0" % S_STOFF)
    a("s_nop 15")
    epi_ln_gelu(a, c, SRD_C, F * 2, None)
    a("s_waitcnt vmcnt(0)")
    mstamp(a, "E3")

    def sigact():
        a("s_lshl_b32 s%d, s%d, 7" % (S_T2, S_RB))
        a("s_lshr_b32 s%d, s%d, 2" % (S_T3, S_XCD))
        a("s_lshl_b32 s%d, s%d, 11" % (S_T3, S_T3))
        a("s_add_u32 s%d, s%d, s%d" % (S_T2, S_T2, S_T3))
        flag_signal_raw(a, FL_ACT, S_T2)
    sigact()
    a.label("L_m_c4")
    mstamp(a, "G4")
    c = cs4
    p4_decode(a)
    VST, VLD, VR, VW, VAT, VG, VX, VD = 80, 81, 82, 84, 88, 92, 96, 112
    a("s_lshr_b32 s%d, s%d, 1" % (S_T2, S_WAVE))
    a("s_lshl_b32 s%d, s%d, 1" % (S_T2, S_T2))
    a("s_add_u32 s%d, s%d, s%d" % (S_T2, S_T2, S_P))
    a("s_lshl_b32 s%d, s%d, 5" % (S_T2, S_T2))
    a("s_add_u32 s%d, s%d, s%d" % (S_T2, S_T2, S_ROW0))
    a("s_and_b32 s%d, s%d, 1" % (S_T3, S_WAVE))
    a("s_lshl_b32 s%d, s%d, 6" % (S_T3, S_T3))
    a("s_add_u32 s%d, s%d, s%d" % (S_T3, S_T3, S_COL0))
    a("s_lshl_b32 s%d, s%d, 1" % (S_T3, S_T3))
    small_epi_setup(a, VLD, VST, VW, VR, True)
    load_resid2(a, VX, VLD, SRD_D, HO)
    a("v_lshrrev_b32 v3, 11, v%d" % VLD)
    a("v_lshlrev_b32 v3, 2, v3")
    a("buffer_load_dword v%d, v3, s[%d:%d], 0 offen%s" % (VG, SRD_E, SRD_E + 3, HO))
    compute_addr_setup(a, c)
    zero_acc(a, V_ACC, 128)
    a("s_barrier")
    mstamp(a, "P4")
    for r in frag_reads(c, 0, 0):
        a(r)
    compute_loop(a, c, 4, V_ACC, True)

    def pollact():
        a("s_lshl_b32 s%d, s%d, 7" % (S_T2, S_RB))
        a("s_lshl_b32 s%d, s%d, 11" % (S_T3, S_P))
        a("s_add_u32 s%d, s%d, s%d" % (S_T2, S_T2, S_T3))
        flag_poll_raw(a, FL_ACT, S_T2, 28)
    wave0(a, pollact)
    compute_loop(a, c, 4, V_ACC, True)
    mstamp(a, "M4")
    VXS, VXR = 94, 95
    make_srd(a, SRD_F, P_WS, WS_PX, 16 * MB)
    a("s_lshl_b32 s%d, s%d, 3" % (S_SA, S_RB))
    a("s_add_u32 s%d, s%d, s%d" % (S_SA, S_SA, S_CT))
    a("s_lshl_b32 s%d, s%d, 1" % (S_SA, S_SA))
    a("s_add_u32 s%d, s%d, s%d" % (S_SB, S_SA, S_P))
    a("s_xor_b32 s%d, s%d, 1" % (S_SA, S_SB))
    a("s_lshl_b32 s%d, s%d, 2" % (S_T0, S_SA))
    a("s_add_u32 s%d, s%d, s%d" % (S_T0, S_T0, S_WAVE))
    a("s_lshl_b32 s%d, s%d, 14" % (S_T0, S_T0))
    a("v_lshlrev_b32 v2, 4, v1")
    a("v_add_u32 v%d, s%d, v2" % (VXS, S_T0))
    a("s_lshl_b32 s%d, s%d, 2" % (S_T0, S_SB))
    a("s_add_u32 s%d, s%d, s%d" % (S_T0, S_T0, S_WAVE))
    a("s_lshl_b32 s%d, s%d, 14" % (S_T0, S_T0))
    a("v_add_u32 v%d, s%d, v2" % (VXR, S_T0))
    a("s_nop 7")

    def send(q0):
        for q in range(q0, q0 + 8):
            src = (V_ACC + 32 + 4 * q) if q < 8 else (V_ACC + 96 + 4 * (q - 8))
            a("s_mov_b32 s%d, %d" % (S_T0, 4096 * (q >> 2)))
            a("buffer_store_dwordx4 v[%d:%d], v%d, s[%d:%d], s%d offen offset:%d%s" % (src, src + 3, VXS, SRD_F, SRD_F + 3, S_T0, 1024 * (q & 3), HO))
    send(0)
    compute_loop(a, c, 28, V_ACC + 64, True)
    mstamp(a, "L4")
    a("s_waitcnt lgkmcnt(0)")
    a("s_nop 15")
    send(8)
    a("s_waitcnt vmcnt(0)")
    a("s_barrier")

    def sigx():
        a("s_lshl_b32 s%d, s%d, 5" % (S_T2, S_SA))
        flag_signal_raw(a, FL_PX, S_T2)
        a("s_lshl_b32 s%d, s%d, 5" % (S_T3, S_SB))
        flag_poll_raw(a, FL_PX, S_T3, 1)
    wave0(a, sigx)
    a("s_barrier")
    for q in range(16):
        a("s_mov_b32 s%d, %d" % (S_T0, 4096 * (q >> 2)))
        a("buffer_load_dwordx4 v[%d:%d], v%d, s[%d:%d], s%d offen offset:%d%s" % (16 + 4 * q, 19 + 4 * q, VXR, SRD_F, SRD_F + 3, S_T0, 1024 * (q & 3), HO))
    g = VG
    a("v_sub_f32 v%d, 1.0, v%d" % (g + 1, g))
    bf16_round(a, g + 1, g + 1)
    a("s_waitcnt vmcnt(0)")
    for q in range(32):
        dst = (V_ACC + 2 * q) if q < 16 else (V_ACC + 64 + 2 * (q - 16))
        a("v_pk_add_f32 v[%d:%d], v[%d:%d], v[%d:%d]" % (dst, dst + 1, dst, dst + 1, 16 + 2 * q, 17 + 2 * q))
    for j in range(2):
        aa = V_ACC + 16 * j
        bb = V_ACC + 64 + 16 * j
        round_regs_bf16(a, aa, 16, 16)
        round_regs_bf16(a, bb, 16, 24)
        unpack_bf16(a, 32, VX + 8 * j, 8)
        for p in range(8):
            a("v_pk_add_f32 v[%d:%d], v[%d:%d], v[%d:%d]" % (bb + 2 * p, bb + 2 * p + 1, bb + 2 * p, bb + 2 * p + 1, 32 + 2 * p, 33 + 2 * p))
        round_regs_bf16(a, bb, 16, 24)
        for p in range(8):
            a("v_pk_mul_f32 v[%d:%d], v[%d:%d], v[%d:%d] op_sel:[0,0] op_sel_hi:[1,0]" % (aa + 2 * p, aa + 2 * p + 1, aa + 2 * p, aa + 2 * p + 1, g, g + 1))
        for p in range(8):
            a("v_pk_mul_f32 v[%d:%d], v[%d:%d], v[%d:%d] op_sel:[0,1] op_sel_hi:[1,1]" % (bb + 2 * p, bb + 2 * p + 1, bb + 2 * p, bb + 2 * p + 1, g, g + 1))
        round_regs_bf16(a, aa, 16, 16)
        round_regs_bf16(a, bb, 16, 24)
        for p in range(8):
            a("v_pk_add_f32 v[%d:%d], v[%d:%d], v[%d:%d]" % (aa + 2 * p, aa + 2 * p + 1, aa + 2 * p, aa + 2 * p + 1, bb + 2 * p, bb + 2 * p + 1))
        line_pack_write(a, aa, 48 + 8 * j, VW, j, 0)
    line_read(a, VD, VR, 0)
    a("s_waitcnt lgkmcnt(0)")
    line_store(a, VD, VST, VAT, SRD_C, 2048, 0, "")
    if "dbg" in EXP:
        a("s_waitcnt vmcnt(0)")
    dbgstamp(a, 15, True)
    if INSTR:
        a("s_waitcnt vmcnt(0)")
        stamp_flush(a, 0, 5)
    a("s_branch L_%s_end" % name)
    a.label("L_m_owg")
    a("s_sub_u32 s%d, s%d, 28" % (S_T0, S_J))
    a("s_lshl_b32 s%d, s%d, 2" % (S_T1, S_XCD))
    a("s_add_u32 s%d, s%d, s%d" % (S_CT, S_T0, S_T1))
    gen_owg(a)
    a("s_waitcnt vmcnt(0)")
    mstamp(a, "E3")
    a("s_barrier")
    a("s_cmp_ge_u32 s%d, 4" % S_WAVE)
    a("s_cbranch_scc1 L_m_loader4o")

    def sigo():
        a("s_lshr_b32 s%d, s%d, 1" % (S_T2, S_CT))
        flag_signal(a, FL_O, S_T2)
    wave0(a, sigo)
    flag_poll_multi(a, [(FL_X1, S_RB, 14), (FL_X1S, S_RB, 2), (FL_XS, S_RB, 16)])
    a("s_branch L_m_c4")
    a.label("L_m_loader2")
    keep = INSTR
    INSTR = False
    p2_decode(a)
    loader_a_offsets(a, V_LA, 2048)
    loader_b_offsets_small(a, V_LB, 2048)

    def gate2():
        l = a.newlabel("nocs")
        a("s_cmp_lg_u32 s%d, 1" % S_TYPE)
        a("s_cbranch_scc1 %s" % l)
        a("s_cmp_ge_u32 s%d, 448" % S_C0)
        a("s_cbranch_scc1 %s" % l)
        colsum_job(a, S_C0)
        a.label(l)
        a("s_waitcnt vmcnt(0)")
        a("s_barrier")
        a("s_barrier")
    loader_loop(a, cs2, [(16, SRD_A, SRD_B, V_LA, V_LB, 64 * 2048)], None, gate2)
    a("s_cmp_lt_u32 s%d, 28" % S_J)
    a("s_cbranch_scc1 L_m_loader3")
    a("s_barrier")
    a("s_barrier")
    a("s_branch L_m_owg")
    a.label("L_m_loader3")
    p3_decode(a)
    loader_b_offsets_big(a, V_LB)

    def gate3():
        a("s_barrier")
        a("s_barrier")
    kb3 = 64 * F * 2
    loader_loop(a, cb, [(n, SRD_A, SRD_B, V_LA, V_LB, kb3, c0) for n, c0 in ((3, 0), (7, 4), (4, 12), (1, 3), (1, 11))], None, gate3,
                (lambda: k3_stats_issue(a, cb, S_LW), 16, lambda: k3_stats_fin(a, cb, S_LW)))
    a("s_mov_b32 s%d, 1" % S_C0)
    a("s_branch L_m_loader4")
    a.label("L_m_loader4o")
    a("s_mov_b32 s%d, 0" % S_C0)
    a.label("L_m_loader4")
    p4_decode(a)
    make_srd(a, SRD_B2, P_W4, 0, F * D * 2)
    loader_b_offsets_mid(a, V_LB, 2048)
    loader_a_offsets(a, V_LA, 2048, S_P)
    loader_a_offsets(a, V_LA2, F * 2, S_P)

    def gate4():
        if "g4all" in EXP:
            flag_poll(a, FL_O, S_RB, 2)
        else:
            loader_gate(a, 3, lambda: flag_poll(a, FL_O, S_RB, 2))
        make_srd(a, SRD_B2, P_W4, 0, F * D * 2)

    def post4():
        l = a.newlabel("noe3")
        a("s_cmp_eq_u32 s%d, 0" % S_C0)
        a("s_cbranch_scc1 %s" % l)
        a("s_barrier")
        a.label(l)
    loader_loop(a, cs4, [(8, SRD_A, SRD_B, V_LA, V_LB, 64 * 2048, (S_P, 8)), (28, SRD_A2, SRD_B2, V_LA2, V_LB, 64 * 2048, (S_P, 28))], None, gate4)
    a("s_barrier")
    a("s_barrier")
    INSTR = keep
    a.label("L_%s_end" % name)
    a("s_endpgm")
    a.label("L_code_end")
    descriptor(a, name)
    return name, 256, cb.LDS_TOTAL


def main():
    global INSTR
    if "--instr" in sys.argv:
        INSTR = True
        sys.argv.remove("--instr")
    for x in list(sys.argv):
        if x.startswith("--exp="):
            EXP.update(x[6:].split(","))
            sys.argv.remove(x)
    body = Asm()
    launches = []
    for g in (gen_k234,):
        launches.append(g(body))
    hdr = []
    for name, nwg, lds in launches:
        hdr.append("; @launch grid=(%d,1,1) block=(512,1,1) lds=%d" % (nwg, lds))
    hdr.append('.amdgcn_target "amdgcn-amd-amdhsa--gfx950"')
    hdr.append(".text")
    out = "\n".join(hdr + body.lines) + "\n"
    path = sys.argv[1] if len(sys.argv) > 1 else "gated_mix__linear_attn_block__mixer_s_mlp__prompt.s"
    open(path, "w").write(out)
    print("wrote", path, len(out), "bytes")


if __name__ == "__main__":
    main()
```
